```python
import torch

def _softmax(x, axis=-1):
    return torch.softmax(x, dim=axis)
def _gelu(x):
    return torch.nn.functional.gelu(x, approximate="tanh")
def _silu(x):
    return torch.nn.functional.silu(x)
def _sigmoid(x):
    return torch.sigmoid(x)
def _layernorm(x, axis=-1, eps=1e-5):
    m = x.mean(dim=axis, keepdim=True)
    v = x.var(dim=axis, keepdim=True, unbiased=False)
    return (x - m) / torch.sqrt(v + eps)
def _scatter_add(tgt, idx, src, axis=0):
    return tgt.clone().index_add_(axis, idx, src)
def _segment_sum(src, seg, n):
    out = torch.zeros((n,) + src.shape[1:], dtype=src.dtype)
    return out.index_add_(0, seg, src)
def _pad(x, pw):
    flat = tuple(v for pair in reversed(pw) for v in pair)
    return torch.nn.functional.pad(x, flat)

kernel_name = 'standalone__se_block__vision'

def setup_inputs():

    _w = (lambda a: (lambda t: t.to(torch.bfloat16) if t.is_floating_point() else t)(torch.as_tensor(a)))
    H = W = 512
    C = 192; r = max(C // 16, 4)
    return {
        "x": _w((lambda *s: torch.randn(*s, dtype=torch.bfloat16) * 3.2)(1, H, W, C)),
        "w_down": _w((lambda *s: torch.randn(*s, dtype=torch.bfloat16) * 3.2)(C, r)),
        "w_up": _w((lambda *s: torch.randn(*s, dtype=torch.bfloat16) * 3.2)(r, C)),
    }

def reference(x, w_down, w_up):
    s = x.mean(axis=(1, 2))
    s = _sigmoid(_silu(s @ w_down) @ w_up)
    return x * s[:, None, None, :]
```

```python
import sys, argparse

HEADER = """; Kernarg layout for this problem (48 bytes, ptrs only, base s[0:1]):
;   offset   0: d_in[0] x  shape=(1, 512, 512, 192) dtype=bfloat16 strides=(100663296, 196608, 384, 2) contiguous=True
;   offset   8: d_in[1] w_down  shape=(192, 12) dtype=bfloat16 strides=(24, 2) contiguous=True
;   offset  16: d_in[2] w_up  shape=(12, 192) dtype=bfloat16 strides=(384, 2) contiguous=True
; Override launch geometry by editing the next line (default: block=256,
"""

NB = 100663296
NWG = 256
NT = 32
TILE = 12288
STAMP_OFF = 1 << 20

class A:
    def __init__(self):
        self.l = []
    def __call__(self, s):
        self.l.append("    " + s)
    def lab(self, s):
        self.l.append(s + ":")
    def c(self, s):
        self.l.append("    ; " + s)
    def text(self):
        return "\n".join(self.l) + "\n"

def gen(G=32, wavecontig=False, lanemap="tr", ld="", st="", mode="full", stamps=False,
        wpos=8, chk=24, spin=1 << 20, dry=False, sleep=0):
    a = A()
    D = 40
    sX, sO, sWS, sDB, sWD, sWU = 16, 20, 24, 28, 32, 36
    sW, sWp, sWq, sT, sBase, sMask, sSpin, sStr, sStr2, sTmp = 40, 41, 42, 43, 44, 45, 46, 47, 48, 49
    sFull, sLead = 50, 52
    sSt = 60
    vL, vOff, vPW, vPR, vPub, vChk = 1, 2, 3, 4, 5, 6
    vAcc = 8
    vT = 16
    vWD = 20
    vWU = 32
    vX0, vX1 = 38, 39
    def srd(s): return f"s[{s}:{s+3}]"
    nstamp = [0]
    def stamp():
        if stamps:
            i = nstamp[0]
            a(f"s_memrealtime s[{sSt+2*i}:{sSt+2*i+1}]")
            nstamp[0] += 1
    ldf = (" " + ld) if ld else ""
    stf = (" " + st) if st else ""

    if wavecontig:
        Astr, Bstr = NT * TILE, NT * 3072
        offs = [k * 3072 for k in range(NT)]
    else:
        Astr, Bstr = G * TILE, 3072
        offs = [(k // G) * (NWG * G * TILE) + (k % G) * TILE for k in range(NT)]
    deltas = [offs[k + 1] - offs[k] for k in range(NT - 1)]
    dvals = sorted(set(deltas), key=lambda d: -deltas.count(d))
    assert len(dvals) <= 2
    dreg = {dvals[0]: sStr}
    if len(dvals) > 1: dreg[dvals[1]] = sStr2

    a(f"s_cmp_ge_u32 s2, {NWG}")
    a("s_cbranch_scc1 L_end")
    a("s_load_dwordx4 s[4:7], s[0:1], 0")
    a("s_load_dwordx4 s[8:11], s[0:1], 16")
    a("s_load_dwordx4 s[12:15], s[0:1], 32")
    stamp()
    a(f"v_lshrrev_b32 v{vX0}, 6, v0")
    a(f"v_and_b32 v{vL}, 63, v0")
    a(f"v_readfirstlane_b32 s{sW}, v{vX0}")
    if lanemap == "tr":
        a(f"v_lshrrev_b32 v{vX0}, 3, v{vL}")
        a(f"v_and_b32 v{vX1}, 7, v{vL}")
        a(f"v_mul_u32_u24 v{vOff}, 384, v{vX0}")
        a(f"v_lshl_add_u32 v{vOff}, v{vX1}, 4, v{vOff}")
    else:
        a(f"v_lshlrev_b32 v{vOff}, 4, v{vL}")
        a("s_nop 2")
    a(f"s_mul_i32 s{sWq}, s{sW}, 43")
    a(f"s_lshr_b32 s{sWq}, s{sWq}, 7")
    a(f"s_mul_i32 s{sTmp}, s{sWq}, 3")
    a(f"s_sub_u32 s{sWp}, s{sW}, s{sTmp}")
    a(f"s_mul_i32 s{sBase}, s2, {Astr}")
    a(f"s_mul_i32 s{sTmp}, s{sWq}, {Bstr}")
    a(f"s_add_u32 s{sBase}, s{sBase}, s{sTmp}")
    a(f"s_lshl_b32 s{sTmp}, s{sWp}, {7 if lanemap == 'tr' else 10}")
    a(f"s_add_u32 s{sBase}, s{sBase}, s{sTmp}")
    a(f"s_mov_b32 s{sT}, s{sBase}")
    for d, r in dreg.items():
        a(f"s_mov_b32 s{r}, {d}")
    a(f"s_mov_b32 s{sX+2}, {NB}")
    a(f"s_mov_b32 s{sX+3}, 0x00020000")
    a(f"s_mov_b32 s{sO+2}, {NB}")
    a(f"s_mov_b32 s{sO+3}, 0x00020000")
    a(f"s_mov_b32 s{sWS+2}, {(2 << 20) if stamps else 12288}")
    a(f"s_mov_b32 s{sWS+3}, 0x00020000")
    a(f"s_mov_b32 s{sDB+2}, 256")
    a(f"s_mov_b32 s{sDB+3}, 0x00020000")
    a(f"s_mov_b32 s{sWD+2}, 4608")
    a(f"s_mov_b32 s{sWD+3}, 0x00020000")
    a(f"s_mov_b32 s{sWU+2}, 4608")
    a(f"s_mov_b32 s{sWU+3}, 0x00020000")
    a(f"s_mov_b32 s{sMask}, 0xffff0000")
    a(f"s_mov_b32 s{sSpin}, {spin}")
    a("s_waitcnt lgkmcnt(0)")
    for (s, p) in ((sX, 4), (sWD, 6), (sWU, 8), (sO, 10), (sDB, 12), (sWS, 14)):
        a(f"s_mov_b32 s{s}, s{p}")
        a(f"s_mov_b32 s{s+1}, s{p+1}")

    full = mode in ("full",)
    doload = mode in ("full", "read", "copy")
    dostore = mode in ("full", "write", "copy")

    def load(k):
        a(f"buffer_load_dwordx4 v[{D+4*k}:{D+4*k+3}], v{vOff}, {srd(sX)}, s{sT} offen{ldf}")
        if k < NT - 1:
            a(f"s_add_u32 s{sT}, s{sT}, s{dreg[deltas[k]]}")

    if full:
        a.c("publish address (lanes 0..15 with (l&3)<3): j = 3*(l>>2)+(l&3); plane j>>2, slot wg, word j&3")
        a(f"v_lshrrev_b32 v{vX0}, 2, v{vL}")
        a(f"v_and_b32 v{vX1}, 3, v{vL}")
        a(f"v_mad_u32_u24 v{vX0}, v{vX0}, 3, v{vX1}")
        a(f"v_cmp_gt_u32 vcc, 3, v{vX1}")
        a(f"v_cmp_gt_u32 s[54:55], 16, v{vL}")
        a(f"v_lshrrev_b32 v{vPub}, 2, v{vX0}")
        a(f"v_lshlrev_b32 v{vPub}, 12, v{vPub}")
        a(f"v_and_b32 v{vX0}, 3, v{vX0}")
        a(f"v_lshl_add_u32 v{vPub}, v{vX0}, 2, v{vPub}")
        a(f"s_lshl_b32 s{sTmp}, s2, 4")
        a(f"v_add_u32 v{vPub}, s{sTmp}, v{vPub}")
        a("s_and_b64 vcc, vcc, s[54:55]")
        a(f"v_mov_b32 v{vX1}, 0x40000000")
        a("s_nop 1")
        a(f"v_cndmask_b32 v{vPub}, v{vX1}, v{vPub}, vcc")
        a.c("wave 0: reset this workgroup's slot to the 'empty' marker, then count it in d_debug[0]")
        a(f"s_cmp_lg_u32 s{sW}, 0")
        a("s_cbranch_scc1 L_noclear")
        a(f"v_mov_b32 v{vX0}, -1")
        a(f"buffer_store_dword v{vX0}, v{vPub}, {srd(sWS)}, 0 offen sc1")
        a(f"v_mov_b32 v{vX1}, 1")
        a(f"v_lshlrev_b32 v{vChk}, 8, v{vL}")
        a("s_waitcnt vmcnt(0)")
        a(f"buffer_atomic_add v{vX1}, v{vChk}, {srd(sDB)}, 0 offen")
        a.lab("L_noclear")

    nq = 0
    order = []
    if doload:
        for k in range(NT):
            if full and k == wpos:
                a.c("weights: w_down row of channel c(l) = 64*wp + 8*(l&7) + (l>>3); w_up dwords")
                a(f"v_lshrrev_b32 v{vX0}, 3, v{vL}")
                a(f"v_and_b32 v{vX1}, 7, v{vL}")
                a(f"v_lshl_add_u32 v{vX0}, v{vX1}, 3, v{vX0}")
                a(f"v_mul_u32_u24 v{vX0}, 24, v{vX0}")
                a(f"s_mul_i32 s{sTmp}, s{sWp}, 1536")
                a(f"buffer_load_dwordx4 v[{vWD+6}:{vWD+9}], v{vX0}, {srd(sWD)}, s{sTmp} offen")
                a(f"buffer_load_dwordx2 v[{vWD+10}:{vWD+11}], v{vX0}, {srd(sWD)}, s{sTmp} offen offset:16")
                a(f"v_lshrrev_b32 v{vX0}, 5, v{vL}")
                a(f"v_and_b32 v{vX1}, 31, v{vL}")
                a(f"v_mul_u32_u24 v{vX0}, 384, v{vX0}")
                a(f"v_lshl_add_u32 v{vX0}, v{vX1}, 2, v{vX0}")
                a(f"s_lshl_b32 s{sTmp}, s{sWp}, 7")
                for m in range(6):
                    a(f"buffer_load_dword v{vWU+m}, v{vX0}, {srd(sWU)}, s{sTmp} offen offset:{768*m}")
                order += ["w"] * 8
            load(k)
            order.append(k)
    stamp()
    if full:
        a.c("LDS addresses for the per-wave partial table P[12][16]")
        a(f"v_lshrrev_b32 v{vX0}, 4, v{vL}")
        a(f"s_lshl_b32 s{sTmp}, s{sW}, 6")
        a(f"v_lshl_add_u32 v{vPW}, v{vX0}, 4, s{sTmp}")
        a(f"v_and_b32 v{vX1}, 15, v{vL}")
        a(f"v_lshlrev_b32 v{vX1}, 2, v{vX1}")
        a(f"v_lshl_add_u32 v{vPR}, v{vX0}, 6, v{vX1}")
        a(f"v_mov_b32 v{vChk}, 0")
        a(f"s_mov_b64 s[{sFull}:{sFull+1}], -1")
        a(f"s_mov_b32 s{sLead}, 0x00010001")
        a(f"s_mov_b32 s{sLead+1}, 0x00010001")

    if doload and mode != "copy":
        issued = list(order)
        for k in range(NT):
            pos = issued.index(k)
            n_after = len(issued) - 1 - pos
            a(f"s_waitcnt vmcnt({n_after})")
            if full and k == wpos:
                a.c("unpack w_down row to f32")
                for i in range(6):
                    a(f"v_lshlrev_b32 v{vWD+2*i}, 16, v{vWD+6+i}")
                    a(f"v_and_b32 v{vWD+2*i+1}, s{sMask}, v{vWD+6+i}")
            for h in range(2):
                d0, d1 = D + 4 * k + 2 * h, D + 4 * k + 2 * h + 1
                if k == 0:
                    a(f"v_lshlrev_b32 v{vAcc+4*h}, 16, v{d0}")
                    a(f"v_and_b32 v{vAcc+4*h+1}, s{sMask}, v{d0}")
                    a(f"v_lshlrev_b32 v{vAcc+4*h+2}, 16, v{d1}")
                    a(f"v_and_b32 v{vAcc+4*h+3}, s{sMask}, v{d1}")
                else:
                    a(f"v_lshlrev_b32 v{vT}, 16, v{d0}")
                    a(f"v_and_b32 v{vT+1}, s{sMask}, v{d0}")
                    a(f"v_lshlrev_b32 v{vT+2}, 16, v{d1}")
                    a(f"v_and_b32 v{vT+3}, s{sMask}, v{d1}")
                    a(f"v_pk_add_f32 v[{vAcc+4*h}:{vAcc+4*h+1}], v[{vAcc+4*h}:{vAcc+4*h+1}], v[{vT}:{vT+1}]")
                    a(f"v_pk_add_f32 v[{vAcc+4*h+2}:{vAcc+4*h+3}], v[{vAcc+4*h+2}:{vAcc+4*h+3}], v[{vT+2}:{vT+3}]")
            if full and k == chk:
                a.c("read the 'cleared' counter")
                a(f"buffer_load_dword v7, v{vChk}, {srd(sDB)}, 0 offen sc1")
                issued.append("c")
    elif mode == "copy":
        a("s_waitcnt vmcnt(0)")
    stamp()

    if full:
        A_ = vAcc
        a.c("butterfly 1: 8 accumulators x 8 lane rows -> one channel sum per lane")
        a("s_nop 1")
        for i in range(4):
            a(f"v_permlane32_swap_b32 v{A_+i}, v{A_+i+4}")
        for i in range(4):
            a(f"v_add_f32 v{A_+i}, v{A_+i}, v{A_+i+4}")
        a("s_nop 0")
        for i in range(2):
            a(f"v_permlane16_swap_b32 v{A_+i}, v{A_+i+2}")
        for i in range(2):
            a(f"v_add_f32 v{A_+i}, v{A_+i}, v{A_+i+2}")
        a("s_nop 1")
        a(f"v_add_f32_dpp v{A_+2}, v{A_}, v{A_} row_ror:8 row_mask:0xf bank_mask:0x3")
        a("s_nop 1")
        a(f"v_add_f32_dpp v{A_+2}, v{A_+1}, v{A_+1} row_ror:8 row_mask:0xf bank_mask:0xc")
        a.c("products with the w_down row")
        for j in range(12):
            a(f"v_mul_f32 v{vWD+j}, v{A_+2}, v{vWD+j}")
        a.c("butterfly 2")
        for i in range(6):
            a(f"v_permlane32_swap_b32 v{vWD+i}, v{vWD+i+6}")
        for i in range(6):
            a(f"v_add_f32 v{vWD+i}, v{vWD+i}, v{vWD+i+6}")
        a("s_nop 1")
        for i in range(3):
            a(f"v_permlane16_swap_b32 v{vWD+i}, v{vWD+i+3}")
        for i in range(3):
            a(f"v_add_f32 v{vWD+i}, v{vWD+i}, v{vWD+i+3}")
        for sh in (8, 4, 2, 1):
            if sh == 8: a("s_nop 1")
            for i in range(3):
                a(f"v_add_f32_dpp v{vWD+i}, v{vWD+i}, v{vWD+i} row_ror:{sh} row_mask:0xf bank_mask:0xf")
        a(f"s_mov_b64 exec, s[{sLead}:{sLead+1}]")
        a(f"ds_write_b128 v{vPW}, v[{vWD}:{vWD+3}]")
        a(f"s_mov_b64 exec, s[{sFull}:{sFull+1}]")
        a.c("all slots of this launch must have been reset before any slot is trusted")
        a("s_waitcnt vmcnt(0)")
        a.lab("L_chk")
        a(f"v_cmp_gt_u32 vcc, {NWG}, v7")
        a("s_cbranch_vccz L_chk_ok")
        a(f"buffer_load_dword v7, v{vChk}, {srd(sDB)}, 0 offen sc1")
        a("s_waitcnt vmcnt(0)")
        a(f"s_sub_u32 s{sSpin}, s{sSpin}, 1")
        a("s_cbranch_scc0 L_chk")
        a.lab("L_chk_ok")
        a("s_waitcnt lgkmcnt(0)")
        a("s_barrier")
        stamp()
        a(f"s_cmp_lg_u32 s{sW}, 0")
        a("s_cbranch_scc1 L_nopub")
        a(f"ds_read_b32 v{vT}, v{vPR}")
        a(f"ds_read_b32 v{vT+1}, v{vPR} offset:256")
        a(f"ds_read_b32 v{vT+2}, v{vPR} offset:512")
        a("s_waitcnt lgkmcnt(0)")
        a(f"v_add_f32 v{vT}, v{vT}, v{vT+1}")
        a(f"v_add_f32 v{vT}, v{vT}, v{vT+2}")
        a(f"v_mov_b32 v{vT+1}, v{vT}")
        a("s_nop 1")
        a(f"v_permlane32_swap_b32 v{vT}, v{vT+1}")
        a(f"v_add_f32 v{vT}, v{vT}, v{vT+1}")
        a(f"v_mov_b32 v{vT+1}, v{vT}")
        a("s_nop 1")
        a(f"v_permlane16_swap_b32 v{vT}, v{vT+1}")
        a(f"v_add_f32 v{vT}, v{vT}, v{vT+1}")
        a(f"v_min_u32 v{vT}, -2, v{vT}")
        a(f"buffer_store_dword v{vT}, v{vPub}, {srd(sWS)}, 0 offen sc1")
        a.lab("L_nopub")
        vPoll, vGW, vGR, vEW, vER = vPW, vPR, vPub, 7, vChk
        P = vAcc
        a(f"s_lshl_b32 s{sT}, s{sWp}, 12")
        a(f"s_lshl_b32 s{sTmp}, s{sWq}, 10")
        a(f"s_add_u32 s{sT}, s{sT}, s{sTmp}")
        a(f"v_lshlrev_b32 v{vPoll}, 4, v{vL}")
        a(f"buffer_load_dwordx4 v[{P}:{P+3}], v{vPoll}, {srd(sWS)}, s{sT} offen sc1")
        a.c("shadow work: LDS addresses, unpack w_up")
        a(f"v_lshrrev_b32 v{vX0}, 4, v{vL}")
        a(f"s_lshl_b32 s{sTmp}, s{sWp}, 6")
        a(f"s_lshl_b32 s{sStr2+6}, s{sWq}, 2")
        a(f"s_add_u32 s{sTmp}, s{sTmp}, s{sStr2+6}")
        a(f"s_add_u32 s{sTmp}, s{sTmp}, 768")
        a(f"v_lshl_add_u32 v{vGW}, v{vX0}, 4, s{sTmp}")
        a(f"v_and_b32 v{vX0}, 15, v{vL}")
        a(f"v_min_u32 v{vX0}, 5, v{vX0}")
        a(f"v_lshrrev_b32 v{vX1}, 5, v{vL}")
        a(f"v_lshl_add_u32 v{vX0}, v{vX0}, 1, v{vX1}")
        a(f"v_lshlrev_b32 v{vGR}, 4, v{vX0}")
        a(f"v_and_b32 v{vX0}, 31, v{vL}")
        a(f"v_lshl_add_u32 v{vX0}, v{vX0}, 1, v{vX1}")
        a(f"s_lshl_b32 s{sTmp}, s{sW}, 8")
        a(f"s_add_u32 s{sTmp}, s{sTmp}, 1024")
        a(f"v_lshl_add_u32 v{vEW}, v{vX0}, 2, s{sTmp}")
        a(f"v_and_b32 v{vX0}, 7, v{vL}")
        a(f"v_lshl_add_u32 v{vER}, v{vX0}, 5, s{sTmp}")
        for m in range(6):
            a(f"v_lshlrev_b32 v{vWD+2*m}, 16, v{vWU+m}")
            a(f"v_and_b32 v{vWD+2*m+1}, s{sMask}, v{vWU+m}")
        a.lab("L_poll")
        a("s_waitcnt vmcnt(0)")
        a(f"v_max3_u32 v{vT}, v{P}, v{P+1}, v{P+2}")
        a(f"v_max_u32 v{vT}, v{vT}, v{P+3}")
        a(f"v_cmp_eq_u32 vcc, -1, v{vT}")
        a("s_cbranch_vccz L_got")
        if sleep: a(f"s_sleep {sleep}")
        a(f"buffer_load_dwordx4 v[{P}:{P+3}], v{vPoll}, {srd(sWS)}, s{sT} offen sc1")
        a(f"s_sub_u32 s{sSpin}, s{sSpin}, 1")
        a("s_cbranch_scc0 L_poll")
        a("s_waitcnt vmcnt(0)")
        a.lab("L_got")
        stamp()
        a(f"v_permlane32_swap_b32 v{P}, v{P+2}")
        a(f"v_permlane32_swap_b32 v{P+1}, v{P+3}")
        a(f"v_add_f32 v{P}, v{P}, v{P+2}")
        a(f"v_add_f32 v{P+1}, v{P+1}, v{P+3}")
        a("s_nop 1")
        a(f"v_permlane16_swap_b32 v{P}, v{P+1}")
        a(f"v_add_f32 v{P}, v{P}, v{P+1}")
        for sh in (8, 4, 2, 1):
            a("s_nop 1")
            a(f"v_add_f32_dpp v{P}, v{P}, v{P} row_ror:{sh} row_mask:0xf bank_mask:0xf")
        a(f"s_mov_b64 exec, s[{sLead}:{sLead+1}]")
        a(f"ds_write_b32 v{vGW}, v{P}")
        a(f"s_mov_b64 exec, s[{sFull}:{sFull+1}]")
        a("s_waitcnt lgkmcnt(0)")
        a("s_barrier")
        a(f"ds_read_b128 v[{P}:{P+3}], v{vGR} offset:768")
        a("s_waitcnt lgkmcnt(0)")
        a(f"v_pk_add_f32 v[{P}:{P+1}], v[{P}:{P+1}], v[{P+2}:{P+3}]")
        a(f"v_add_f32 v{P}, v{P}, v{P+1}")
        a(f"v_mul_f32 v{P}, 0x36800000, v{P}")
        a(f"v_cvt_pk_bf16_f32 v{P}, v{P}, v{P}")
        a(f"v_lshlrev_b32 v{P}, 16, v{P}")
        a(f"v_mul_f32 v{P+1}, 0xbfb8aa3b, v{P}")
        a(f"v_exp_f32 v{P+1}, v{P+1}")
        a("s_nop 0")
        a(f"v_add_f32 v{P+1}, 1.0, v{P+1}")
        a(f"v_rcp_f32 v{P+1}, v{P+1}")
        a("s_nop 0")
        a(f"v_mul_f32 v{P}, v{P}, v{P+1}")
        a(f"v_cvt_pk_bf16_f32 v{P}, v{P}, v{P}")
        a(f"v_lshlrev_b32 v{P}, 16, v{P}")
        a("s_nop 1")
        Z = vT
        for m in range(6):
            op = "v_mul_f32_dpp" if m < 2 else "v_fmac_f32_dpp"
            z = Z + 2 * (m & 1)
            a(f"{op} v{z}, v{P}, v{vWD+2*m} row_newbcast:{m} row_mask:0xf bank_mask:0xf")
            a(f"{op} v{z+1}, v{P}, v{vWD+2*m+1} row_newbcast:{m} row_mask:0xf bank_mask:0xf")
        a(f"v_pk_add_f32 v[{Z}:{Z+1}], v[{Z}:{Z+1}], v[{Z+2}:{Z+3}]")
        a("s_nop 1")
        a(f"v_permlane32_swap_b32 v{Z}, v{Z+1}")
        a(f"v_add_f32 v{Z}, v{Z}, v{Z+1}")
        a(f"v_cvt_pk_bf16_f32 v{Z}, v{Z}, v{Z}")
        a(f"v_lshlrev_b32 v{Z}, 16, v{Z}")
        a(f"v_mul_f32 v{Z}, 0xbfb8aa3b, v{Z}")
        a(f"v_exp_f32 v{Z}, v{Z}")
        a("s_nop 0")
        a(f"v_add_f32 v{Z}, 1.0, v{Z}")
        a(f"v_rcp_f32 v{Z}, v{Z}")
        a("s_nop 0")
        a(f"v_cvt_pk_bf16_f32 v{Z}, v{Z}, v{Z}")
        a(f"v_lshlrev_b32 v{Z}, 16, v{Z}")
        a(f"ds_write_b32 v{vEW}, v{Z}")
        a(f"ds_read_b128 v[{vAcc}:{vAcc+3}], v{vER}")
        a(f"ds_read_b128 v[{vAcc+4}:{vAcc+7}], v{vER} offset:16")
        a("s_waitcnt lgkmcnt(0)")
    stamp()
    if dostore:
        a(f"s_mov_b32 s{sT}, s{sBase}")
        for k in range(NT):
            if mode != "copy" or True:
                for h in range(2):
                    d0, d1 = D + 4 * k + 2 * h, D + 4 * k + 2 * h + 1
                    a(f"v_lshlrev_b32 v{vT}, 16, v{d0}")
                    a(f"v_and_b32 v{vT+1}, s{sMask}, v{d0}")
                    a(f"v_lshlrev_b32 v{vT+2}, 16, v{d1}")
                    a(f"v_and_b32 v{vT+3}, s{sMask}, v{d1}")
                    a(f"v_pk_mul_f32 v[{vT}:{vT+1}], v[{vT}:{vT+1}], v[{vAcc+4*h}:{vAcc+4*h+1}]")
                    a(f"v_pk_mul_f32 v[{vT+2}:{vT+3}], v[{vT+2}:{vT+3}], v[{vAcc+4*h+2}:{vAcc+4*h+3}]")
                    a(f"v_cvt_pk_bf16_f32 v{d0}, v{vT}, v{vT+1}")
                    a(f"v_cvt_pk_bf16_f32 v{d1}, v{vT+2}, v{vT+3}")
            a(f"buffer_store_dwordx4 v[{D+4*k}:{D+4*k+3}], v{vOff}, {srd(sO)}, s{sT} offen{stf}")
            if k < NT - 1:
                a(f"s_add_u32 s{sT}, s{sT}, s{dreg[deltas[k]]}")
    elif mode == "read":
        a.c("keep the sums alive: one store per wave into the workspace")
        a(f"v_add_f32 v{vAcc}, v{vAcc}, v{vAcc+1}")
        for i in range(2, 8):
            a(f"v_add_f32 v{vAcc}, v{vAcc}, v{vAcc+i}")
        a(f"v_lshlrev_b32 v{vX0}, 2, v0")
        a(f"buffer_store_dword v{vAcc}, v{vX0}, {srd(sWS)}, 0 offen")
    stamp()
    if stamps:
        a("s_waitcnt vmcnt(0)")
        stamp()
        a("s_waitcnt lgkmcnt(0)")
        a(f"v_mov_b32 v{vT}, 0")
        a(f"v_mov_b32 v{vT+1}, 0")
        for i in range(nstamp[0]):
            a(f"v_writelane_b32 v{vT}, s{sSt+2*i}, {i}")
            a(f"v_writelane_b32 v{vT+1}, s{sSt+2*i+1}, {i}")
        a(f"s_mul_i32 s{sTmp}, s2, 12")
        a(f"s_add_u32 s{sTmp}, s{sTmp}, s{sW}")
        a(f"s_lshl_b32 s{sTmp}, s{sTmp}, 6")
        a(f"s_add_u32 s{sTmp}, s{sTmp}, {STAMP_OFF}")
        a(f"v_lshlrev_b32 v{vX0}, 3, v{vL}")
        a("s_mov_b64 exec, 0xff")
        a(f"buffer_store_dwordx2 v[{vT}:{vT+1}], v{vX0}, {srd(sWS)}, s{sTmp} offen")
    a.lab("L_end")
    a("s_endpgm")

    out = HEADER
    out += f"; @launch grid=({NWG},1,1) block=(768,1,1) lds=4096\n"
    out += """.amdgcn_target "amdgcn-amd-amdhsa--gfx950"
.text
.globl standalone__se_block__vision_kernel
.p2align 8
.type standalone__se_block__vision_kernel,@function
standalone__se_block__vision_kernel:
"""
    out += a.text()
    out += """.section .rodata,"a"
.p2align 6
.amdhsa_kernel standalone__se_block__vision_kernel
  .amdhsa_next_free_vgpr 168
  .amdhsa_next_free_sgpr 80
  .amdhsa_accum_offset 168
  .amdhsa_group_segment_fixed_size 0
  .amdhsa_kernarg_size 48
  .amdhsa_user_sgpr_count 2
  .amdhsa_user_sgpr_kernarg_segment_ptr 1
  .amdhsa_system_sgpr_workgroup_id_x 1
  .amdhsa_float_denorm_mode_32 3
.end_amdhsa_kernel
"""
    return out, nstamp[0]

if __name__ == "__main__":
    p = argparse.ArgumentParser()
    p.add_argument("out")
    p.add_argument("--G", type=int, default=32)
    p.add_argument("--wavecontig", action="store_true")
    p.add_argument("--lanemap", default="tr")
    p.add_argument("--ld", default="")
    p.add_argument("--st", default="")
    p.add_argument("--mode", default="full")
    p.add_argument("--stamps", action="store_true")
    p.add_argument("--sleep", type=int, default=0)
    x = p.parse_args()
    t, n = gen(G=x.G, wavecontig=x.wavecontig, lanemap=x.lanemap, ld=x.ld, st=x.st, mode=x.mode,
               stamps=x.stamps, sleep=x.sleep)
    open(x.out, "w").write(t)
    print(x.out, "stamps:", n)
```

```python
import sys, argparse

HEADER = """; Kernarg layout for this problem (48 bytes, ptrs only, base s[0:1]):
;   offset   0: d_in[0] x  shape=(1, 512, 512, 192) dtype=bfloat16 strides=(100663296, 196608, 384, 2) contiguous=True
;   offset   8: d_in[1] w_down  shape=(192, 12) dtype=bfloat16 strides=(24, 2) contiguous=True
;   offset  16: d_in[2] w_up  shape=(12, 192) dtype=bfloat16 strides=(384, 2) contiguous=True
; Override launch geometry by editing the next line (default: block=256,
"""

NB = 100663296
NWG = 256
NT = 32
TILE = 12288
STAMP_OFF = 1 << 20

class A:
    def __init__(self):
        self.l = []
    def __call__(self, s):
        self.l.append("    " + s)
    def lab(self, s):
        self.l.append(s + ":")
    def c(self, s):
        self.l.append("    ; " + s)
    def text(self):
        return "\n".join(self.l) + "\n"

def gen(G=32, wavecontig=False, lanemap="tr", ld="", st="", mode="full", stamps=False,
        wpos=8, chk=24, spin=1 << 20, dry=False, sleep=0, diag=None):
    a = A()
    D = 40
    sX, sO, sWS, sDB, sWD, sWU = 16, 20, 24, 28, 32, 36
    sW, sWp, sWq, sT, sBase, sMask, sSpin, sStr, sStr2, sTmp = 40, 41, 42, 43, 44, 45, 46, 47, 48, 49
    sFull, sLead = 50, 52
    sSt = 60
    vL, vOff, vPW, vPR, vPub, vChk = 1, 2, 3, 4, 5, 6
    vAcc = 8
    vT = 16
    vWD = 20
    vWU = 32
    vX0, vX1 = 38, 39
    def srd(s): return f"s[{s}:{s+3}]"
    nstamp = [0]
    def stamp():
        if stamps:
            i = nstamp[0]
            a(f"s_memrealtime s[{sSt+2*i}:{sSt+2*i+1}]")
            nstamp[0] += 1
    ldf = (" " + ld) if ld else ""
    stf = (" " + st) if st else ""

    if wavecontig:
        Astr, Bstr = NT * TILE, NT * 3072
        offs = [k * 3072 for k in range(NT)]
    else:
        Astr, Bstr = G * TILE, 3072
        offs = [(k // G) * (NWG * G * TILE) + (k % G) * TILE for k in range(NT)]
    deltas = [offs[k + 1] - offs[k] for k in range(NT - 1)]
    dvals = sorted(set(deltas), key=lambda d: -deltas.count(d))
    assert len(dvals) <= 2
    dreg = {dvals[0]: sStr}
    if len(dvals) > 1: dreg[dvals[1]] = sStr2

    a(f"s_cmp_ge_u32 s2, {NWG}")
    a("s_cbranch_scc1 L_end")
    a("s_load_dwordx4 s[4:7], s[0:1], 0")
    a("s_load_dwordx4 s[8:11], s[0:1], 16")
    a("s_load_dwordx4 s[12:15], s[0:1], 32")
    stamp()
    a(f"v_lshrrev_b32 v{vX0}, 6, v0")
    a(f"v_and_b32 v{vL}, 63, v0")
    a(f"v_readfirstlane_b32 s{sW}, v{vX0}")
    if lanemap == "tr":
        a(f"v_lshrrev_b32 v{vX0}, 3, v{vL}")
        a(f"v_and_b32 v{vX1}, 7, v{vL}")
        a(f"v_mul_u32_u24 v{vOff}, 384, v{vX0}")
        a(f"v_lshl_add_u32 v{vOff}, v{vX1}, 4, v{vOff}")
    else:
        a(f"v_lshlrev_b32 v{vOff}, 4, v{vL}")
        a("s_nop 2")
    a(f"s_mul_i32 s{sWq}, s{sW}, 43")
    a(f"s_lshr_b32 s{sWq}, s{sWq}, 7")
    a(f"s_mul_i32 s{sTmp}, s{sWq}, 3")
    a(f"s_sub_u32 s{sWp}, s{sW}, s{sTmp}")
    a(f"s_mul_i32 s{sBase}, s2, {Astr}")
    a(f"s_mul_i32 s{sTmp}, s{sWq}, {Bstr}")
    a(f"s_add_u32 s{sBase}, s{sBase}, s{sTmp}")
    a(f"s_lshl_b32 s{sTmp}, s{sWp}, {7 if lanemap == 'tr' else 10}")
    a(f"s_add_u32 s{sBase}, s{sBase}, s{sTmp}")
    a(f"s_mov_b32 s{sT}, s{sBase}")
    for d, r in dreg.items():
        a(f"s_mov_b32 s{r}, {d}")
    a(f"s_mov_b32 s{sX+2}, {NB}")
    a(f"s_mov_b32 s{sX+3}, 0x00020000")
    a(f"s_mov_b32 s{sO+2}, {NB}")
    a(f"s_mov_b32 s{sO+3}, 0x00020000")
    a(f"s_mov_b32 s{sWS+2}, {(2 << 20) if stamps else 12288}")
    a(f"s_mov_b32 s{sWS+3}, 0x00020000")
    a(f"s_mov_b32 s{sDB+2}, 256")
    a(f"s_mov_b32 s{sDB+3}, 0x00020000")
    a(f"s_mov_b32 s{sWD+2}, 4608")
    a(f"s_mov_b32 s{sWD+3}, 0x00020000")
    a(f"s_mov_b32 s{sWU+2}, 4608")
    a(f"s_mov_b32 s{sWU+3}, 0x00020000")
    a(f"s_mov_b32 s{sMask}, 0xffff0000")
    a(f"s_mov_b32 s{sSpin}, {spin}")
    a("s_waitcnt lgkmcnt(0)")
    for (s, p) in ((sX, 4), (sWD, 6), (sWU, 8), (sO, 10), (sDB, 12), (sWS, 14)):
        a(f"s_mov_b32 s{s}, s{p}")
        a(f"s_mov_b32 s{s+1}, s{p+1}")

    full = mode in ("full",)
    doload = mode in ("full", "read", "copy")
    dostore = mode in ("full", "write", "copy")

    def load(k):
        a(f"buffer_load_dwordx4 v[{D+4*k}:{D+4*k+3}], v{vOff}, {srd(sX)}, s{sT} offen{ldf}")
        if k < NT - 1:
            a(f"s_add_u32 s{sT}, s{sT}, s{dreg[deltas[k]]}")

    if full:
        a.c("publish address (lanes 0..15 with (l&3)<3): j = 3*(l>>2)+(l&3); plane j>>2, slot wg, word j&3")
        a(f"v_lshrrev_b32 v{vX0}, 2, v{vL}")
        a(f"v_and_b32 v{vX1}, 3, v{vL}")
        a(f"v_mad_u32_u24 v{vX0}, v{vX0}, 3, v{vX1}")
        a(f"v_cmp_gt_u32 vcc, 3, v{vX1}")
        a(f"v_cmp_gt_u32 s[54:55], 16, v{vL}")
        a(f"v_lshrrev_b32 v{vPub}, 2, v{vX0}")
        a(f"v_lshlrev_b32 v{vPub}, 12, v{vPub}")
        a(f"v_and_b32 v{vX0}, 3, v{vX0}")
        a(f"v_lshl_add_u32 v{vPub}, v{vX0}, 2, v{vPub}")
        a(f"s_lshl_b32 s{sTmp}, s2, 4")
        a(f"v_add_u32 v{vPub}, s{sTmp}, v{vPub}")
        a("s_and_b64 vcc, vcc, s[54:55]")
        a(f"v_mov_b32 v{vX1}, 0x40000000")
        a("s_nop 1")
        a(f"v_cndmask_b32 v{vPub}, v{vX1}, v{vPub}, vcc")
        a.c("wave 0: reset this workgroup's slot to the 'empty' marker, then count it in d_debug[0]")
        a(f"s_cmp_lg_u32 s{sW}, 0")
        a("s_cbranch_scc1 L_noclear")
        a(f"v_mov_b32 v{vX0}, -1")
        a(f"buffer_store_dword v{vX0}, v{vPub}, {srd(sWS)}, 0 offen sc1")
        a(f"v_mov_b32 v{vX1}, 1")
        a(f"v_lshlrev_b32 v{vChk}, 8, v{vL}")
        a("s_waitcnt vmcnt(0)")
        a(f"buffer_atomic_add v{vX1}, v{vChk}, {srd(sDB)}, 0 offen")
        a.lab("L_noclear")

    nq = 0
    order = []
    if doload:
        for k in range(NT):
            if full and k == wpos:
                a.c("weights: w_down row of channel c(l) = 64*wp + 8*(l&7) + (l>>3); w_up dwords")
                a(f"v_lshrrev_b32 v{vX0}, 3, v{vL}")
                a(f"v_and_b32 v{vX1}, 7, v{vL}")
                a(f"v_lshl_add_u32 v{vX0}, v{vX1}, 3, v{vX0}")
                a(f"v_mul_u32_u24 v{vX0}, 24, v{vX0}")
                a(f"s_mul_i32 s{sTmp}, s{sWp}, 1536")
                a(f"buffer_load_dwordx4 v[{vWD+6}:{vWD+9}], v{vX0}, {srd(sWD)}, s{sTmp} offen")
                a(f"buffer_load_dwordx2 v[{vWD+10}:{vWD+11}], v{vX0}, {srd(sWD)}, s{sTmp} offen offset:16")
                a(f"v_lshrrev_b32 v{vX0}, 5, v{vL}")
                a(f"v_and_b32 v{vX1}, 31, v{vL}")
                a(f"v_mul_u32_u24 v{vX0}, 384, v{vX0}")
                a(f"v_lshl_add_u32 v{vX0}, v{vX1}, 2, v{vX0}")
                a(f"s_lshl_b32 s{sTmp}, s{sWp}, 7")
                for m in range(6):
                    a(f"buffer_load_dword v{vWU+m}, v{vX0}, {srd(sWU)}, s{sTmp} offen offset:{768*m}")
                order += ["w"] * 8
            load(k)
            order.append(k)
    stamp()
    if full:
        a.c("LDS addresses for the per-wave partial table P[12][16]")
        a(f"v_lshrrev_b32 v{vX0}, 4, v{vL}")
        a(f"s_lshl_b32 s{sTmp}, s{sW}, 6")
        a(f"v_lshl_add_u32 v{vPW}, v{vX0}, 4, s{sTmp}")
        a(f"v_and_b32 v{vX1}, 15, v{vL}")
        a(f"v_lshlrev_b32 v{vX1}, 2, v{vX1}")
        a(f"v_lshl_add_u32 v{vPR}, v{vX0}, 6, v{vX1}")
        a(f"v_mov_b32 v{vChk}, 0")
        a(f"s_mov_b64 s[{sFull}:{sFull+1}], -1")
        a(f"s_mov_b32 s{sLead}, 0x00010001")
        a(f"s_mov_b32 s{sLead+1}, 0x00010001")

    if doload and mode != "copy":
        issued = list(order)
        for k in range(NT):
            pos = issued.index(k)
            n_after = len(issued) - 1 - pos
            a(f"s_waitcnt vmcnt({n_after})")
            if full and k == wpos:
                a.c("unpack w_down row to f32")
                for i in range(6):
                    a(f"v_lshlrev_b32 v{vWD+2*i}, 16, v{vWD+6+i}")
                    a(f"v_and_b32 v{vWD+2*i+1}, s{sMask}, v{vWD+6+i}")
            for h in range(2):
                d0, d1 = D + 4 * k + 2 * h, D + 4 * k + 2 * h + 1
                if k == 0:
                    a(f"v_lshlrev_b32 v{vAcc+4*h}, 16, v{d0}")
                    a(f"v_and_b32 v{vAcc+4*h+1}, s{sMask}, v{d0}")
                    a(f"v_lshlrev_b32 v{vAcc+4*h+2}, 16, v{d1}")
                    a(f"v_and_b32 v{vAcc+4*h+3}, s{sMask}, v{d1}")
                else:
                    a(f"v_lshlrev_b32 v{vT}, 16, v{d0}")
                    a(f"v_and_b32 v{vT+1}, s{sMask}, v{d0}")
                    a(f"v_lshlrev_b32 v{vT+2}, 16, v{d1}")
                    a(f"v_and_b32 v{vT+3}, s{sMask}, v{d1}")
                    a(f"v_pk_add_f32 v[{vAcc+4*h}:{vAcc+4*h+1}], v[{vAcc+4*h}:{vAcc+4*h+1}], v[{vT}:{vT+1}]")
                    a(f"v_pk_add_f32 v[{vAcc+4*h+2}:{vAcc+4*h+3}], v[{vAcc+4*h+2}:{vAcc+4*h+3}], v[{vT+2}:{vT+3}]")
            if full and k == chk:
                a.c("read the 'cleared' counter")
                a(f"buffer_load_dword v7, v{vChk}, {srd(sDB)}, 0 offen sc1")
                issued.append("c")
    elif mode == "copy":
        a("s_waitcnt vmcnt(0)")
    stamp()

    if full:
        A_ = vAcc
        a.c("butterfly 1: 8 accumulators x 8 lane rows -> one channel sum per lane")
        a("s_nop 1")
        for i in range(4):
            a(f"v_permlane32_swap_b32 v{A_+i}, v{A_+i+4}")
        for i in range(4):
            a(f"v_add_f32 v{A_+i}, v{A_+i}, v{A_+i+4}")
        a("s_nop 0")
        for i in range(2):
            a(f"v_permlane16_swap_b32 v{A_+i}, v{A_+i+2}")
        for i in range(2):
            a(f"v_add_f32 v{A_+i}, v{A_+i}, v{A_+i+2}")
        a("s_nop 1")
        a(f"v_add_f32_dpp v{A_+2}, v{A_}, v{A_} row_ror:8 row_mask:0xf bank_mask:0x3")
        a("s_nop 1")
        a(f"v_add_f32_dpp v{A_+2}, v{A_+1}, v{A_+1} row_ror:8 row_mask:0xf bank_mask:0xc")
        a.c("products with the w_down row")
        for j in range(12):
            a(f"v_mul_f32 v{vWD+j}, v{A_+2}, v{vWD+j}")
        a.c("butterfly 2")
        for i in range(6):
            a(f"v_permlane32_swap_b32 v{vWD+i}, v{vWD+i+6}")
        for i in range(6):
            a(f"v_add_f32 v{vWD+i}, v{vWD+i}, v{vWD+i+6}")
        a("s_nop 1")
        for i in range(3):
            a(f"v_permlane16_swap_b32 v{vWD+i}, v{vWD+i+3}")
        for i in range(3):
            a(f"v_add_f32 v{vWD+i}, v{vWD+i}, v{vWD+i+3}")
        for sh in (8, 4, 2, 1):
            if sh == 8: a("s_nop 1")
            for i in range(3):
                a(f"v_add_f32_dpp v{vWD+i}, v{vWD+i}, v{vWD+i} row_ror:{sh} row_mask:0xf bank_mask:0xf")
        a(f"s_mov_b64 exec, s[{sLead}:{sLead+1}]")
        a(f"ds_write_b128 v{vPW}, v[{vWD}:{vWD+3}]")
        a(f"s_mov_b64 exec, s[{sFull}:{sFull+1}]")
        a.c("all slots of this launch must have been reset before any slot is trusted")
        a("s_waitcnt vmcnt(0)")
        a.lab("L_chk")
        a(f"v_cmp_gt_u32 vcc, {NWG}, v7")
        a("s_cbranch_vccz L_chk_ok")
        a(f"buffer_load_dword v7, v{vChk}, {srd(sDB)}, 0 offen sc1")
        a("s_waitcnt vmcnt(0)")
        a(f"s_sub_u32 s{sSpin}, s{sSpin}, 1")
        a("s_cbranch_scc0 L_chk")
        a.lab("L_chk_ok")
        a("s_waitcnt lgkmcnt(0)")
        a("s_barrier")
        stamp()
        a(f"s_cmp_lg_u32 s{sW}, 0")
        a("s_cbranch_scc1 L_nopub")
        a(f"ds_read_b32 v{vT}, v{vPR}")
        a(f"ds_read_b32 v{vT+1}, v{vPR} offset:256")
        a(f"ds_read_b32 v{vT+2}, v{vPR} offset:512")
        a("s_waitcnt lgkmcnt(0)")
        a(f"v_add_f32 v{vT}, v{vT}, v{vT+1}")
        a(f"v_add_f32 v{vT}, v{vT}, v{vT+2}")
        a(f"v_mov_b32 v{vT+1}, v{vT}")
        a("s_nop 1")
        a(f"v_permlane32_swap_b32 v{vT}, v{vT+1}")
        a(f"v_add_f32 v{vT}, v{vT}, v{vT+1}")
        a(f"v_mov_b32 v{vT+1}, v{vT}")
        a("s_nop 1")
        a(f"v_permlane16_swap_b32 v{vT}, v{vT+1}")
        a(f"v_add_f32 v{vT}, v{vT}, v{vT+1}")
        a(f"v_min_u32 v{vT}, -2, v{vT}")
        a(f"buffer_store_dword v{vT}, v{vPub}, {srd(sWS)}, 0 offen sc1")
        a.lab("L_nopub")
        vPoll, vGW, vGR, vEW, vER = vPW, vPR, vPub, 7, vChk
        P = vAcc
        a(f"s_lshl_b32 s{sT}, s{sWp}, 12")
        a(f"s_lshl_b32 s{sTmp}, s{sWq}, 10")
        a(f"s_add_u32 s{sT}, s{sT}, s{sTmp}")
        a(f"v_lshlrev_b32 v{vPoll}, 4, v{vL}")
        a(f"buffer_load_dwordx4 v[{P}:{P+3}], v{vPoll}, {srd(sWS)}, s{sT} offen sc1")
        a.c("shadow work: LDS addresses, unpack w_up")
        a(f"v_lshrrev_b32 v{vX0}, 4, v{vL}")
        a(f"s_lshl_b32 s{sTmp}, s{sWp}, 6")
        a(f"s_lshl_b32 s{sStr2+6}, s{sWq}, 2")
        a(f"s_add_u32 s{sTmp}, s{sTmp}, s{sStr2+6}")
        a(f"s_add_u32 s{sTmp}, s{sTmp}, 768")
        a(f"v_lshl_add_u32 v{vGW}, v{vX0}, 4, s{sTmp}")
        a(f"v_and_b32 v{vX0}, 15, v{vL}")
        a(f"v_min_u32 v{vX0}, 5, v{vX0}")
        a(f"v_lshrrev_b32 v{vX1}, 5, v{vL}")
        a(f"v_lshl_add_u32 v{vX0}, v{vX0}, 1, v{vX1}")
        a(f"v_lshlrev_b32 v{vGR}, 4, v{vX0}")
        a(f"v_and_b32 v{vX0}, 31, v{vL}")
        a(f"v_lshl_add_u32 v{vX0}, v{vX0}, 1, v{vX1}")
        a(f"s_lshl_b32 s{sTmp}, s{sW}, 8")
        a(f"s_add_u32 s{sTmp}, s{sTmp}, 1024")
        a(f"v_lshl_add_u32 v{vEW}, v{vX0}, 2, s{sTmp}")
        a(f"v_and_b32 v{vX0}, 7, v{vL}")
        a(f"v_lshl_add_u32 v{vER}, v{vX0}, 5, s{sTmp}")
        for m in range(6):
            a(f"v_lshlrev_b32 v{vWD+2*m}, 16, v{vWU+m}")
            a(f"v_and_b32 v{vWD+2*m+1}, s{sMask}, v{vWU+m}")
        a.lab("L_poll")
        a("s_waitcnt vmcnt(0)")
        a(f"v_max3_u32 v{vT}, v{P}, v{P+1}, v{P+2}")
        a(f"v_max_u32 v{vT}, v{vT}, v{P+3}")
        a(f"v_cmp_eq_u32 vcc, -1, v{vT}")
        a("s_cbranch_vccz L_got")
        if sleep: a(f"s_sleep {sleep}")
        a(f"buffer_load_dwordx4 v[{P}:{P+3}], v{vPoll}, {srd(sWS)}, s{sT} offen sc1")
        a(f"s_sub_u32 s{sSpin}, s{sSpin}, 1")
        a("s_cbranch_scc0 L_poll")
        a("s_waitcnt vmcnt(0)")
        a.lab("L_got")
        stamp()
        a(f"v_permlane32_swap_b32 v{P}, v{P+2}")
        a(f"v_permlane32_swap_b32 v{P+1}, v{P+3}")
        a(f"v_add_f32 v{P}, v{P}, v{P+2}")
        a(f"v_add_f32 v{P+1}, v{P+1}, v{P+3}")
        a("s_nop 1")
        a(f"v_permlane16_swap_b32 v{P}, v{P+1}")
        a(f"v_add_f32 v{P}, v{P}, v{P+1}")
        for sh in (8, 4, 2, 1):
            a("s_nop 1")
            a(f"v_add_f32_dpp v{P}, v{P}, v{P} row_ror:{sh} row_mask:0xf bank_mask:0xf")
        a(f"s_mov_b64 exec, s[{sLead}:{sLead+1}]")
        a(f"ds_write_b32 v{vGW}, v{P}")
        a(f"s_mov_b64 exec, s[{sFull}:{sFull+1}]")
        a("s_waitcnt lgkmcnt(0)")
        a("s_barrier")
        a(f"ds_read_b128 v[{P}:{P+3}], v{vGR} offset:768")
        a("s_waitcnt lgkmcnt(0)")
        a(f"v_pk_add_f32 v[{P}:{P+1}], v[{P}:{P+1}], v[{P+2}:{P+3}]")
        a(f"v_add_f32 v{P}, v{P}, v{P+1}")
        a(f"v_mul_f32 v{P}, 0x36800000, v{P}")
        a(f"v_cvt_pk_bf16_f32 v{P}, v{P}, v{P}")
        a(f"v_lshlrev_b32 v{P}, 16, v{P}")
        a(f"v_mul_f32 v{P+1}, 0xbfb8aa3b, v{P}")
        a(f"v_exp_f32 v{P+1}, v{P+1}")
        a("s_nop 0")
        a(f"v_add_f32 v{P+1}, 1.0, v{P+1}")
        a(f"v_rcp_f32 v{P+1}, v{P+1}")
        a("s_nop 0")
        a(f"v_mul_f32 v{P}, v{P}, v{P+1}")
        a(f"v_cvt_pk_bf16_f32 v{P}, v{P}, v{P}")
        a(f"v_lshlrev_b32 v{P}, 16, v{P}")
        a("s_nop 1")
        Z = vT
        for m in range(6):
            op = "v_mul_f32_dpp" if m < 2 else "v_fmac_f32_dpp"
            z = Z + 2 * (m & 1)
            a(f"{op} v{z}, v{P}, v{vWD+2*m} row_newbcast:{m} row_mask:0xf bank_mask:0xf")
            a(f"{op} v{z+1}, v{P}, v{vWD+2*m+1} row_newbcast:{m} row_mask:0xf bank_mask:0xf")
        a(f"v_pk_add_f32 v[{Z}:{Z+1}], v[{Z}:{Z+1}], v[{Z+2}:{Z+3}]")
        a("s_nop 1")
        a(f"v_permlane32_swap_b32 v{Z}, v{Z+1}")
        a(f"v_add_f32 v{Z}, v{Z}, v{Z+1}")
        a(f"v_cvt_pk_bf16_f32 v{Z}, v{Z}, v{Z}")
        a(f"v_lshlrev_b32 v{Z}, 16, v{Z}")
        a(f"v_mul_f32 v{Z}, 0xbfb8aa3b, v{Z}")
        a(f"v_exp_f32 v{Z}, v{Z}")
        a("s_nop 0")
        a(f"v_add_f32 v{Z}, 1.0, v{Z}")
        a(f"v_rcp_f32 v{Z}, v{Z}")
        a("s_nop 0")
        a(f"v_cvt_pk_bf16_f32 v{Z}, v{Z}, v{Z}")
        a(f"v_lshlrev_b32 v{Z}, 16, v{Z}")
        a(f"ds_write_b32 v{vEW}, v{Z}")
        a(f"ds_read_b128 v[{vAcc}:{vAcc+3}], v{vER}")
        a(f"ds_read_b128 v[{vAcc+4}:{vAcc+7}], v{vER} offset:16")
        a("s_waitcnt lgkmcnt(0)")
    stamp()
    if dostore:
        a(f"s_mov_b32 s{sT}, s{sBase}")
        for k in range(NT):
            if mode != "copy" or True:
                for h in range(2):
                    d0, d1 = D + 4 * k + 2 * h, D + 4 * k + 2 * h + 1
                    a(f"v_lshlrev_b32 v{vT}, 16, v{d0}")
                    a(f"v_and_b32 v{vT+1}, s{sMask}, v{d0}")
                    a(f"v_lshlrev_b32 v{vT+2}, 16, v{d1}")
                    a(f"v_and_b32 v{vT+3}, s{sMask}, v{d1}")
                    a(f"v_pk_mul_f32 v[{vT}:{vT+1}], v[{vT}:{vT+1}], v[{vAcc+4*h}:{vAcc+4*h+1}]")
                    a(f"v_pk_mul_f32 v[{vT+2}:{vT+3}], v[{vT+2}:{vT+3}], v[{vAcc+4*h+2}:{vAcc+4*h+3}]")
                    a(f"v_cvt_pk_bf16_f32 v{d0}, v{vT}, v{vT+1}")
                    a(f"v_cvt_pk_bf16_f32 v{d1}, v{vT+2}, v{vT+3}")
            a(f"buffer_store_dwordx4 v[{D+4*k}:{D+4*k+3}], v{vOff}, {srd(sO)}, s{sT} offen{stf}")
            if k < NT - 1:
                a(f"s_add_u32 s{sT}, s{sT}, s{dreg[deltas[k]]}")
    elif mode == "read":
        a.c("keep the sums alive: one store per wave into the workspace")
        a(f"v_add_f32 v{vAcc}, v{vAcc}, v{vAcc+1}")
        for i in range(2, 8):
            a(f"v_add_f32 v{vAcc}, v{vAcc}, v{vAcc+i}")
        a(f"v_lshlrev_b32 v{vX0}, 2, v0")
        a(f"buffer_store_dword v{vAcc}, v{vX0}, {srd(sWS)}, 0 offen")
    stamp()
    if stamps and diag is not None:
        a("s_waitcnt vmcnt(0)")
        stamp()
        a("s_waitcnt lgkmcnt(0)")
        if diag < 0:
            a(f"s_mov_b32 s{sTmp}, 10000")
        else:
            a(f"s_sub_u32 s{sTmp}, s{sSt+2*diag}, s{sSt}")
            a(f"s_mul_i32 s{sTmp}, s{sTmp}, 10")
        a(f"s_min_u32 s{sTmp}, s{sTmp}, 200000")
        a.lab("L_diag")
        a(f"s_memrealtime s[{sSt+2}:{sSt+3}]")
        a("s_waitcnt lgkmcnt(0)")
        a(f"s_sub_u32 s{sSt+2}, s{sSt+2}, s{sSt}")
        a(f"s_cmp_lt_u32 s{sSt+2}, s{sTmp}")
        a("s_cbranch_scc1 L_diag")
    elif stamps:
        a("s_waitcnt vmcnt(0)")
        stamp()
        a("s_waitcnt lgkmcnt(0)")
        a(f"v_mov_b32 v{vT}, 0")
        a(f"v_mov_b32 v{vT+1}, 0")
        for i in range(nstamp[0]):
            a(f"v_writelane_b32 v{vT}, s{sSt+2*i}, {i}")
            a(f"v_writelane_b32 v{vT+1}, s{sSt+2*i+1}, {i}")
        a(f"s_mul_i32 s{sTmp}, s2, 12")
        a(f"s_add_u32 s{sTmp}, s{sTmp}, s{sW}")
        a(f"s_lshl_b32 s{sTmp}, s{sTmp}, 6")
        a(f"s_add_u32 s{sTmp}, s{sTmp}, {STAMP_OFF}")
        a(f"v_lshlrev_b32 v{vX0}, 3, v{vL}")
        a("s_mov_b64 exec, 0xff")
        a(f"buffer_store_dwordx2 v[{vT}:{vT+1}], v{vX0}, {srd(sWS)}, s{sTmp} offen")
    a.lab("L_end")
    a("s_endpgm")

    out = HEADER
    out += f"; @launch grid=({NWG},1,1) block=(768,1,1) lds=4096\n"
    out += """.amdgcn_target "amdgcn-amd-amdhsa--gfx950"
.text
.globl standalone__se_block__vision_kernel
.p2align 8
.type standalone__se_block__vision_kernel,@function
standalone__se_block__vision_kernel:
"""
    out += a.text()
    out += """.section .rodata,"a"
.p2align 6
.amdhsa_kernel standalone__se_block__vision_kernel
  .amdhsa_next_free_vgpr 168
  .amdhsa_next_free_sgpr 80
  .amdhsa_accum_offset 168
  .amdhsa_group_segment_fixed_size 0
  .amdhsa_kernarg_size 48
  .amdhsa_user_sgpr_count 2
  .amdhsa_user_sgpr_kernarg_segment_ptr 1
  .amdhsa_system_sgpr_workgroup_id_x 1
  .amdhsa_float_denorm_mode_32 3
.end_amdhsa_kernel
"""
    return out, nstamp[0]

if __name__ == "__main__":
    p = argparse.ArgumentParser()
    p.add_argument("out")
    p.add_argument("--G", type=int, default=32)
    p.add_argument("--wavecontig", action="store_true")
    p.add_argument("--lanemap", default="tr")
    p.add_argument("--ld", default="")
    p.add_argument("--st", default="")
    p.add_argument("--mode", default="full")
    p.add_argument("--stamps", action="store_true")
    p.add_argument("--sleep", type=int, default=0)
    p.add_argument("--diag", type=int, default=None)
    x = p.parse_args()
    t, n = gen(G=x.G, wavecontig=x.wavecontig, lanemap=x.lanemap, ld=x.ld, st=x.st, mode=x.mode,
               stamps=x.stamps, sleep=x.sleep, diag=x.diag)
    open(x.out, "w").write(t)
    print(x.out, "stamps:", n)
```

```python
import sys, argparse

HEADER = """; Kernarg layout for this problem (48 bytes, ptrs only, base s[0:1]):
;   offset   0: d_in[0] x  shape=(1, 512, 512, 192) dtype=bfloat16 strides=(100663296, 196608, 384, 2) contiguous=True
;   offset   8: d_in[1] w_down  shape=(192, 12) dtype=bfloat16 strides=(24, 2) contiguous=True
;   offset  16: d_in[2] w_up  shape=(12, 192) dtype=bfloat16 strides=(384, 2) contiguous=True
; Override launch geometry by editing the next line (default: block=256,
"""

NB = 100663296
NWG = 256
NT = 32
TILE = 12288
STAMP_OFF = 1 << 20

class A:
    def __init__(self):
        self.l = []
    def __call__(self, s):
        self.l.append("    " + s)
    def lab(self, s):
        self.l.append(s + ":")
    def c(self, s):
        self.l.append("    ; " + s)
    def text(self):
        return "\n".join(self.l) + "\n"

def gen(G=32, wavecontig=False, lanemap="tr", ld="", st="", mode="full", stamps=False,
        wpos=8, chk=24, spin=1 << 20, dry=False, sleep=0, diag=None, fine=False, diagw=None):
    a = A()
    D = 40
    sX, sO, sWS, sDB, sWD, sWU = 16, 20, 24, 28, 32, 36
    sW, sWp, sWq, sT, sBase, sMask, sSpin, sStr, sStr2, sTmp = 40, 41, 42, 43, 44, 45, 46, 47, 48, 49
    sFull, sLead = 50, 52
    sSt = 60
    vL, vOff, vPW, vPR, vPub, vChk = 1, 2, 3, 4, 5, 6
    vAcc = 8
    vT = 16
    vWD = 20
    vWU = 32
    vX0, vX1 = 38, 39
    def srd(s): return f"s[{s}:{s+3}]"
    nstamp = [0]
    def stamp():
        if stamps:
            i = nstamp[0]
            a(f"s_memrealtime s[{sSt+2*i}:{sSt+2*i+1}]")
            nstamp[0] += 1
    ldf = (" " + ld) if ld else ""
    stf = (" " + st) if st else ""

    if wavecontig:
        Astr, Bstr = NT * TILE, NT * 3072
        offs = [k * 3072 for k in range(NT)]
    else:
        Astr, Bstr = G * TILE, 3072
        offs = [(k // G) * (NWG * G * TILE) + (k % G) * TILE for k in range(NT)]
    deltas = [offs[k + 1] - offs[k] for k in range(NT - 1)]
    dvals = sorted(set(deltas), key=lambda d: -deltas.count(d))
    assert len(dvals) <= 2
    dreg = {dvals[0]: sStr}
    if len(dvals) > 1: dreg[dvals[1]] = sStr2

    a(f"s_cmp_ge_u32 s2, {NWG}")
    a("s_cbranch_scc1 L_end")
    a("s_load_dwordx4 s[4:7], s[0:1], 0")
    a("s_load_dwordx4 s[8:11], s[0:1], 16")
    a("s_load_dwordx4 s[12:15], s[0:1], 32")
    stamp()
    a(f"v_lshrrev_b32 v{vX0}, 6, v0")
    a(f"v_and_b32 v{vL}, 63, v0")
    a(f"v_readfirstlane_b32 s{sW}, v{vX0}")
    if lanemap == "tr":
        a(f"v_lshrrev_b32 v{vX0}, 3, v{vL}")
        a(f"v_and_b32 v{vX1}, 7, v{vL}")
        a(f"v_mul_u32_u24 v{vOff}, 384, v{vX0}")
        a(f"v_lshl_add_u32 v{vOff}, v{vX1}, 4, v{vOff}")
    else:
        a(f"v_lshlrev_b32 v{vOff}, 4, v{vL}")
        a("s_nop 2")
    a(f"s_mul_i32 s{sWq}, s{sW}, 43")
    a(f"s_lshr_b32 s{sWq}, s{sWq}, 7")
    a(f"s_mul_i32 s{sTmp}, s{sWq}, 3")
    a(f"s_sub_u32 s{sWp}, s{sW}, s{sTmp}")
    a(f"s_mul_i32 s{sBase}, s2, {Astr}")
    a(f"s_mul_i32 s{sTmp}, s{sWq}, {Bstr}")
    a(f"s_add_u32 s{sBase}, s{sBase}, s{sTmp}")
    a(f"s_lshl_b32 s{sTmp}, s{sWp}, {7 if lanemap == 'tr' else 10}")
    a(f"s_add_u32 s{sBase}, s{sBase}, s{sTmp}")
    a(f"s_mov_b32 s{sT}, s{sBase}")
    for d, r in dreg.items():
        a(f"s_mov_b32 s{r}, {d}")
    a(f"s_mov_b32 s{sX+2}, {NB}")
    a(f"s_mov_b32 s{sX+3}, 0x00020000")
    a(f"s_mov_b32 s{sO+2}, {NB}")
    a(f"s_mov_b32 s{sO+3}, 0x00020000")
    a(f"s_mov_b32 s{sWS+2}, {(2 << 20) if stamps else 12288}")
    a(f"s_mov_b32 s{sWS+3}, 0x00020000")
    a(f"s_mov_b32 s{sDB+2}, 256")
    a(f"s_mov_b32 s{sDB+3}, 0x00020000")
    a(f"s_mov_b32 s{sWD+2}, 4608")
    a(f"s_mov_b32 s{sWD+3}, 0x00020000")
    a(f"s_mov_b32 s{sWU+2}, 4608")
    a(f"s_mov_b32 s{sWU+3}, 0x00020000")
    a(f"s_mov_b32 s{sMask}, 0xffff0000")
    a(f"s_mov_b32 s{sSpin}, {spin}")
    a("s_waitcnt lgkmcnt(0)")
    if fine: stamp()
    for (s, p) in ((sX, 4), (sWD, 6), (sWU, 8), (sO, 10), (sDB, 12), (sWS, 14)):
        a(f"s_mov_b32 s{s}, s{p}")
        a(f"s_mov_b32 s{s+1}, s{p+1}")

    full = mode in ("full",)
    doload = mode in ("full", "read", "copy")
    dostore = mode in ("full", "write", "copy")

    def load(k):
        a(f"buffer_load_dwordx4 v[{D+4*k}:{D+4*k+3}], v{vOff}, {srd(sX)}, s{sT} offen{ldf}")
        if k < NT - 1:
            a(f"s_add_u32 s{sT}, s{sT}, s{dreg[deltas[k]]}")

    if full:
        a.c("publish address (lanes 0..15 with (l&3)<3): j = 3*(l>>2)+(l&3); plane j>>2, slot wg, word j&3")
        a(f"v_lshrrev_b32 v{vX0}, 2, v{vL}")
        a(f"v_and_b32 v{vX1}, 3, v{vL}")
        a(f"v_mad_u32_u24 v{vX0}, v{vX0}, 3, v{vX1}")
        a(f"v_cmp_gt_u32 vcc, 3, v{vX1}")
        a(f"v_cmp_gt_u32 s[54:55], 16, v{vL}")
        a(f"v_lshrrev_b32 v{vPub}, 2, v{vX0}")
        a(f"v_lshlrev_b32 v{vPub}, 12, v{vPub}")
        a(f"v_and_b32 v{vX0}, 3, v{vX0}")
        a(f"v_lshl_add_u32 v{vPub}, v{vX0}, 2, v{vPub}")
        a(f"s_lshl_b32 s{sTmp}, s2, 4")
        a(f"v_add_u32 v{vPub}, s{sTmp}, v{vPub}")
        a("s_and_b64 vcc, vcc, s[54:55]")
        a(f"v_mov_b32 v{vX1}, 0x40000000")
        a("s_nop 1")
        a(f"v_cndmask_b32 v{vPub}, v{vX1}, v{vPub}, vcc")
        a.c("wave 0: reset this workgroup's slot to the 'empty' marker, then count it in d_debug[0]")
        a(f"s_cmp_lg_u32 s{sW}, 0")
        a("s_cbranch_scc1 L_noclear")
        a(f"v_mov_b32 v{vX0}, -1")
        a(f"buffer_store_dword v{vX0}, v{vPub}, {srd(sWS)}, 0 offen sc1")
        a(f"v_mov_b32 v{vX1}, 1")
        a(f"v_lshlrev_b32 v{vChk}, 8, v{vL}")
        a("s_waitcnt vmcnt(0)")
        a(f"buffer_atomic_add v{vX1}, v{vChk}, {srd(sDB)}, 0 offen")
        a.lab("L_noclear")

    nq = 0
    order = []
    if doload:
        for k in range(NT):
            if full and k == wpos:
                a.c("weights: w_down row of channel c(l) = 64*wp + 8*(l&7) + (l>>3); w_up dwords")
                a(f"v_lshrrev_b32 v{vX0}, 3, v{vL}")
                a(f"v_and_b32 v{vX1}, 7, v{vL}")
                a(f"v_lshl_add_u32 v{vX0}, v{vX1}, 3, v{vX0}")
                a(f"v_mul_u32_u24 v{vX0}, 24, v{vX0}")
                a(f"s_mul_i32 s{sTmp}, s{sWp}, 1536")
                a(f"buffer_load_dwordx4 v[{vWD+6}:{vWD+9}], v{vX0}, {srd(sWD)}, s{sTmp} offen")
                a(f"buffer_load_dwordx2 v[{vWD+10}:{vWD+11}], v{vX0}, {srd(sWD)}, s{sTmp} offen offset:16")
                a(f"v_lshrrev_b32 v{vX0}, 5, v{vL}")
                a(f"v_and_b32 v{vX1}, 31, v{vL}")
                a(f"v_mul_u32_u24 v{vX0}, 384, v{vX0}")
                a(f"v_lshl_add_u32 v{vX0}, v{vX1}, 2, v{vX0}")
                a(f"s_lshl_b32 s{sTmp}, s{sWp}, 7")
                for m in range(6):
                    a(f"buffer_load_dword v{vWU+m}, v{vX0}, {srd(sWU)}, s{sTmp} offen offset:{768*m}")
                order += ["w"] * 8
            load(k)
            order.append(k)
    stamp()
    if full:
        a.c("LDS addresses for the per-wave partial table P[12][16]")
        a(f"v_lshrrev_b32 v{vX0}, 4, v{vL}")
        a(f"s_lshl_b32 s{sTmp}, s{sW}, 6")
        a(f"v_lshl_add_u32 v{vPW}, v{vX0}, 4, s{sTmp}")
        a(f"v_and_b32 v{vX1}, 15, v{vL}")
        a(f"v_lshlrev_b32 v{vX1}, 2, v{vX1}")
        a(f"v_lshl_add_u32 v{vPR}, v{vX0}, 6, v{vX1}")
        a(f"v_mov_b32 v{vChk}, 0")
        a(f"s_mov_b64 s[{sFull}:{sFull+1}], -1")
        a(f"s_mov_b32 s{sLead}, 0x00010001")
        a(f"s_mov_b32 s{sLead+1}, 0x00010001")

    if doload and mode != "copy":
        issued = list(order)
        for k in range(NT):
            pos = issued.index(k)
            n_after = len(issued) - 1 - pos
            a(f"s_waitcnt vmcnt({n_after})")
            if fine and k == 0: stamp()
            if full and k == wpos:
                a.c("unpack w_down row to f32")
                for i in range(6):
                    a(f"v_lshlrev_b32 v{vWD+2*i}, 16, v{vWD+6+i}")
                    a(f"v_and_b32 v{vWD+2*i+1}, s{sMask}, v{vWD+6+i}")
            for h in range(2):
                d0, d1 = D + 4 * k + 2 * h, D + 4 * k + 2 * h + 1
                if k == 0:
                    a(f"v_lshlrev_b32 v{vAcc+4*h}, 16, v{d0}")
                    a(f"v_and_b32 v{vAcc+4*h+1}, s{sMask}, v{d0}")
                    a(f"v_lshlrev_b32 v{vAcc+4*h+2}, 16, v{d1}")
                    a(f"v_and_b32 v{vAcc+4*h+3}, s{sMask}, v{d1}")
                else:
                    a(f"v_lshlrev_b32 v{vT}, 16, v{d0}")
                    a(f"v_and_b32 v{vT+1}, s{sMask}, v{d0}")
                    a(f"v_lshlrev_b32 v{vT+2}, 16, v{d1}")
                    a(f"v_and_b32 v{vT+3}, s{sMask}, v{d1}")
                    a(f"v_pk_add_f32 v[{vAcc+4*h}:{vAcc+4*h+1}], v[{vAcc+4*h}:{vAcc+4*h+1}], v[{vT}:{vT+1}]")
                    a(f"v_pk_add_f32 v[{vAcc+4*h+2}:{vAcc+4*h+3}], v[{vAcc+4*h+2}:{vAcc+4*h+3}], v[{vT+2}:{vT+3}]")
            if full and k == chk:
                a.c("read the 'cleared' counter")
                a(f"buffer_load_dword v7, v{vChk}, {srd(sDB)}, 0 offen sc1")
                issued.append("c")
    elif mode == "copy":
        a("s_waitcnt vmcnt(0)")
    stamp()

    if full:
        A_ = vAcc
        a.c("butterfly 1: 8 accumulators x 8 lane rows -> one channel sum per lane")
        a("s_nop 1")
        for i in range(4):
            a(f"v_permlane32_swap_b32 v{A_+i}, v{A_+i+4}")
        for i in range(4):
            a(f"v_add_f32 v{A_+i}, v{A_+i}, v{A_+i+4}")
        a("s_nop 0")
        for i in range(2):
            a(f"v_permlane16_swap_b32 v{A_+i}, v{A_+i+2}")
        for i in range(2):
            a(f"v_add_f32 v{A_+i}, v{A_+i}, v{A_+i+2}")
        a("s_nop 1")
        a(f"v_add_f32_dpp v{A_+2}, v{A_}, v{A_} row_ror:8 row_mask:0xf bank_mask:0x3")
        a("s_nop 1")
        a(f"v_add_f32_dpp v{A_+2}, v{A_+1}, v{A_+1} row_ror:8 row_mask:0xf bank_mask:0xc")
        a.c("products with the w_down row")
        for j in range(12):
            a(f"v_mul_f32 v{vWD+j}, v{A_+2}, v{vWD+j}")
        a.c("butterfly 2")
        for i in range(6):
            a(f"v_permlane32_swap_b32 v{vWD+i}, v{vWD+i+6}")
        for i in range(6):
            a(f"v_add_f32 v{vWD+i}, v{vWD+i}, v{vWD+i+6}")
        a("s_nop 1")
        for i in range(3):
            a(f"v_permlane16_swap_b32 v{vWD+i}, v{vWD+i+3}")
        for i in range(3):
            a(f"v_add_f32 v{vWD+i}, v{vWD+i}, v{vWD+i+3}")
        for sh in (8, 4, 2, 1):
            if sh == 8: a("s_nop 1")
            for i in range(3):
                a(f"v_add_f32_dpp v{vWD+i}, v{vWD+i}, v{vWD+i} row_ror:{sh} row_mask:0xf bank_mask:0xf")
        a(f"s_mov_b64 exec, s[{sLead}:{sLead+1}]")
        a(f"ds_write_b128 v{vPW}, v[{vWD}:{vWD+3}]")
        a(f"s_mov_b64 exec, s[{sFull}:{sFull+1}]")
        a.c("all slots of this launch must have been reset before any slot is trusted")
        a("s_waitcnt vmcnt(0)")
        a.lab("L_chk")
        a(f"v_cmp_gt_u32 vcc, {NWG}, v7")
        a("s_cbranch_vccz L_chk_ok")
        a(f"buffer_load_dword v7, v{vChk}, {srd(sDB)}, 0 offen sc1")
        a("s_waitcnt vmcnt(0)")
        a(f"s_sub_u32 s{sSpin}, s{sSpin}, 1")
        a("s_cbranch_scc0 L_chk")
        a.lab("L_chk_ok")
        a("s_waitcnt lgkmcnt(0)")
        a("s_barrier")
        stamp()
        a(f"s_cmp_lg_u32 s{sW}, 0")
        a("s_cbranch_scc1 L_nopub")
        a(f"ds_read_b32 v{vT}, v{vPR}")
        a(f"ds_read_b32 v{vT+1}, v{vPR} offset:256")
        a(f"ds_read_b32 v{vT+2}, v{vPR} offset:512")
        a("s_waitcnt lgkmcnt(0)")
        a(f"v_add_f32 v{vT}, v{vT}, v{vT+1}")
        a(f"v_add_f32 v{vT}, v{vT}, v{vT+2}")
        a(f"v_mov_b32 v{vT+1}, v{vT}")
        a("s_nop 1")
        a(f"v_permlane32_swap_b32 v{vT}, v{vT+1}")
        a(f"v_add_f32 v{vT}, v{vT}, v{vT+1}")
        a(f"v_mov_b32 v{vT+1}, v{vT}")
        a("s_nop 1")
        a(f"v_permlane16_swap_b32 v{vT}, v{vT+1}")
        a(f"v_add_f32 v{vT}, v{vT}, v{vT+1}")
        a(f"v_min_u32 v{vT}, -2, v{vT}")
        a(f"buffer_store_dword v{vT}, v{vPub}, {srd(sWS)}, 0 offen sc1")
        a.lab("L_nopub")
        vPoll, vGW, vGR, vEW, vER = vPW, vPR, vPub, 7, vChk
        P = vAcc
        a(f"s_lshl_b32 s{sT}, s{sWp}, 12")
        a(f"s_lshl_b32 s{sTmp}, s{sWq}, 10")
        a(f"s_add_u32 s{sT}, s{sT}, s{sTmp}")
        a(f"v_lshlrev_b32 v{vPoll}, 4, v{vL}")
        a(f"buffer_load_dwordx4 v[{P}:{P+3}], v{vPoll}, {srd(sWS)}, s{sT} offen sc1")
        a.c("shadow work: LDS addresses, unpack w_up")
        a(f"v_lshrrev_b32 v{vX0}, 4, v{vL}")
        a(f"s_lshl_b32 s{sTmp}, s{sWp}, 6")
        a(f"s_lshl_b32 s{sStr2+6}, s{sWq}, 2")
        a(f"s_add_u32 s{sTmp}, s{sTmp}, s{sStr2+6}")
        a(f"s_add_u32 s{sTmp}, s{sTmp}, 768")
        a(f"v_lshl_add_u32 v{vGW}, v{vX0}, 4, s{sTmp}")
        a(f"v_and_b32 v{vX0}, 15, v{vL}")
        a(f"v_min_u32 v{vX0}, 5, v{vX0}")
        a(f"v_lshrrev_b32 v{vX1}, 5, v{vL}")
        a(f"v_lshl_add_u32 v{vX0}, v{vX0}, 1, v{vX1}")
        a(f"v_lshlrev_b32 v{vGR}, 4, v{vX0}")
        a(f"v_and_b32 v{vX0}, 31, v{vL}")
        a(f"v_lshl_add_u32 v{vX0}, v{vX0}, 1, v{vX1}")
        a(f"s_lshl_b32 s{sTmp}, s{sW}, 8")
        a(f"s_add_u32 s{sTmp}, s{sTmp}, 1024")
        a(f"v_lshl_add_u32 v{vEW}, v{vX0}, 2, s{sTmp}")
        a(f"v_and_b32 v{vX0}, 7, v{vL}")
        a(f"v_lshl_add_u32 v{vER}, v{vX0}, 5, s{sTmp}")
        for m in range(6):
            a(f"v_lshlrev_b32 v{vWD+2*m}, 16, v{vWU+m}")
            a(f"v_and_b32 v{vWD+2*m+1}, s{sMask}, v{vWU+m}")
        a.lab("L_poll")
        a("s_waitcnt vmcnt(0)")
        a(f"v_max3_u32 v{vT}, v{P}, v{P+1}, v{P+2}")
        a(f"v_max_u32 v{vT}, v{vT}, v{P+3}")
        a(f"v_cmp_eq_u32 vcc, -1, v{vT}")
        a("s_cbranch_vccz L_got")
        if sleep: a(f"s_sleep {sleep}")
        a(f"buffer_load_dwordx4 v[{P}:{P+3}], v{vPoll}, {srd(sWS)}, s{sT} offen sc1")
        a(f"s_sub_u32 s{sSpin}, s{sSpin}, 1")
        a("s_cbranch_scc0 L_poll")
        a("s_waitcnt vmcnt(0)")
        a.lab("L_got")
        stamp()
        a(f"v_permlane32_swap_b32 v{P}, v{P+2}")
        a(f"v_permlane32_swap_b32 v{P+1}, v{P+3}")
        a(f"v_add_f32 v{P}, v{P}, v{P+2}")
        a(f"v_add_f32 v{P+1}, v{P+1}, v{P+3}")
        a("s_nop 1")
        a(f"v_permlane16_swap_b32 v{P}, v{P+1}")
        a(f"v_add_f32 v{P}, v{P}, v{P+1}")
        for sh in (8, 4, 2, 1):
            a("s_nop 1")
            a(f"v_add_f32_dpp v{P}, v{P}, v{P} row_ror:{sh} row_mask:0xf bank_mask:0xf")
        a(f"s_mov_b64 exec, s[{sLead}:{sLead+1}]")
        a(f"ds_write_b32 v{vGW}, v{P}")
        a(f"s_mov_b64 exec, s[{sFull}:{sFull+1}]")
        a("s_waitcnt lgkmcnt(0)")
        a("s_barrier")
        a(f"ds_read_b128 v[{P}:{P+3}], v{vGR} offset:768")
        a("s_waitcnt lgkmcnt(0)")
        a(f"v_pk_add_f32 v[{P}:{P+1}], v[{P}:{P+1}], v[{P+2}:{P+3}]")
        a(f"v_add_f32 v{P}, v{P}, v{P+1}")
        a(f"v_mul_f32 v{P}, 0x36800000, v{P}")
        a(f"v_cvt_pk_bf16_f32 v{P}, v{P}, v{P}")
        a(f"v_lshlrev_b32 v{P}, 16, v{P}")
        a(f"v_mul_f32 v{P+1}, 0xbfb8aa3b, v{P}")
        a(f"v_exp_f32 v{P+1}, v{P+1}")
        a("s_nop 0")
        a(f"v_add_f32 v{P+1}, 1.0, v{P+1}")
        a(f"v_rcp_f32 v{P+1}, v{P+1}")
        a("s_nop 0")
        a(f"v_mul_f32 v{P}, v{P}, v{P+1}")
        a(f"v_cvt_pk_bf16_f32 v{P}, v{P}, v{P}")
        a(f"v_lshlrev_b32 v{P}, 16, v{P}")
        a("s_nop 1")
        Z = vT
        for m in range(6):
            op = "v_mul_f32_dpp" if m < 2 else "v_fmac_f32_dpp"
            z = Z + 2 * (m & 1)
            a(f"{op} v{z}, v{P}, v{vWD+2*m} row_newbcast:{m} row_mask:0xf bank_mask:0xf")
            a(f"{op} v{z+1}, v{P}, v{vWD+2*m+1} row_newbcast:{m} row_mask:0xf bank_mask:0xf")
        a(f"v_pk_add_f32 v[{Z}:{Z+1}], v[{Z}:{Z+1}], v[{Z+2}:{Z+3}]")
        a("s_nop 1")
        a(f"v_permlane32_swap_b32 v{Z}, v{Z+1}")
        a(f"v_add_f32 v{Z}, v{Z}, v{Z+1}")
        a(f"v_cvt_pk_bf16_f32 v{Z}, v{Z}, v{Z}")
        a(f"v_lshlrev_b32 v{Z}, 16, v{Z}")
        a(f"v_mul_f32 v{Z}, 0xbfb8aa3b, v{Z}")
        a(f"v_exp_f32 v{Z}, v{Z}")
        a("s_nop 0")
        a(f"v_add_f32 v{Z}, 1.0, v{Z}")
        a(f"v_rcp_f32 v{Z}, v{Z}")
        a("s_nop 0")
        a(f"v_cvt_pk_bf16_f32 v{Z}, v{Z}, v{Z}")
        a(f"v_lshlrev_b32 v{Z}, 16, v{Z}")
        a(f"ds_write_b32 v{vEW}, v{Z}")
        a(f"ds_read_b128 v[{vAcc}:{vAcc+3}], v{vER}")
        a(f"ds_read_b128 v[{vAcc+4}:{vAcc+7}], v{vER} offset:16")
        a("s_waitcnt lgkmcnt(0)")
    stamp()
    if dostore:
        a(f"s_mov_b32 s{sT}, s{sBase}")
        for k in range(NT):
            if mode != "copy" or True:
                for h in range(2):
                    d0, d1 = D + 4 * k + 2 * h, D + 4 * k + 2 * h + 1
                    a(f"v_lshlrev_b32 v{vT}, 16, v{d0}")
                    a(f"v_and_b32 v{vT+1}, s{sMask}, v{d0}")
                    a(f"v_lshlrev_b32 v{vT+2}, 16, v{d1}")
                    a(f"v_and_b32 v{vT+3}, s{sMask}, v{d1}")
                    a(f"v_pk_mul_f32 v[{vT}:{vT+1}], v[{vT}:{vT+1}], v[{vAcc+4*h}:{vAcc+4*h+1}]")
                    a(f"v_pk_mul_f32 v[{vT+2}:{vT+3}], v[{vT+2}:{vT+3}], v[{vAcc+4*h+2}:{vAcc+4*h+3}]")
                    a(f"v_cvt_pk_bf16_f32 v{d0}, v{vT}, v{vT+1}")
                    a(f"v_cvt_pk_bf16_f32 v{d1}, v{vT+2}, v{vT+3}")
            a(f"buffer_store_dwordx4 v[{D+4*k}:{D+4*k+3}], v{vOff}, {srd(sO)}, s{sT} offen{stf}")
            if k < NT - 1:
                a(f"s_add_u32 s{sT}, s{sT}, s{dreg[deltas[k]]}")
    elif mode == "read":
        a.c("keep the sums alive: one store per wave into the workspace")
        a(f"v_add_f32 v{vAcc}, v{vAcc}, v{vAcc+1}")
        for i in range(2, 8):
            a(f"v_add_f32 v{vAcc}, v{vAcc}, v{vAcc+i}")
        a(f"v_lshlrev_b32 v{vX0}, 2, v0")
        a(f"buffer_store_dword v{vAcc}, v{vX0}, {srd(sWS)}, 0 offen")
    stamp()
    if stamps and diag is not None:
        a("s_waitcnt vmcnt(0)")
        stamp()
        a("s_waitcnt lgkmcnt(0)")
        if diag < 0:
            a(f"s_mov_b32 s{sTmp}, 10000")
        else:
            a(f"s_sub_u32 s{sTmp}, s{sSt+2*diag}, s{sSt}")
            a(f"s_mul_i32 s{sTmp}, s{sTmp}, {50 if diagw is not None else 10}")
        a(f"s_min_u32 s{sTmp}, s{sTmp}, 200000")
        if diagw is not None:
            a(f"s_cmp_eq_u32 s{sW}, {diagw}")
            a(f"s_cselect_b32 s{sTmp}, s{sTmp}, 0")
        a.lab("L_diag")
        a(f"s_memrealtime s[{sSt+2}:{sSt+3}]")
        a("s_waitcnt lgkmcnt(0)")
        a(f"s_sub_u32 s{sSt+2}, s{sSt+2}, s{sSt}")
        a(f"s_cmp_lt_u32 s{sSt+2}, s{sTmp}")
        a("s_cbranch_scc1 L_diag")
    elif stamps:
        a("s_waitcnt vmcnt(0)")
        stamp()
        a("s_waitcnt lgkmcnt(0)")
        a(f"v_mov_b32 v{vT}, 0")
        a(f"v_mov_b32 v{vT+1}, 0")
        for i in range(nstamp[0]):
            a(f"v_writelane_b32 v{vT}, s{sSt+2*i}, {i}")
            a(f"v_writelane_b32 v{vT+1}, s{sSt+2*i+1}, {i}")
        a(f"s_mul_i32 s{sTmp}, s2, 12")
        a(f"s_add_u32 s{sTmp}, s{sTmp}, s{sW}")
        a(f"s_lshl_b32 s{sTmp}, s{sTmp}, 6")
        a(f"s_add_u32 s{sTmp}, s{sTmp}, {STAMP_OFF}")
        a(f"v_lshlrev_b32 v{vX0}, 3, v{vL}")
        a("s_mov_b64 exec, 0xff")
        a(f"buffer_store_dwordx2 v[{vT}:{vT+1}], v{vX0}, {srd(sWS)}, s{sTmp} offen")
    a.lab("L_end")
    a("s_endpgm")

    out = HEADER
    out += f"; @launch grid=({NWG},1,1) block=(768,1,1) lds=4096\n"
    out += """.amdgcn_target "amdgcn-amd-amdhsa--gfx950"
.text
.globl standalone__se_block__vision_kernel
.p2align 8
.type standalone__se_block__vision_kernel,@function
standalone__se_block__vision_kernel:
"""
    out += a.text()
    out += """.section .rodata,"a"
.p2align 6
.amdhsa_kernel standalone__se_block__vision_kernel
  .amdhsa_next_free_vgpr 168
  .amdhsa_next_free_sgpr 96
  .amdhsa_accum_offset 168
  .amdhsa_group_segment_fixed_size 0
  .amdhsa_kernarg_size 48
  .amdhsa_user_sgpr_count 2
  .amdhsa_user_sgpr_kernarg_segment_ptr 1
  .amdhsa_system_sgpr_workgroup_id_x 1
  .amdhsa_float_denorm_mode_32 3
.end_amdhsa_kernel
"""
    return out, nstamp[0]

if __name__ == "__main__":
    p = argparse.ArgumentParser()
    p.add_argument("out")
    p.add_argument("--G", type=int, default=32)
    p.add_argument("--wavecontig", action="store_true")
    p.add_argument("--lanemap", default="tr")
    p.add_argument("--ld", default="")
    p.add_argument("--st", default="")
    p.add_argument("--mode", default="full")
    p.add_argument("--stamps", action="store_true")
    p.add_argument("--sleep", type=int, default=0)
    p.add_argument("--diag", type=int, default=None)
    p.add_argument("--diagw", type=int, default=None)
    p.add_argument("--fine", action="store_true")
    x = p.parse_args()
    t, n = gen(G=x.G, wavecontig=x.wavecontig, lanemap=x.lanemap, ld=x.ld, st=x.st, mode=x.mode,
               stamps=x.stamps, sleep=x.sleep, diag=x.diag, fine=x.fine, diagw=x.diagw)
    open(x.out, "w").write(t)
    print(x.out, "stamps:", n)
```

```python
import sys, argparse

HEADER = """; Kernarg layout for this problem (48 bytes, ptrs only, base s[0:1]):
;   offset   0: d_in[0] x  shape=(1, 512, 512, 192) dtype=bfloat16 strides=(100663296, 196608, 384, 2) contiguous=True
;   offset   8: d_in[1] w_down  shape=(192, 12) dtype=bfloat16 strides=(24, 2) contiguous=True
;   offset  16: d_in[2] w_up  shape=(12, 192) dtype=bfloat16 strides=(384, 2) contiguous=True
; Override launch geometry by editing the next line (default: block=256,
"""

NB = 100663296
NWG = 256
NT = 32
TILE = 12288
STAMP_OFF = 1 << 20

class A:
    def __init__(self):
        self.l = []
    def __call__(self, s):
        self.l.append("    " + s)
    def lab(self, s):
        self.l.append(s + ":")
    def c(self, s):
        self.l.append("    ; " + s)
    def text(self):
        return "\n".join(self.l) + "\n"

def gen(G=32, wavecontig=False, lanemap="tr", ld="", st="", mode="full", stamps=False,
        wpos=8, chk=24, spin=1 << 20, dry=False, sleep=0, diag=None, fine=False, diagw=None, abl='', pert=None):
    a = A()
    D = 40
    sX, sO, sWS, sDB, sWD, sWU = 16, 20, 24, 28, 32, 36
    sW, sWp, sWq, sT, sBase, sMask, sSpin, sStr, sStr2, sTmp = 40, 41, 42, 43, 44, 45, 46, 47, 48, 49
    sFull, sLead = 50, 52
    sSt = 60
    vL, vOff, vPW, vPR, vPub, vChk = 1, 2, 3, 4, 5, 6
    vAcc = 8
    vT = 16
    vWD = 20
    vWU = 32
    vX0, vX1 = 38, 39
    def srd(s): return f"s[{s}:{s+3}]"
    nstamp = [0]
    def stamp():
        if stamps:
            i = nstamp[0]
            a(f"s_memrealtime s[{sSt+2*i}:{sSt+2*i+1}]")
            nstamp[0] += 1
    ldf = (" " + ld) if ld else ""
    stf = (" " + st) if st else ""

    if wavecontig:
        Astr, Bstr = NT * TILE, NT * 3072
        offs = [k * 3072 for k in range(NT)]
    else:
        Astr, Bstr = G * TILE, 3072
        offs = [(k // G) * (NWG * G * TILE) + (k % G) * TILE for k in range(NT)]
    deltas = [offs[k + 1] - offs[k] for k in range(NT - 1)]
    dvals = sorted(set(deltas), key=lambda d: -deltas.count(d))
    assert len(dvals) <= 2
    dreg = {dvals[0]: sStr}
    if len(dvals) > 1: dreg[dvals[1]] = sStr2

    a(f"s_cmp_ge_u32 s2, {NWG}")
    a("s_cbranch_scc1 L_end")
    a("s_load_dwordx4 s[4:7], s[0:1], 0")
    a("s_load_dwordx4 s[8:11], s[0:1], 16")
    a("s_load_dwordx4 s[12:15], s[0:1], 32")
    stamp()
    a(f"v_lshrrev_b32 v{vX0}, 6, v0")
    a(f"v_and_b32 v{vL}, 63, v0")
    a(f"v_readfirstlane_b32 s{sW}, v{vX0}")
    if lanemap == "tr":
        a(f"v_lshrrev_b32 v{vX0}, 3, v{vL}")
        a(f"v_and_b32 v{vX1}, 7, v{vL}")
        a(f"v_mul_u32_u24 v{vOff}, 384, v{vX0}")
        a(f"v_lshl_add_u32 v{vOff}, v{vX1}, 4, v{vOff}")
    else:
        a(f"v_lshlrev_b32 v{vOff}, 4, v{vL}")
        a("s_nop 2")
    a(f"s_mul_i32 s{sWq}, s{sW}, 43")
    a(f"s_lshr_b32 s{sWq}, s{sWq}, 7")
    a(f"s_mul_i32 s{sTmp}, s{sWq}, 3")
    a(f"s_sub_u32 s{sWp}, s{sW}, s{sTmp}")
    a(f"s_mul_i32 s{sBase}, s2, {Astr}")
    a(f"s_mul_i32 s{sTmp}, s{sWq}, {Bstr}")
    a(f"s_add_u32 s{sBase}, s{sBase}, s{sTmp}")
    a(f"s_lshl_b32 s{sTmp}, s{sWp}, {7 if lanemap == 'tr' else 10}")
    a(f"s_add_u32 s{sBase}, s{sBase}, s{sTmp}")
    a(f"s_mov_b32 s{sT}, s{sBase}")
    for d, r in dreg.items():
        a(f"s_mov_b32 s{r}, {d}")
    a(f"s_mov_b32 s{sX+2}, {NB}")
    a(f"s_mov_b32 s{sX+3}, 0x00020000")
    a(f"s_mov_b32 s{sO+2}, {NB}")
    a(f"s_mov_b32 s{sO+3}, 0x00020000")
    a(f"s_mov_b32 s{sWS+2}, {(2 << 20) if stamps else 12288}")
    a(f"s_mov_b32 s{sWS+3}, 0x00020000")
    a(f"s_mov_b32 s{sDB+2}, 256")
    a(f"s_mov_b32 s{sDB+3}, 0x00020000")
    a(f"s_mov_b32 s{sWD+2}, 4608")
    a(f"s_mov_b32 s{sWD+3}, 0x00020000")
    a(f"s_mov_b32 s{sWU+2}, 4608")
    a(f"s_mov_b32 s{sWU+3}, 0x00020000")
    a(f"s_mov_b32 s{sMask}, 0xffff0000")
    a(f"s_mov_b32 s{sSpin}, {spin}")
    a("s_waitcnt lgkmcnt(0)")
    if fine: stamp()
    for (s, p) in ((sX, 4), (sWD, 6), (sWU, 8), (sO, 10), (sDB, 12), (sWS, 14)):
        a(f"s_mov_b32 s{s}, s{p}")
        a(f"s_mov_b32 s{s+1}, s{p+1}")

    full = mode in ("full",)
    doload = mode in ("full", "read", "copy")
    dostore = mode in ("full", "write", "copy")

    def load(k):
        a(f"buffer_load_dwordx4 v[{D+4*k}:{D+4*k+3}], v{vOff}, {srd(sX)}, s{sT} offen{ldf}")
        if k < NT - 1:
            a(f"s_add_u32 s{sT}, s{sT}, s{dreg[deltas[k]]}")

    if full:
        a.c("publish address (lanes 0..15 with (l&3)<3): j = 3*(l>>2)+(l&3); plane j>>2, slot wg, word j&3")
        a(f"v_lshrrev_b32 v{vX0}, 2, v{vL}")
        a(f"v_and_b32 v{vX1}, 3, v{vL}")
        a(f"v_mad_u32_u24 v{vX0}, v{vX0}, 3, v{vX1}")
        a(f"v_cmp_gt_u32 vcc, 3, v{vX1}")
        a(f"v_cmp_gt_u32 s[54:55], 16, v{vL}")
        a(f"v_lshrrev_b32 v{vPub}, 2, v{vX0}")
        a(f"v_lshlrev_b32 v{vPub}, 12, v{vPub}")
        a(f"v_and_b32 v{vX0}, 3, v{vX0}")
        a(f"v_lshl_add_u32 v{vPub}, v{vX0}, 2, v{vPub}")
        a(f"s_lshl_b32 s{sTmp}, s2, 4")
        a(f"v_add_u32 v{vPub}, s{sTmp}, v{vPub}")
        a("s_and_b64 vcc, vcc, s[54:55]")
        a(f"v_mov_b32 v{vX1}, 0x40000000")
        a("s_nop 1")
        a(f"v_cndmask_b32 v{vPub}, v{vX1}, v{vPub}, vcc")
        a.c("wave 0: reset this workgroup's slot to the 'empty' marker, then count it in d_debug[0]")
        a(f"s_cmp_lg_u32 s{sW}, {0 if 'c' not in abl else 99}")
        a("s_cbranch_scc1 L_noclear")
        a(f"v_mov_b32 v{vX0}, -1")
        a(f"buffer_store_dword v{vX0}, v{vPub}, {srd(sWS)}, 0 offen sc1")
        a(f"v_mov_b32 v{vX1}, 1")
        a(f"v_lshlrev_b32 v{vChk}, 8, v{vL}")
        a("s_waitcnt vmcnt(0)")
        a(f"buffer_atomic_add v{vX1}, v{vChk}, {srd(sDB)}, 0 offen")
        a.lab("L_noclear")

    nq = 0
    order = []
    if doload:
        for k in range(NT):
            if full and k == wpos and 'w' not in abl:
                a.c("weights: w_down row of channel c(l) = 64*wp + 8*(l&7) + (l>>3); w_up dwords")
                a(f"v_lshrrev_b32 v{vX0}, 3, v{vL}")
                a(f"v_and_b32 v{vX1}, 7, v{vL}")
                a(f"v_lshl_add_u32 v{vX0}, v{vX1}, 3, v{vX0}")
                a(f"v_mul_u32_u24 v{vX0}, 24, v{vX0}")
                a(f"s_mul_i32 s{sTmp}, s{sWp}, 1536")
                a(f"buffer_load_dwordx4 v[{vWD+6}:{vWD+9}], v{vX0}, {srd(sWD)}, s{sTmp} offen")
                a(f"buffer_load_dwordx2 v[{vWD+10}:{vWD+11}], v{vX0}, {srd(sWD)}, s{sTmp} offen offset:16")
                a(f"v_lshrrev_b32 v{vX0}, 5, v{vL}")
                a(f"v_and_b32 v{vX1}, 31, v{vL}")
                a(f"v_mul_u32_u24 v{vX0}, 384, v{vX0}")
                a(f"v_lshl_add_u32 v{vX0}, v{vX1}, 2, v{vX0}")
                a(f"s_lshl_b32 s{sTmp}, s{sWp}, 7")
                for m in range(6):
                    a(f"buffer_load_dword v{vWU+m}, v{vX0}, {srd(sWU)}, s{sTmp} offen offset:{768*m}")
                order += ["w"] * 8
            load(k)
            order.append(k)
    stamp()
    if full:
        a.c("LDS addresses for the per-wave partial table P[12][16]")
        a(f"v_lshrrev_b32 v{vX0}, 4, v{vL}")
        a(f"s_lshl_b32 s{sTmp}, s{sW}, 6")
        a(f"v_lshl_add_u32 v{vPW}, v{vX0}, 4, s{sTmp}")
        a(f"v_and_b32 v{vX1}, 15, v{vL}")
        a(f"v_lshlrev_b32 v{vX1}, 2, v{vX1}")
        a(f"v_lshl_add_u32 v{vPR}, v{vX0}, 6, v{vX1}")
        a(f"v_mov_b32 v{vChk}, 0")
        a(f"s_mov_b64 s[{sFull}:{sFull+1}], -1")
        a(f"s_mov_b32 s{sLead}, 0x00010001")
        a(f"s_mov_b32 s{sLead+1}, 0x00010001")

    if doload and mode != "copy":
        issued = list(order)
        for k in range(NT):
            pos = issued.index(k)
            n_after = len(issued) - 1 - pos
            a(f"s_waitcnt vmcnt({n_after})")
            if fine and k == 0: stamp()
            if full and k == wpos:
                a.c("unpack w_down row to f32")
                for i in range(6):
                    a(f"v_lshlrev_b32 v{vWD+2*i}, 16, v{vWD+6+i}")
                    a(f"v_and_b32 v{vWD+2*i+1}, s{sMask}, v{vWD+6+i}")
            for h in range(2):
                d0, d1 = D + 4 * k + 2 * h, D + 4 * k + 2 * h + 1
                if k == 0:
                    a(f"v_lshlrev_b32 v{vAcc+4*h}, 16, v{d0}")
                    a(f"v_and_b32 v{vAcc+4*h+1}, s{sMask}, v{d0}")
                    a(f"v_lshlrev_b32 v{vAcc+4*h+2}, 16, v{d1}")
                    a(f"v_and_b32 v{vAcc+4*h+3}, s{sMask}, v{d1}")
                else:
                    a(f"v_lshlrev_b32 v{vT}, 16, v{d0}")
                    a(f"v_and_b32 v{vT+1}, s{sMask}, v{d0}")
                    a(f"v_lshlrev_b32 v{vT+2}, 16, v{d1}")
                    a(f"v_and_b32 v{vT+3}, s{sMask}, v{d1}")
                    a(f"v_pk_add_f32 v[{vAcc+4*h}:{vAcc+4*h+1}], v[{vAcc+4*h}:{vAcc+4*h+1}], v[{vT}:{vT+1}]")
                    a(f"v_pk_add_f32 v[{vAcc+4*h+2}:{vAcc+4*h+3}], v[{vAcc+4*h+2}:{vAcc+4*h+3}], v[{vT+2}:{vT+3}]")
            if full and k == chk and 'k' in abl:
                a(f"v_mov_b32 v7, {NWG}")
            elif full and k == chk:
                a.c("read the 'cleared' counter")
                a(f"buffer_load_dword v7, v{vChk}, {srd(sDB)}, 0 offen sc1")
                issued.append("c")
    elif mode == "copy":
        a("s_waitcnt vmcnt(0)")
    stamp()

    if full:
        A_ = vAcc
        a.c("butterfly 1: 8 accumulators x 8 lane rows -> one channel sum per lane")
        a("s_nop 1")
        for i in range(4):
            a(f"v_permlane32_swap_b32 v{A_+i}, v{A_+i+4}")
        for i in range(4):
            a(f"v_add_f32 v{A_+i}, v{A_+i}, v{A_+i+4}")
        a("s_nop 0")
        for i in range(2):
            a(f"v_permlane16_swap_b32 v{A_+i}, v{A_+i+2}")
        for i in range(2):
            a(f"v_add_f32 v{A_+i}, v{A_+i}, v{A_+i+2}")
        a("s_nop 1")
        a(f"v_add_f32_dpp v{A_+2}, v{A_}, v{A_} row_ror:8 row_mask:0xf bank_mask:0x3")
        a("s_nop 1")
        a(f"v_add_f32_dpp v{A_+2}, v{A_+1}, v{A_+1} row_ror:8 row_mask:0xf bank_mask:0xc")
        a.c("products with the w_down row")
        for j in range(12):
            a(f"v_mul_f32 v{vWD+j}, v{A_+2}, v{vWD+j}")
        a.c("butterfly 2")
        for i in range(6):
            a(f"v_permlane32_swap_b32 v{vWD+i}, v{vWD+i+6}")
        for i in range(6):
            a(f"v_add_f32 v{vWD+i}, v{vWD+i}, v{vWD+i+6}")
        a("s_nop 1")
        for i in range(3):
            a(f"v_permlane16_swap_b32 v{vWD+i}, v{vWD+i+3}")
        for i in range(3):
            a(f"v_add_f32 v{vWD+i}, v{vWD+i}, v{vWD+i+3}")
        for sh in (8, 4, 2, 1):
            if sh == 8: a("s_nop 1")
            for i in range(3):
                a(f"v_add_f32_dpp v{vWD+i}, v{vWD+i}, v{vWD+i} row_ror:{sh} row_mask:0xf bank_mask:0xf")
        a(f"s_mov_b64 exec, s[{sLead}:{sLead+1}]")
        a(f"ds_write_b128 v{vPW}, v[{vWD}:{vWD+3}]")
        a(f"s_mov_b64 exec, s[{sFull}:{sFull+1}]")
        a.c("all slots of this launch must have been reset before any slot is trusted")
        a("s_waitcnt vmcnt(0)")
        a.lab("L_chk")
        a(f"v_cmp_gt_u32 vcc, {NWG}, v7")
        a("s_cbranch_vccz L_chk_ok")
        a(f"buffer_load_dword v7, v{vChk}, {srd(sDB)}, 0 offen sc1")
        a("s_waitcnt vmcnt(0)")
        a(f"s_sub_u32 s{sSpin}, s{sSpin}, 1")
        a("s_cbranch_scc0 L_chk")
        a.lab("L_chk_ok")
        a("s_waitcnt lgkmcnt(0)")
        a("s_barrier")
        stamp()
        a(f"s_cmp_lg_u32 s{sW}, 0")
        a("s_cbranch_scc1 L_nopub")
        a(f"ds_read_b32 v{vT}, v{vPR}")
        a(f"ds_read_b32 v{vT+1}, v{vPR} offset:256")
        a(f"ds_read_b32 v{vT+2}, v{vPR} offset:512")
        a("s_waitcnt lgkmcnt(0)")
        a(f"v_add_f32 v{vT}, v{vT}, v{vT+1}")
        a(f"v_add_f32 v{vT}, v{vT}, v{vT+2}")
        a(f"v_mov_b32 v{vT+1}, v{vT}")
        a("s_nop 1")
        a(f"v_permlane32_swap_b32 v{vT}, v{vT+1}")
        a(f"v_add_f32 v{vT}, v{vT}, v{vT+1}")
        a(f"v_mov_b32 v{vT+1}, v{vT}")
        a("s_nop 1")
        a(f"v_permlane16_swap_b32 v{vT}, v{vT+1}")
        a(f"v_add_f32 v{vT}, v{vT}, v{vT+1}")
        a(f"v_min_u32 v{vT}, -2, v{vT}")
        a(f"buffer_store_dword v{vT}, v{vPub}, {srd(sWS)}, 0 offen sc1")
        a.lab("L_nopub")
        vPoll, vGW, vGR, vEW, vER = vPW, vPR, vPub, 7, vChk
        P = vAcc
        a(f"s_lshl_b32 s{sT}, s{sWp}, 12")
        a(f"s_lshl_b32 s{sTmp}, s{sWq}, 10")
        a(f"s_add_u32 s{sT}, s{sT}, s{sTmp}")
        a(f"v_lshlrev_b32 v{vPoll}, 4, v{vL}")
        a(f"buffer_load_dwordx4 v[{P}:{P+3}], v{vPoll}, {srd(sWS)}, s{sT} offen sc1")
        a.c("shadow work: LDS addresses, unpack w_up")
        a(f"v_lshrrev_b32 v{vX0}, 4, v{vL}")
        a(f"s_lshl_b32 s{sTmp}, s{sWp}, 6")
        a(f"s_lshl_b32 s{sStr2+6}, s{sWq}, 2")
        a(f"s_add_u32 s{sTmp}, s{sTmp}, s{sStr2+6}")
        a(f"s_add_u32 s{sTmp}, s{sTmp}, 768")
        a(f"v_lshl_add_u32 v{vGW}, v{vX0}, 4, s{sTmp}")
        a(f"v_and_b32 v{vX0}, 15, v{vL}")
        a(f"v_min_u32 v{vX0}, 5, v{vX0}")
        a(f"v_lshrrev_b32 v{vX1}, 5, v{vL}")
        a(f"v_lshl_add_u32 v{vX0}, v{vX0}, 1, v{vX1}")
        a(f"v_lshlrev_b32 v{vGR}, 4, v{vX0}")
        a(f"v_and_b32 v{vX0}, 31, v{vL}")
        a(f"v_lshl_add_u32 v{vX0}, v{vX0}, 1, v{vX1}")
        a(f"s_lshl_b32 s{sTmp}, s{sW}, 8")
        a(f"s_add_u32 s{sTmp}, s{sTmp}, 1024")
        a(f"v_lshl_add_u32 v{vEW}, v{vX0}, 2, s{sTmp}")
        a(f"v_and_b32 v{vX0}, 7, v{vL}")
        a(f"v_lshl_add_u32 v{vER}, v{vX0}, 5, s{sTmp}")
        for m in range(6):
            a(f"v_lshlrev_b32 v{vWD+2*m}, 16, v{vWU+m}")
            a(f"v_and_b32 v{vWD+2*m+1}, s{sMask}, v{vWU+m}")
        a.lab("L_poll")
        a("s_waitcnt vmcnt(0)")
        a(f"v_max3_u32 v{vT}, v{P}, v{P+1}, v{P+2}")
        a(f"v_max_u32 v{vT}, v{vT}, v{P+3}")
        a(f"v_cmp_eq_u32 vcc, -1, v{vT}")
        a("s_cbranch_vccz L_got")
        if sleep: a(f"s_sleep {sleep}")
        a(f"buffer_load_dwordx4 v[{P}:{P+3}], v{vPoll}, {srd(sWS)}, s{sT} offen sc1")
        a(f"s_sub_u32 s{sSpin}, s{sSpin}, 1")
        a("s_cbranch_scc0 L_poll")
        a("s_waitcnt vmcnt(0)")
        a.lab("L_got")
        stamp()
        a(f"v_permlane32_swap_b32 v{P}, v{P+2}")
        a(f"v_permlane32_swap_b32 v{P+1}, v{P+3}")
        a(f"v_add_f32 v{P}, v{P}, v{P+2}")
        a(f"v_add_f32 v{P+1}, v{P+1}, v{P+3}")
        a("s_nop 1")
        a(f"v_permlane16_swap_b32 v{P}, v{P+1}")
        a(f"v_add_f32 v{P}, v{P}, v{P+1}")
        for sh in (8, 4, 2, 1):
            a("s_nop 1")
            a(f"v_add_f32_dpp v{P}, v{P}, v{P} row_ror:{sh} row_mask:0xf bank_mask:0xf")
        a(f"s_mov_b64 exec, s[{sLead}:{sLead+1}]")
        a(f"ds_write_b32 v{vGW}, v{P}")
        a(f"s_mov_b64 exec, s[{sFull}:{sFull+1}]")
        a("s_waitcnt lgkmcnt(0)")
        a("s_barrier")
        a(f"ds_read_b128 v[{P}:{P+3}], v{vGR} offset:768")
        a("s_waitcnt lgkmcnt(0)")
        a(f"v_pk_add_f32 v[{P}:{P+1}], v[{P}:{P+1}], v[{P+2}:{P+3}]")
        a(f"v_add_f32 v{P}, v{P}, v{P+1}")
        a(f"v_mul_f32 v{P}, 0x36800000, v{P}")
        a(f"v_cvt_pk_bf16_f32 v{P}, v{P}, v{P}")
        a(f"v_lshlrev_b32 v{P}, 16, v{P}")
        a(f"v_mul_f32 v{P+1}, 0xbfb8aa3b, v{P}")
        a(f"v_exp_f32 v{P+1}, v{P+1}")
        a("s_nop 0")
        a(f"v_add_f32 v{P+1}, 1.0, v{P+1}")
        a(f"v_rcp_f32 v{P+1}, v{P+1}")
        a("s_nop 0")
        a(f"v_mul_f32 v{P}, v{P}, v{P+1}")
        a(f"v_cvt_pk_bf16_f32 v{P}, v{P}, v{P}")
        a(f"v_lshlrev_b32 v{P}, 16, v{P}")
        a("s_nop 1")
        Z = vT
        for m in range(6):
            op = "v_mul_f32_dpp" if m < 2 else "v_fmac_f32_dpp"
            z = Z + 2 * (m & 1)
            a(f"{op} v{z}, v{P}, v{vWD+2*m} row_newbcast:{m} row_mask:0xf bank_mask:0xf")
            a(f"{op} v{z+1}, v{P}, v{vWD+2*m+1} row_newbcast:{m} row_mask:0xf bank_mask:0xf")
        a(f"v_pk_add_f32 v[{Z}:{Z+1}], v[{Z}:{Z+1}], v[{Z+2}:{Z+3}]")
        a("s_nop 1")
        a(f"v_permlane32_swap_b32 v{Z}, v{Z+1}")
        a(f"v_add_f32 v{Z}, v{Z}, v{Z+1}")
        a(f"v_cvt_pk_bf16_f32 v{Z}, v{Z}, v{Z}")
        a(f"v_lshlrev_b32 v{Z}, 16, v{Z}")
        a(f"v_mul_f32 v{Z}, 0xbfb8aa3b, v{Z}")
        a(f"v_exp_f32 v{Z}, v{Z}")
        a("s_nop 0")
        a(f"v_add_f32 v{Z}, 1.0, v{Z}")
        a(f"v_rcp_f32 v{Z}, v{Z}")
        a("s_nop 0")
        a(f"v_cvt_pk_bf16_f32 v{Z}, v{Z}, v{Z}")
        a(f"v_lshlrev_b32 v{Z}, 16, v{Z}")
        if pert:
            import struct
            fac, nch = pert
            bits = struct.unpack("<I", struct.pack("<f", fac))[0]
            a.c("diagnostic: scale the gate of the first channels")
            a(f"v_and_b32 v{Z+1}, 31, v{vL}")
            a(f"v_lshrrev_b32 v{Z+2}, 5, v{vL}")
            a(f"v_lshl_add_u32 v{Z+1}, v{Z+1}, 1, v{Z+2}")
            a(f"s_lshl_b32 s{sTmp}, s{sWp}, 6")
            a(f"v_add_u32 v{Z+1}, s{sTmp}, v{Z+1}")
            a(f"v_cmp_gt_u32 vcc, {nch}, v{Z+1}")
            a(f"v_mul_f32 v{Z+2}, 0x{bits:08x}, v{Z}")
            a("s_nop 1")
            a(f"v_cndmask_b32 v{Z}, v{Z}, v{Z+2}, vcc")
        a(f"ds_write_b32 v{vEW}, v{Z}")
        a(f"ds_read_b128 v[{vAcc}:{vAcc+3}], v{vER}")
        a(f"ds_read_b128 v[{vAcc+4}:{vAcc+7}], v{vER} offset:16")
        a("s_waitcnt lgkmcnt(0)")
    stamp()
    if dostore:
        a(f"s_mov_b32 s{sT}, s{sBase}")
        for k in range(NT):
            if mode != "copy" or True:
                for h in range(2):
                    d0, d1 = D + 4 * k + 2 * h, D + 4 * k + 2 * h + 1
                    a(f"v_lshlrev_b32 v{vT}, 16, v{d0}")
                    a(f"v_and_b32 v{vT+1}, s{sMask}, v{d0}")
                    a(f"v_lshlrev_b32 v{vT+2}, 16, v{d1}")
                    a(f"v_and_b32 v{vT+3}, s{sMask}, v{d1}")
                    a(f"v_pk_mul_f32 v[{vT}:{vT+1}], v[{vT}:{vT+1}], v[{vAcc+4*h}:{vAcc+4*h+1}]")
                    a(f"v_pk_mul_f32 v[{vT+2}:{vT+3}], v[{vT+2}:{vT+3}], v[{vAcc+4*h+2}:{vAcc+4*h+3}]")
                    a(f"v_cvt_pk_bf16_f32 v{d0}, v{vT}, v{vT+1}")
                    a(f"v_cvt_pk_bf16_f32 v{d1}, v{vT+2}, v{vT+3}")
            a(f"buffer_store_dwordx4 v[{D+4*k}:{D+4*k+3}], v{vOff}, {srd(sO)}, s{sT} offen{stf}")
            if k < NT - 1:
                a(f"s_add_u32 s{sT}, s{sT}, s{dreg[deltas[k]]}")
    elif mode == "read":
        a.c("keep the sums alive: one store per wave into the workspace")
        a(f"v_add_f32 v{vAcc}, v{vAcc}, v{vAcc+1}")
        for i in range(2, 8):
            a(f"v_add_f32 v{vAcc}, v{vAcc}, v{vAcc+i}")
        a(f"v_lshlrev_b32 v{vX0}, 2, v0")
        a(f"buffer_store_dword v{vAcc}, v{vX0}, {srd(sWS)}, 0 offen")
    stamp()
    if stamps and diag is not None:
        a("s_waitcnt vmcnt(0)")
        stamp()
        a("s_waitcnt lgkmcnt(0)")
        if diag < 0:
            a(f"s_mov_b32 s{sTmp}, 10000")
        else:
            a(f"s_sub_u32 s{sTmp}, s{sSt+2*diag}, s{sSt}")
            a(f"s_mul_i32 s{sTmp}, s{sTmp}, {50 if diagw is not None else 10}")
        a(f"s_min_u32 s{sTmp}, s{sTmp}, 200000")
        if diagw is not None:
            a(f"s_cmp_eq_u32 s{sW}, {diagw}")
            a(f"s_cselect_b32 s{sTmp}, s{sTmp}, 0")
        a.lab("L_diag")
        a(f"s_memrealtime s[{sSt+2}:{sSt+3}]")
        a("s_waitcnt lgkmcnt(0)")
        a(f"s_sub_u32 s{sSt+2}, s{sSt+2}, s{sSt}")
        a(f"s_cmp_lt_u32 s{sSt+2}, s{sTmp}")
        a("s_cbranch_scc1 L_diag")
    elif stamps:
        a("s_waitcnt vmcnt(0)")
        stamp()
        a("s_waitcnt lgkmcnt(0)")
        a(f"v_mov_b32 v{vT}, 0")
        a(f"v_mov_b32 v{vT+1}, 0")
        for i in range(nstamp[0]):
            a(f"v_writelane_b32 v{vT}, s{sSt+2*i}, {i}")
            a(f"v_writelane_b32 v{vT+1}, s{sSt+2*i+1}, {i}")
        a(f"s_mul_i32 s{sTmp}, s2, 12")
        a(f"s_add_u32 s{sTmp}, s{sTmp}, s{sW}")
        a(f"s_lshl_b32 s{sTmp}, s{sTmp}, 7")
        a(f"s_add_u32 s{sTmp}, s{sTmp}, {STAMP_OFF}")
        a(f"v_lshlrev_b32 v{vX0}, 3, v{vL}")
        a("s_mov_b64 exec, 0xffff")
        a(f"buffer_store_dwordx2 v[{vT}:{vT+1}], v{vX0}, {srd(sWS)}, s{sTmp} offen")
    a.lab("L_end")
    a("s_endpgm")

    out = HEADER
    out += f"; @launch grid=({NWG},1,1) block=(768,1,1) lds=4096\n"
    out += """.amdgcn_target "amdgcn-amd-amdhsa--gfx950"
.text
.globl standalone__se_block__vision_kernel
.p2align 8
.type standalone__se_block__vision_kernel,@function
standalone__se_block__vision_kernel:
"""
    out += a.text()
    out += """.section .rodata,"a"
.p2align 6
.amdhsa_kernel standalone__se_block__vision_kernel
  .amdhsa_next_free_vgpr 168
  .amdhsa_next_free_sgpr 96
  .amdhsa_accum_offset 168
  .amdhsa_group_segment_fixed_size 0
  .amdhsa_kernarg_size 48
  .amdhsa_user_sgpr_count 2
  .amdhsa_user_sgpr_kernarg_segment_ptr 1
  .amdhsa_system_sgpr_workgroup_id_x 1
  .amdhsa_float_denorm_mode_32 3
.end_amdhsa_kernel
"""
    return out, nstamp[0]

if __name__ == "__main__":
    p = argparse.ArgumentParser()
    p.add_argument("out")
    p.add_argument("--G", type=int, default=32)
    p.add_argument("--wavecontig", action="store_true")
    p.add_argument("--lanemap", default="tr")
    p.add_argument("--ld", default="")
    p.add_argument("--st", default="")
    p.add_argument("--mode", default="full")
    p.add_argument("--stamps", action="store_true")
    p.add_argument("--sleep", type=int, default=0)
    p.add_argument("--diag", type=int, default=None)
    p.add_argument("--diagw", type=int, default=None)
    p.add_argument("--fine", action="store_true")
    p.add_argument("--abl", default="")
    p.add_argument("--pert", default=None)
    x = p.parse_args()
    t, n = gen(G=x.G, wavecontig=x.wavecontig, lanemap=x.lanemap, ld=x.ld, st=x.st, mode=x.mode,
               stamps=x.stamps, sleep=x.sleep, diag=x.diag, fine=x.fine, diagw=x.diagw, abl=x.abl, pert=(float(x.pert.split(',')[0]), int(x.pert.split(',')[1])) if x.pert else None)
    open(x.out, "w").write(t)
    print(x.out, "stamps:", n)
```

```python
import sys, argparse, struct
from gen import A, HEADER, NB, NWG, STAMP_OFF

NT = 32
K = 1024
M = 1 << 20

def gen(pat="g1", ld="nt", st="sc1", stamps=False, wpos=8, spin=1 << 20, dry=0, sleep=0, thr=0,
        diag=None, diagw=None, win=0, winodd=None, plain_last=0, rdwin=0, mask=True, abl="", barpos=2, slot=128, npw=8):
    a = A()
    D = 40
    sX, sO, sWS, sDB, sWD, sWU = 16, 20, 24, 28, 32, 36
    sW, sWp, sWq, sT, sBase, sMask, sSpin, sStr, sStr2, sTmp, sTmp2 = 40, 41, 42, 43, 44, 45, 46, 47, 48, 49, 54
    sFull, sLead, sMiss = 50, 52, 56
    sSt = 60
    vL, vOff, vPW, vPR, vPub, vChk, vTk, vSl = 1, 2, 3, 4, 5, 6, 7, 0
    vAcc, vT, vWD, vWU, vX0, vX1 = 8, 16, 20, 32, 38, 39
    def srd(s): return f"s[{s}:{s+3}]"
    def p64(s): return f"s[{s}:{s+1}]"
    names = []
    def stamp(n):
        if stamps:
            i = len(names)
            a(f"s_memrealtime s[{sSt+2*i}:{sSt+2*i+1}]")
            names.append(n)
    ldf = (" " + ld) if ld else ""
    stf = (" " + st) if st else ""
    pA, B, GK, S, T = {
        "g1": (12 * K, 3 * K, 1, 3 * M, 0),
        "q": (3 * K, 24 * M, 1, 768 * K, 0),
        "g2": (24 * K, 3 * K, 2, 6 * M, 12 * K),
        "k2": (24 * K, 6 * K, 2, 6 * M, 3 * K),
        "k4": (48 * K, 12 * K, 4, 12 * M, 3 * K),
        "qk2": (6 * K, 24 * M, 2, 1536 * K, 3 * K),
        "qk4": (12 * K, 24 * M, 4, 3 * M, 3 * K),
        "qk8": (24 * K, 24 * M, 8, 6 * M, 3 * K),
        "k8": (96 * K, 24 * K, 8, 24 * M, 3 * K),
        "g4": (48 * K, 3 * K, 4, 12 * M, 12 * K),
        "g8": (96 * K, 3 * K, 8, 24 * M, 12 * K),
        "cu": (384 * K, 3 * K, 1, 12 * K, 0),
    }[pat]
    offs = [(k // GK) * S + (k % GK) * T for k in range(NT)]
    cov = set()
    for p in range(NWG):
        for wq in range(4):
            for k in range(NT):
                cov.add(p * pA + wq * B + offs[k])
    assert len(cov) == NB // 3072 and min(cov) == 0 and max(cov) == NB - 3072 and all(c % 3072 == 0 for c in cov)
    deltas = [offs[k + 1] - offs[k] for k in range(NT - 1)]
    dv = sorted(set(deltas))
    assert len(dv) <= 2
    dreg = {d: sStr + i for i, d in enumerate(dv)}

    a(f"s_cmp_ge_u32 s2, {NWG}")
    a("s_cbranch_scc1 L_end")
    a("s_load_dwordx4 s[4:7], s[0:1], 0")
    a("s_load_dwordx4 s[8:11], s[0:1], 16")
    a("s_load_dwordx4 s[12:15], s[0:1], 32")
    stamp("entry")
    a(f"v_lshrrev_b32 v{vX0}, 6, v0")
    a(f"v_and_b32 v{vL}, 63, v0")
    a(f"v_readfirstlane_b32 s{sW}, v{vX0}")
    a(f"v_lshrrev_b32 v{vX0}, 3, v{vL}")
    a(f"v_and_b32 v{vX1}, 7, v{vL}")
    a(f"v_mul_u32_u24 v{vOff}, 384, v{vX0}")
    a(f"v_lshl_add_u32 v{vOff}, v{vX1}, 4, v{vOff}")
    a(f"s_mul_i32 s{sWq}, s{sW}, 43")
    a(f"s_lshr_b32 s{sWq}, s{sWq}, 7")
    a(f"s_mul_i32 s{sTmp}, s{sWq}, 3")
    a(f"s_sub_u32 s{sWp}, s{sW}, s{sTmp}")
    a(f"s_mul_i32 s{sBase}, s2, {pA}")
    a(f"s_mul_i32 s{sTmp}, s{sWq}, {B}")
    a(f"s_add_u32 s{sBase}, s{sBase}, s{sTmp}")
    a(f"s_lshl_b32 s{sTmp}, s{sWp}, 7")
    a(f"s_add_u32 s{sBase}, s{sBase}, s{sTmp}")
    a(f"s_mov_b32 s{sT}, s{sBase}")
    for d, r in dreg.items():
        a(f"s_mov_b32 s{r}, {d}")
    a(f"s_mov_b32 s{sX+2}, {NB}")
    a(f"s_mov_b32 s{sX+3}, 0x00020000")
    a(f"s_mov_b32 s{sWS+2}, {(2 << 20) if stamps else 256 * slot}")
    a(f"s_mov_b32 s{sWS+3}, 0x00020000")
    a.c("publish address: lanes 0..15 -> this workgroup's slot, word l; other lanes out of range")
    LS = slot.bit_length() - 1
    a(f"s_lshl_b32 s{sTmp}, s2, {LS}")
    a(f"v_lshl_add_u32 v{vPub}, v{vL}, 2, s{sTmp}")
    a(f"v_cmp_gt_u32 vcc, 16, v{vL}")
    a(f"v_mov_b32 v{vX1}, 0x40000000")
    a(f"v_lshrrev_b32 v{vX0}, 2, v{vL}")
    a(f"v_cndmask_b32 v{vPub}, v{vX1}, v{vPub}, vcc")
    a(f"v_and_b32 v{vX1}, 3, v{vL}")
    a(f"v_lshlrev_b32 v{vX0}, {LS}, v{vX0}")
    a(f"v_lshl_add_u32 v{vSl}, v{vX1}, 4, v{vX0}")
    a(f"s_mov_b32 s{sDB+2}, 256")
    a(f"s_mov_b32 s{sDB+3}, 0x00020000")
    a(f"s_or_b32 s{sTmp}, s{sW}, s2")
    a(f"v_mov_b32 v{vTk}, 0")
    a("s_waitcnt lgkmcnt(0)")
    a(f"ds_write_b32 v{vTk}, v{vTk} offset:4352")
    stamp("karg")
    a(f"s_mov_b32 s{sX}, s4")
    a(f"s_mov_b32 s{sX+1}, s5")
    a(f"s_mov_b32 s{sWS}, s14")
    a(f"s_mov_b32 s{sWS+1}, s15")
    a(f"s_mov_b32 s{sDB}, s12")
    a(f"s_mov_b32 s{sDB+1}, s13")
    a.c("workgroup 0, wave 0: set every slot to the 'empty' marker, then raise the flag in d_debug[0]")
    a("s_cbranch_scc1 L_noclear")
    for i in range(4):
        a(f"v_mov_b32 v{vT+i}, -1")
    for i in range(16):
        a(f"s_mov_b32 s{sTmp}, {16*slot*i}")
        a(f"buffer_store_dwordx4 v[{vT}:{vT+3}], v{vSl}, {srd(sWS)}, s{sTmp} offen sc1")
    a.lab("L_noclear")

    order = []
    def load(k):
        a(f"buffer_load_dwordx4 v[{D+4*k}:{D+4*k+3}], v{vOff}, {srd(sX)}, s{sT} offen{ldf}")
        if k < NT - 1:
            a(f"s_add_u32 s{sT}, s{sT}, s{dreg[deltas[k]]}")
        order.append(k)
        if k == NT - 1:
            a.c("wave 0: read the reset flag (returns behind the data)")
            a(f"s_cmp_lg_u32 s{sW}, 0")
            a("s_cbranch_scc1 L_noflag")
            a(f"buffer_load_dword v{vChk}, v{vTk}, {srd(sDB)}, 0 offen sc1")
            a.lab("L_noflag")
    def weights():
        if 'w' in abl:
            for (s, p, n) in ((sWD, 6, 4608), (sWU, 8, 4608), (sO, 10, NB)):
                a(f"s_mov_b32 s{s}, s{p}")
                a(f"s_mov_b32 s{s+1}, s{p+1}")
                a(f"s_mov_b32 s{s+2}, {n}")
                a(f"s_mov_b32 s{s+3}, 0x00020000")
            return
        a.c("weights: w_down row of channel c(l) = 64*wp + 8*(l&7) + (l>>3); w_up dwords")
        for (s, p, n) in ((sWD, 6, 4608), (sWU, 8, 4608), (sO, 10, NB)):
            a(f"s_mov_b32 s{s}, s{p}")
            a(f"s_mov_b32 s{s+1}, s{p+1}")
            a(f"s_mov_b32 s{s+2}, {n}")
            a(f"s_mov_b32 s{s+3}, 0x00020000")
        a(f"v_lshrrev_b32 v{vX0}, 3, v{vL}")
        a(f"v_and_b32 v{vX1}, 7, v{vL}")
        a(f"v_lshl_add_u32 v{vX0}, v{vX1}, 3, v{vX0}")
        a(f"v_mul_u32_u24 v{vX0}, 24, v{vX0}")
        a(f"s_mul_i32 s{sTmp}, s{sWp}, 1536")
        a(f"buffer_load_dwordx4 v[{vWD+6}:{vWD+9}], v{vX0}, {srd(sWD)}, s{sTmp} offen")
        a(f"buffer_load_dwordx2 v[{vWD+10}:{vWD+11}], v{vX0}, {srd(sWD)}, s{sTmp} offen offset:16")
        a(f"v_lshrrev_b32 v{vX0}, 5, v{vL}")
        a(f"v_and_b32 v{vX1}, 31, v{vL}")
        a(f"v_mul_u32_u24 v{vX0}, 384, v{vX0}")
        a(f"v_lshl_add_u32 v{vX0}, v{vX1}, 2, v{vX0}")
        a(f"s_lshl_b32 s{sTmp}, s{sWp}, 7")
        for m in range(6):
            a(f"buffer_load_dword v{vWU+m}, v{vX0}, {srd(sWU)}, s{sTmp} offen offset:{768*m}")
        order.extend(["w"] * 8)
    RW = rdwin or NT
    assert barpos < RW
    wp_ = min(wpos, RW)
    for k in range(RW):
        if k == barpos:
            a.c("the LDS ticket is zero before any wave can take one")
            a(f"s_or_b32 s{sTmp}, s{sW}, s2")
            a("s_waitcnt lgkmcnt(0)")
            a("s_barrier")
            a("s_cbranch_scc1 L_noflagset")
            a(f"v_lshlrev_b32 v{vX0}, 8, v{vL}")
            a(f"v_mov_b32 v{vX1}, 1")
            a("s_waitcnt vmcnt(0)")
            a(f"buffer_store_dword v{vX1}, v{vX0}, {srd(sDB)}, 0 offen sc1")
            a.lab("L_noflagset")
        if k == wp_: weights()
        load(k)
    if wp_ == RW: weights()
    stamp("issued")
    a.c("LDS: P[12][16] partial table at 0, ticket at 4352; G at 768; gates at 1280")
    a(f"s_mov_b32 s{sMask}, 0xffff0000")
    a(f"s_mov_b32 s{sSpin}, {spin}")
    a(f"v_lshrrev_b32 v{vX0}, 4, v{vL}")
    a(f"s_lshl_b32 s{sTmp}, s{sW}, 6")
    a(f"v_lshl_add_u32 v{vPW}, v{vX0}, 4, s{sTmp}")
    a(f"v_and_b32 v{vX1}, 15, v{vL}")
    a(f"v_lshlrev_b32 v{vX1}, 2, v{vX1}")
    a(f"v_lshl_add_u32 v{vPR}, v{vX0}, 6, v{vX1}")
    a(f"s_mov_b64 {p64(sFull)}, -1")
    a(f"s_mov_b32 s{sLead}, 0x00010001")
    a(f"s_mov_b32 s{sLead+1}, 0x00010001")

    def acc_tile(k):
        for h in range(2):
            d0, d1 = D + 4 * k + 2 * h, D + 4 * k + 2 * h + 1
            if k == 0:
                a(f"v_lshlrev_b32 v{vAcc+4*h}, 16, v{d0}")
                a(f"v_and_b32 v{vAcc+4*h+1}, s{sMask}, v{d0}")
                a(f"v_lshlrev_b32 v{vAcc+4*h+2}, 16, v{d1}")
                a(f"v_and_b32 v{vAcc+4*h+3}, s{sMask}, v{d1}")
            else:
                a(f"v_lshlrev_b32 v{vT}, 16, v{d0}")
                a(f"v_and_b32 v{vT+1}, s{sMask}, v{d0}")
                a(f"v_lshlrev_b32 v{vT+2}, 16, v{d1}")
                a(f"v_and_b32 v{vT+3}, s{sMask}, v{d1}")
                a(f"v_pk_add_f32 v[{vAcc+4*h}:{vAcc+4*h+1}], v[{vAcc+4*h}:{vAcc+4*h+1}], v[{vT}:{vT+1}]")
                a(f"v_pk_add_f32 v[{vAcc+4*h+2}:{vAcc+4*h+3}], v[{vAcc+4*h+2}:{vAcc+4*h+3}], v[{vT+2}:{vT+3}]")

    unpacked = False
    for k in range(NT):
        pos = order.index(k)
        n_after = len(order) - 1 - pos
        a(f"s_waitcnt vmcnt({n_after})")
        if k == 0:
            stamp("tile0")
        if k + RW < NT:
            load(k + RW)
        wdone = all(order.index(k) > i for i, t in enumerate(order) if t == "w")
        if wdone and not unpacked:
            a.c("unpack w_down row to f32")
            for i in range(6):
                a(f"v_lshlrev_b32 v{vWD+2*i}, 16, v{vWD+6+i}")
                a(f"v_and_b32 v{vWD+2*i+1}, s{sMask}, v{vWD+6+i}")
            unpacked = True
        acc_tile(k)
    assert unpacked
    stamp("loaded")
    a.c("wave 0: the slots must have been reset before this workgroup publishes or trusts a slot")
    a(f"s_cmp_lg_u32 s{sW}, 0")
    a("s_cbranch_scc1 L_chk_ok")
    a.lab("L_chk")
    a(f"v_cmp_eq_u32 vcc, 0, v{vChk}")
    a("s_cbranch_vccz L_chk_ok")
    a("s_sleep 4")
    a(f"buffer_load_dword v{vChk}, v{vTk}, {srd(sDB)}, 0 offen sc1")
    a("s_waitcnt vmcnt(0)")
    a(f"s_sub_u32 s{sSpin}, s{sSpin}, 1")
    a("s_cbranch_scc0 L_chk")
    a.lab("L_chk_ok")

    A_ = vAcc
    a.c("butterfly 1: 8 accumulators x 8 lane rows -> one channel sum per lane")
    a("s_nop 1")
    for i in range(4):
        a(f"v_permlane32_swap_b32 v{A_+i}, v{A_+i+4}")
    for i in range(4):
        a(f"v_add_f32 v{A_+i}, v{A_+i}, v{A_+i+4}")
    a("s_nop 0")
    for i in range(2):
        a(f"v_permlane16_swap_b32 v{A_+i}, v{A_+i+2}")
    for i in range(2):
        a(f"v_add_f32 v{A_+i}, v{A_+i}, v{A_+i+2}")
    a("s_nop 1")
    a(f"v_add_f32_dpp v{A_+2}, v{A_}, v{A_} row_ror:8 row_mask:0xf bank_mask:0x3")
    a("s_nop 1")
    a(f"v_add_f32_dpp v{A_+2}, v{A_+1}, v{A_+1} row_ror:8 row_mask:0xf bank_mask:0xc")
    a.c("products with the w_down row, butterfly 2")
    for j in range(12):
        a(f"v_mul_f32 v{vWD+j}, v{A_+2}, v{vWD+j}")
    for i in range(6):
        a(f"v_permlane32_swap_b32 v{vWD+i}, v{vWD+i+6}")
    for i in range(6):
        a(f"v_add_f32 v{vWD+i}, v{vWD+i}, v{vWD+i+6}")
    a("s_nop 0")
    for i in range(3):
        a(f"v_permlane16_swap_b32 v{vWD+i}, v{vWD+i+3}")
    for i in range(3):
        a(f"v_add_f32 v{vWD+i}, v{vWD+i}, v{vWD+i+3}")
    a(f"v_mov_b32 v{vX1}, 1")
    a("s_nop 0")
    for sh in (8, 4, 2, 1):
        for i in range(3):
            a(f"v_add_f32_dpp v{vWD+i}, v{vWD+i}, v{vWD+i} row_ror:{sh} row_mask:0xf bank_mask:0xf")
    a.c("partials -> LDS, take a ticket, read all partials back (valid for the wave whose ticket is last)")
    a(f"s_mov_b64 exec, {p64(sLead)}")
    a(f"ds_write_b128 v{vPW}, v[{vWD}:{vWD+3}]")
    a("s_mov_b64 exec, 1")
    a(f"ds_add_rtn_u32 v{vX0}, v{vTk}, v{vX1} offset:4352")
    a(f"s_mov_b64 exec, {p64(sFull)}")
    a(f"ds_read_b32 v{vT}, v{vPR}")
    a(f"ds_read_b32 v{vT+1}, v{vPR} offset:256")
    a(f"ds_read_b32 v{vT+2}, v{vPR} offset:512")
    a("s_waitcnt lgkmcnt(0)")
    a(f"v_readfirstlane_b32 s{sTmp}, v{vX0}")
    a(f"v_add_f32 v{vT}, v{vT}, v{vT+1}")
    a(f"v_add_f32 v{vT}, v{vT}, v{vT+2}")
    a(f"v_mov_b32 v{vT+1}, v{vT}")
    a(f"s_cmp_lg_u32 s{sTmp}, 11")
    a("s_cbranch_scc1 L_nopub")
    a(f"v_permlane32_swap_b32 v{vT}, v{vT+1}")
    a(f"v_add_f32 v{vT}, v{vT}, v{vT+1}")
    a(f"v_mov_b32 v{vT+1}, v{vT}")
    a("s_nop 1")
    a(f"v_permlane16_swap_b32 v{vT}, v{vT+1}")
    a(f"v_add_f32 v{vT}, v{vT}, v{vT+1}")
    a(f"v_min_u32 v{vT}, -2, v{vT}")
    a(f"buffer_store_dword v{vT}, v{vPub}, {srd(sWS)}, 0 offen sc1")
    a.lab("L_nopub")
    stamp("pub")
    vGW, vGR, vEW, vER = vPR, vPub, vTk, vChk
    P = vAcc
    NL = 16 // npw
    a.c("shadow work: addresses, unpack w_up")
    a(f"s_mul_i32 s{sT}, s{sW}, {NL*16*slot}")
    for u in range(1, NL):
        a(f"s_add_u32 s{sMiss+u-1}, s{sT}, {u*16*slot}")
    a.c("G[12][npw] at 768: lane (row i, quad r) holds j = 3r + i")
    a(f"v_lshrrev_b32 v{vX0}, 4, v{vL}")
    a(f"v_and_b32 v{vX1}, 3, v{vL}")
    a(f"v_mad_u32_u24 v{vX0}, v{vX1}, 3, v{vX0}")
    a(f"s_lshl_b32 s{sTmp}, s{sW}, 2")
    a(f"s_add_u32 s{sTmp}, s{sTmp}, 768")
    a(f"v_lshl_add_u32 v{vGW}, v{vX0}, {(4*npw).bit_length()-1}, s{sTmp}")
    a(f"v_and_b32 v{vX0}, 15, v{vL}")
    a(f"v_min_u32 v{vX0}, 5, v{vX0}")
    a(f"v_lshrrev_b32 v{vX1}, 5, v{vL}")
    a(f"v_lshl_add_u32 v{vX0}, v{vX0}, 1, v{vX1}")
    a(f"v_lshlrev_b32 v{vGR}, {(4*npw).bit_length()-1}, v{vX0}")
    a(f"v_and_b32 v{vX0}, 31, v{vL}")
    a(f"v_lshl_add_u32 v{vX0}, v{vX0}, 1, v{vX1}")
    a(f"s_lshl_b32 s{sTmp}, s{sW}, 8")
    a(f"s_add_u32 s{sTmp}, s{sTmp}, 1280")
    a(f"v_lshl_add_u32 v{vEW}, v{vX0}, 2, s{sTmp}")
    a(f"v_and_b32 v{vX0}, 7, v{vL}")
    a(f"v_lshl_add_u32 v{vER}, v{vX0}, 5, s{sTmp}")
    for m in range(6):
        a(f"v_lshlrev_b32 v{vWD+2*m}, 16, v{vWU+m}")
        a(f"v_and_b32 v{vWD+2*m+1}, s{sMask}, v{vWU+m}")
    a(f"s_mov_b32 s{sLead}, 0x000f000f")
    a(f"s_mov_b32 s{sLead+1}, 0x0000000f")
    a(f"s_cmp_ge_u32 s{sW}, {npw}")
    a("s_barrier")
    stamp("bar1")
    a("s_cbranch_scc1 L_nopoll")
    Q = [P, P + 4, vWU, vWU + 4] if NL == 4 else [P, P + 4]
    if NL == 4: Q = [P, P + 4, vWU, vX0 - 2]
    a.lab("L_poll")
    for u in range(NL):
        so = sT if u == 0 else sMiss + u - 1
        a(f"buffer_load_dwordx3 v[{Q[u]}:{Q[u]+2}], v{vSl}, {srd(sWS)}, s{so} offen sc1")
    a("s_waitcnt vmcnt(0)")
    a(f"v_max3_u32 v{vT}, v{Q[0]}, v{Q[0]+1}, v{Q[0]+2}")
    for u in range(1, NL):
        a(f"v_max3_u32 v{vT+u}, v{Q[u]}, v{Q[u]+1}, v{Q[u]+2}")
    if NL == 2:
        a(f"v_max_u32 v{vT}, v{vT}, v{vT+1}")
    elif NL == 4:
        a(f"v_max3_u32 v{vT}, v{vT}, v{vT+1}, v{vT+2}")
        a(f"v_max_u32 v{vT}, v{vT}, v{vT+3}")
    a(f"v_cmp_eq_u32 vcc, -1, v{vT}")
    a("s_and_b64 exec, vcc, vcc")
    a("s_cbranch_scc0 L_got")
    if sleep and thr:
        a(f"s_bcnt1_i32_b64 s{sTmp}, vcc")
        a(f"s_cmp_lt_u32 s{sTmp}, {thr}")
        a("s_cbranch_scc1 L_nosleep")
        a(f"s_sleep {sleep}")
        a.lab("L_nosleep")
    elif sleep:
        a(f"s_sleep {sleep}")
    a(f"s_sub_u32 s{sSpin}, s{sSpin}, 1")
    a("s_cbranch_scc0 L_poll")
    a.lab("L_got")
    a(f"s_mov_b64 exec, {p64(sFull)}")
    if NL == 4:
        a(f"v_pk_add_f32 v[{Q[0]}:{Q[0]+1}], v[{Q[0]}:{Q[0]+1}], v[{Q[2]}:{Q[2]+1}]")
        a(f"v_pk_add_f32 v[{Q[1]}:{Q[1]+1}], v[{Q[1]}:{Q[1]+1}], v[{Q[3]}:{Q[3]+1}]")
        a(f"v_add_f32 v{Q[0]+2}, v{Q[0]+2}, v{Q[2]+2}")
        a(f"v_add_f32 v{Q[1]+2}, v{Q[1]+2}, v{Q[3]+2}")
    a(f"v_pk_add_f32 v[{P}:{P+1}], v[{P}:{P+1}], v[{P+4}:{P+5}]")
    a(f"v_add_f32 v{P+2}, v{P+2}, v{P+6}")
    a("s_nop 1")
    a(f"v_permlane32_swap_b32 v{P}, v{P+2}")
    a(f"v_permlane32_swap_b32 v{P+1}, v{P+3}")
    a(f"v_add_f32 v{P}, v{P}, v{P+2}")
    a(f"v_add_f32 v{P+1}, v{P+1}, v{P+3}")
    a("s_nop 1")
    a(f"v_permlane16_swap_b32 v{P}, v{P+1}")
    a(f"v_add_f32 v{P}, v{P}, v{P+1}")
    for sh in (8, 4):
        a("s_nop 1")
        a(f"v_add_f32_dpp v{P}, v{P}, v{P} row_ror:{sh} row_mask:0xf bank_mask:0xf")
    a(f"s_mov_b64 exec, {p64(sLead)}")
    a(f"ds_write_b32 v{vGW}, v{P}")
    a(f"s_mov_b64 exec, {p64(sFull)}")
    a("s_waitcnt lgkmcnt(0)")
    a.lab("L_nopoll")
    stamp("got")
    a("s_barrier")
    stamp("bar2")
    a(f"ds_read_b128 v[{P}:{P+3}], v{vGR} offset:768")
    if npw == 8:
        a(f"ds_read_b128 v[{P+4}:{P+7}], v{vGR} offset:784")
        a("s_waitcnt lgkmcnt(0)")
        a(f"v_pk_add_f32 v[{P}:{P+1}], v[{P}:{P+1}], v[{P+4}:{P+5}]")
        a(f"v_pk_add_f32 v[{P+2}:{P+3}], v[{P+2}:{P+3}], v[{P+6}:{P+7}]")
    else:
        a("s_waitcnt lgkmcnt(0)")
    a(f"v_pk_add_f32 v[{P}:{P+1}], v[{P}:{P+1}], v[{P+2}:{P+3}]")
    a(f"v_add_f32 v{P}, v{P}, v{P+1}")
    a.c("h = sum / 2^18; silu(h) = h / (1 + 2^(-h*log2 e))")
    c1 = struct.unpack("<I", struct.pack("<f", -1.4426950408889634 / 262144.0))[0]
    a(f"v_mul_f32 v{P+1}, 0x{c1:08x}, v{P}")
    a(f"v_exp_f32 v{P+1}, v{P+1}")
    a(f"v_mul_f32 v{P}, 0x36800000, v{P}")
    a(f"v_add_f32 v{P+1}, 1.0, v{P+1}")
    a(f"v_rcp_f32 v{P+1}, v{P+1}")
    a("s_nop 0")
    a(f"v_mul_f32 v{P}, v{P}, v{P+1}")
    a("s_nop 1")
    Z = vT
    for m in range(6):
        op = "v_mul_f32_dpp" if m < 2 else "v_fmac_f32_dpp"
        z = Z + 2 * (m & 1)
        a(f"{op} v{z}, v{P}, v{vWD+2*m} row_newbcast:{m} row_mask:0xf bank_mask:0xf")
        a(f"{op} v{z+1}, v{P}, v{vWD+2*m+1} row_newbcast:{m} row_mask:0xf bank_mask:0xf")
    a(f"v_pk_add_f32 v[{Z}:{Z+1}], v[{Z}:{Z+1}], v[{Z+2}:{Z+3}]")
    a("s_nop 1")
    a(f"v_permlane32_swap_b32 v{Z}, v{Z+1}")
    a(f"v_add_f32 v{Z}, v{Z}, v{Z+1}")
    a(f"v_mul_f32 v{Z}, 0xbfb8aa3b, v{Z}")
    a(f"v_exp_f32 v{Z}, v{Z}")
    a("s_nop 0")
    a(f"v_add_f32 v{Z}, 1.0, v{Z}")
    a(f"v_rcp_f32 v{Z}, v{Z}")
    a("s_nop 0")
    a(f"v_cvt_pk_bf16_f32 v{Z}, v{Z}, v{Z}")
    a(f"v_lshlrev_b32 v{Z}, 16, v{Z}")
    a(f"ds_write_b32 v{vEW}, v{Z}")
    a(f"ds_read_b128 v[{vAcc}:{vAcc+3}], v{vER}")
    a(f"ds_read_b128 v[{vAcc+4}:{vAcc+7}], v{vER} offset:16")
    a(f"s_mov_b32 s{sT}, s{sBase}")
    if winodd is not None:
        a(f"s_getreg_b32 s{sTmp}, hwreg(HW_REG_XCC_ID)")
        a(f"s_bitcmp1_b32 s{sTmp}, 0")
    a("s_waitcnt lgkmcnt(0)")
    stamp("gates")
    def phase2(win):
        for k in range(NT):
            for h in range(2):
                d0, d1 = D + 4 * k + 2 * h, D + 4 * k + 2 * h + 1
                a(f"v_lshlrev_b32 v{vT}, 16, v{d0}")
                a(f"v_and_b32 v{vT+1}, s{sMask}, v{d0}")
                a(f"v_lshlrev_b32 v{vT+2}, 16, v{d1}")
                a(f"v_and_b32 v{vT+3}, s{sMask}, v{d1}")
                a(f"v_pk_mul_f32 v[{vT}:{vT+1}], v[{vT}:{vT+1}], v[{vAcc+4*h}:{vAcc+4*h+1}]")
                a(f"v_pk_mul_f32 v[{vT+2}:{vT+3}], v[{vT+2}:{vT+3}], v[{vAcc+4*h+2}:{vAcc+4*h+3}]")
                a(f"v_cvt_pk_bf16_f32 v{d0}, v{vT}, v{vT+1}")
                a(f"v_cvt_pk_bf16_f32 v{d1}, v{vT+2}, v{vT+3}")
            if win and k >= win:
                a(f"s_waitcnt vmcnt({win - 1})")
            f = "" if k >= NT - plain_last else stf
            a(f"buffer_store_dwordx4 v[{D+4*k}:{D+4*k+3}], v{vOff}, {srd(sO)}, s{sT} offen{f}")
            if k < NT - 1:
                a(f"s_add_u32 s{sT}, s{sT}, s{dreg[deltas[k]]}")
    if winodd is not None:
        a("s_cbranch_scc1 L_odd")
        phase2(win)
        a("s_branch L_join")
        a.lab("L_odd")
        phase2(winodd)
        a.lab("L_join")
    else:
        phase2(win)
    stamp("stissued")
    if stamps:
        a("s_waitcnt vmcnt(0)")
        stamp("done")
        a("s_waitcnt lgkmcnt(0)")
    if stamps and diag is not None:
        if diag < 0:
            a(f"s_mov_b32 s{sTmp}, 10000")
        else:
            a(f"s_sub_u32 s{sTmp}, s{sSt+2*diag}, s{sSt}")
            a(f"s_mul_i32 s{sTmp}, s{sTmp}, {50 if diagw is not None else 10}")
        a(f"s_min_u32 s{sTmp}, s{sTmp}, 200000")
        if diagw is not None:
            a(f"s_cmp_eq_u32 s{sW}, {diagw}")
            a(f"s_cselect_b32 s{sTmp}, s{sTmp}, 0")
        a.lab("L_diag")
        a(f"s_memrealtime s[{sSt+2}:{sSt+3}]")
        a("s_waitcnt lgkmcnt(0)")
        a(f"s_sub_u32 s{sSt+2}, s{sSt+2}, s{sSt}")
        a(f"s_cmp_lt_u32 s{sSt+2}, s{sTmp}")
        a("s_cbranch_scc1 L_diag")
    elif stamps:
        a(f"v_mov_b32 v{vT}, 0")
        a(f"v_mov_b32 v{vT+1}, 0")
        for i in range(len(names)):
            a(f"v_writelane_b32 v{vT}, s{sSt+2*i}, {i}")
            a(f"v_writelane_b32 v{vT+1}, s{sSt+2*i+1}, {i}")
        a(f"s_mul_i32 s{sTmp}, s2, 12")
        a(f"s_add_u32 s{sTmp}, s{sTmp}, s{sW}")
        a(f"s_lshl_b32 s{sTmp}, s{sTmp}, 7")
        a(f"s_add_u32 s{sTmp}, s{sTmp}, {STAMP_OFF}")
        a(f"v_lshlrev_b32 v{vX0}, 3, v{vL}")
        a("s_mov_b64 exec, 0xffff")
        a(f"buffer_store_dwordx2 v[{vT}:{vT+1}], v{vX0}, {srd(sWS)}, s{sTmp} offen")
    a.lab("L_end")
    a("s_endpgm")

    out = HEADER
    out += f"; @launch grid=({NWG},1,1) block=(768,1,1) lds=4368\n"
    if stamps: out += "; stamps: " + " ".join(names) + "\n"
    out += """.amdgcn_target "amdgcn-amd-amdhsa--gfx950"
.text
.globl standalone__se_block__vision_kernel
.p2align 8
.type standalone__se_block__vision_kernel,@function
standalone__se_block__vision_kernel:
"""
    out += a.text()
    out += f""".section .rodata,"a"
.p2align 6
.amdhsa_kernel standalone__se_block__vision_kernel
  .amdhsa_next_free_vgpr 168
  .amdhsa_next_free_sgpr {96 if stamps else 64}
  .amdhsa_accum_offset 168
  .amdhsa_group_segment_fixed_size 0
  .amdhsa_kernarg_size 48
  .amdhsa_user_sgpr_count 2
  .amdhsa_user_sgpr_kernarg_segment_ptr 1
  .amdhsa_system_sgpr_workgroup_id_x 1
  .amdhsa_float_denorm_mode_32 3
.end_amdhsa_kernel
"""
    return out

if __name__ == "__main__":
    from build import build
    name = sys.argv[1]
    kw = {}
    for x in sys.argv[2:]:
        k, v = x.split("=")
        try: v = int(v)
        except ValueError: pass
        kw[k] = v
    open(name, "w").write(gen(**kw))
    print(build(name))
```

```python
import sys, argparse, struct
from gen import A, HEADER, NB, NWG, STAMP_OFF

NT = 32
K = 1024
M = 1 << 20

def gen(pat="g1", ld="nt", st="sc1", stamps=False, wpos=8, spin=1 << 20, dry=0, sleep=0, thr=0,
        diag=None, diagw=None, win=0, winodd=None, plain_last=0, rdwin=0, mask=True, abl="", barpos=2, slot=128, npw=8, lgw=None, lgn=0):
    a = A()
    D = 40
    sX, sO, sWS, sDB, sWD, sWU = 16, 20, 24, 28, 32, 36
    sW, sWp, sWq, sT, sBase, sMask, sSpin, sStr, sStr2, sTmp, sTmp2 = 40, 41, 42, 43, 44, 45, 46, 47, 48, 49, 54
    sFull, sLead, sMiss = 50, 52, 56
    sSt = 60
    vL, vOff, vPW, vPR, vPub, vChk, vTk, vSl = 1, 2, 3, 4, 5, 6, 7, 0
    vAcc, vT, vWD, vWU, vX0, vX1 = 8, 16, 20, 32, 38, 39
    def srd(s): return f"s[{s}:{s+3}]"
    def p64(s): return f"s[{s}:{s+1}]"
    names = []
    def stamp(n):
        if stamps:
            i = len(names)
            a(f"s_memrealtime s[{sSt+2*i}:{sSt+2*i+1}]")
            names.append(n)
    ldf = (" " + ld) if ld else ""
    stf = (" " + st) if st else ""
    pA, B, GK, S, T = {
        "g1": (12 * K, 3 * K, 1, 3 * M, 0),
        "q": (3 * K, 24 * M, 1, 768 * K, 0),
        "g2": (24 * K, 3 * K, 2, 6 * M, 12 * K),
        "k2": (24 * K, 6 * K, 2, 6 * M, 3 * K),
        "k4": (48 * K, 12 * K, 4, 12 * M, 3 * K),
        "qk2": (6 * K, 24 * M, 2, 1536 * K, 3 * K),
        "qk4": (12 * K, 24 * M, 4, 3 * M, 3 * K),
        "qk8": (24 * K, 24 * M, 8, 6 * M, 3 * K),
        "k8": (96 * K, 24 * K, 8, 24 * M, 3 * K),
        "g4": (48 * K, 3 * K, 4, 12 * M, 12 * K),
        "g8": (96 * K, 3 * K, 8, 24 * M, 12 * K),
        "cu": (384 * K, 3 * K, 1, 12 * K, 0),
    }[pat]
    offs = [(k // GK) * S + (k % GK) * T for k in range(NT)]
    cov = set()
    for p in range(NWG):
        for wq in range(4):
            for k in range(NT):
                cov.add(p * pA + wq * B + offs[k])
    assert len(cov) == NB // 3072 and min(cov) == 0 and max(cov) == NB - 3072 and all(c % 3072 == 0 for c in cov)
    deltas = [offs[k + 1] - offs[k] for k in range(NT - 1)]
    dv = sorted(set(deltas))
    assert len(dv) <= 2
    dreg = {d: sStr + i for i, d in enumerate(dv)}

    a(f"s_cmp_ge_u32 s2, {NWG}")
    a("s_cbranch_scc1 L_end")
    a("s_load_dwordx4 s[4:7], s[0:1], 0")
    a("s_load_dwordx4 s[8:11], s[0:1], 16")
    a("s_load_dwordx4 s[12:15], s[0:1], 32")
    stamp("entry")
    a(f"v_lshrrev_b32 v{vX0}, 6, v0")
    a(f"v_and_b32 v{vL}, 63, v0")
    a(f"v_readfirstlane_b32 s{sW}, v{vX0}")
    a(f"v_lshrrev_b32 v{vX0}, 3, v{vL}")
    a(f"v_and_b32 v{vX1}, 7, v{vL}")
    a(f"v_mul_u32_u24 v{vOff}, 384, v{vX0}")
    a(f"v_lshl_add_u32 v{vOff}, v{vX1}, 4, v{vOff}")
    a(f"s_mul_i32 s{sWq}, s{sW}, 43")
    a(f"s_lshr_b32 s{sWq}, s{sWq}, 7")
    a(f"s_mul_i32 s{sTmp}, s{sWq}, 3")
    a(f"s_sub_u32 s{sWp}, s{sW}, s{sTmp}")
    a(f"s_mul_i32 s{sBase}, s2, {pA}")
    a(f"s_mul_i32 s{sTmp}, s{sWq}, {B}")
    a(f"s_add_u32 s{sBase}, s{sBase}, s{sTmp}")
    a(f"s_lshl_b32 s{sTmp}, s{sWp}, 7")
    a(f"s_add_u32 s{sBase}, s{sBase}, s{sTmp}")
    a(f"s_mov_b32 s{sT}, s{sBase}")
    for d, r in dreg.items():
        a(f"s_mov_b32 s{r}, {d}")
    a(f"s_mov_b32 s{sX+2}, {NB}")
    a(f"s_mov_b32 s{sX+3}, 0x00020000")
    a(f"s_mov_b32 s{sWS+2}, {(2 << 20) if stamps else 256 * slot}")
    a(f"s_mov_b32 s{sWS+3}, 0x00020000")
    a.c("publish address: lanes 0..15 -> this workgroup's slot, word l; other lanes out of range")
    LS = slot.bit_length() - 1
    a(f"s_lshl_b32 s{sTmp}, s2, {LS}")
    a(f"v_lshl_add_u32 v{vPub}, v{vL}, 2, s{sTmp}")
    a(f"v_cmp_gt_u32 vcc, 16, v{vL}")
    a(f"v_mov_b32 v{vX1}, 0x40000000")
    a(f"v_lshrrev_b32 v{vX0}, 2, v{vL}")
    a(f"v_cndmask_b32 v{vPub}, v{vX1}, v{vPub}, vcc")
    a(f"v_and_b32 v{vX1}, 3, v{vL}")
    a(f"v_lshlrev_b32 v{vX0}, {LS}, v{vX0}")
    a(f"v_lshl_add_u32 v{vSl}, v{vX1}, 4, v{vX0}")
    a(f"s_mov_b32 s{sDB+2}, 256")
    a(f"s_mov_b32 s{sDB+3}, 0x00020000")
    a(f"s_or_b32 s{sTmp}, s{sW}, s2")
    a(f"v_mov_b32 v{vTk}, 0")
    a("s_waitcnt lgkmcnt(0)")
    a(f"ds_write_b32 v{vTk}, v{vTk} offset:4352")
    stamp("karg")
    a(f"s_mov_b32 s{sX}, s4")
    a(f"s_mov_b32 s{sX+1}, s5")
    a(f"s_mov_b32 s{sWS}, s14")
    a(f"s_mov_b32 s{sWS+1}, s15")
    a(f"s_mov_b32 s{sDB}, s12")
    a(f"s_mov_b32 s{sDB+1}, s13")
    a.c("workgroup 0, wave 0: set every slot to the 'empty' marker, then raise the flag in d_debug[0]")
    a("s_cbranch_scc1 L_noclear")
    for i in range(4):
        a(f"v_mov_b32 v{vT+i}, -1")
    for i in range(16):
        a(f"s_mov_b32 s{sTmp}, {16*slot*i}")
        a(f"buffer_store_dwordx4 v[{vT}:{vT+3}], v{vSl}, {srd(sWS)}, s{sTmp} offen sc1")
    a.lab("L_noclear")

    order = []
    def load(k):
        a(f"buffer_load_dwordx4 v[{D+4*k}:{D+4*k+3}], v{vOff}, {srd(sX)}, s{sT} offen{ldf}")
        if k < NT - 1:
            a(f"s_add_u32 s{sT}, s{sT}, s{dreg[deltas[k]]}")
        order.append(k)
        if k == NT - 1:
            a.c("wave 0: read the reset flag (returns behind the data)")
            a(f"s_cmp_lg_u32 s{sW}, 0")
            a("s_cbranch_scc1 L_noflag")
            a(f"buffer_load_dword v{vChk}, v{vTk}, {srd(sDB)}, 0 offen sc1")
            a.lab("L_noflag")
    def weights():
        if 'w' in abl:
            for (s, p, n) in ((sWD, 6, 4608), (sWU, 8, 4608), (sO, 10, NB)):
                a(f"s_mov_b32 s{s}, s{p}")
                a(f"s_mov_b32 s{s+1}, s{p+1}")
                a(f"s_mov_b32 s{s+2}, {n}")
                a(f"s_mov_b32 s{s+3}, 0x00020000")
            return
        a.c("weights: w_down row of channel c(l) = 64*wp + 8*(l&7) + (l>>3); w_up dwords")
        for (s, p, n) in ((sWD, 6, 4608), (sWU, 8, 4608), (sO, 10, NB)):
            a(f"s_mov_b32 s{s}, s{p}")
            a(f"s_mov_b32 s{s+1}, s{p+1}")
            a(f"s_mov_b32 s{s+2}, {n}")
            a(f"s_mov_b32 s{s+3}, 0x00020000")
        a(f"v_lshrrev_b32 v{vX0}, 3, v{vL}")
        a(f"v_and_b32 v{vX1}, 7, v{vL}")
        a(f"v_lshl_add_u32 v{vX0}, v{vX1}, 3, v{vX0}")
        a(f"v_mul_u32_u24 v{vX0}, 24, v{vX0}")
        a(f"s_mul_i32 s{sTmp}, s{sWp}, 1536")
        a(f"buffer_load_dwordx4 v[{vWD+6}:{vWD+9}], v{vX0}, {srd(sWD)}, s{sTmp} offen")
        a(f"buffer_load_dwordx2 v[{vWD+10}:{vWD+11}], v{vX0}, {srd(sWD)}, s{sTmp} offen offset:16")
        a(f"v_lshrrev_b32 v{vX0}, 5, v{vL}")
        a(f"v_and_b32 v{vX1}, 31, v{vL}")
        a(f"v_mul_u32_u24 v{vX0}, 384, v{vX0}")
        a(f"v_lshl_add_u32 v{vX0}, v{vX1}, 2, v{vX0}")
        a(f"s_lshl_b32 s{sTmp}, s{sWp}, 7")
        for m in range(6):
            a(f"buffer_load_dword v{vWU+m}, v{vX0}, {srd(sWU)}, s{sTmp} offen offset:{768*m}")
        order.extend(["w"] * 8)
    RW = rdwin or NT
    assert barpos < RW
    wp_ = min(wpos, RW)
    for k in range(RW):
        if k == barpos:
            a.c("the LDS ticket is zero before any wave can take one")
            a(f"s_or_b32 s{sTmp}, s{sW}, s2")
            a("s_waitcnt lgkmcnt(0)")
            a("s_barrier")
            a("s_cbranch_scc1 L_noflagset")
            a(f"v_lshlrev_b32 v{vX0}, 8, v{vL}")
            a(f"v_mov_b32 v{vX1}, 1")
            a("s_waitcnt vmcnt(0)")
            a(f"buffer_store_dword v{vX1}, v{vX0}, {srd(sDB)}, 0 offen sc1")
            a.lab("L_noflagset")
        if k == wp_: weights()
        load(k)
    if wp_ == RW: weights()
    stamp("issued")
    a.c("LDS: P[12][16] partial table at 0, ticket at 4352; G at 768; gates at 1280")
    a(f"s_mov_b32 s{sMask}, 0xffff0000")
    a(f"s_mov_b32 s{sSpin}, {spin}")
    a(f"v_lshrrev_b32 v{vX0}, 4, v{vL}")
    a(f"s_lshl_b32 s{sTmp}, s{sW}, 6")
    a(f"v_lshl_add_u32 v{vPW}, v{vX0}, 4, s{sTmp}")
    a(f"v_and_b32 v{vX1}, 15, v{vL}")
    a(f"v_lshlrev_b32 v{vX1}, 2, v{vX1}")
    a(f"v_lshl_add_u32 v{vPR}, v{vX0}, 6, v{vX1}")
    a(f"s_mov_b64 {p64(sFull)}, -1")
    a(f"s_mov_b32 s{sLead}, 0x00010001")
    a(f"s_mov_b32 s{sLead+1}, 0x00010001")

    def acc_tile(k):
        for h in range(2):
            d0, d1 = D + 4 * k + 2 * h, D + 4 * k + 2 * h + 1
            if k == 0:
                a(f"v_lshlrev_b32 v{vAcc+4*h}, 16, v{d0}")
                a(f"v_and_b32 v{vAcc+4*h+1}, s{sMask}, v{d0}")
                a(f"v_lshlrev_b32 v{vAcc+4*h+2}, 16, v{d1}")
                a(f"v_and_b32 v{vAcc+4*h+3}, s{sMask}, v{d1}")
            else:
                a(f"v_lshlrev_b32 v{vT}, 16, v{d0}")
                a(f"v_and_b32 v{vT+1}, s{sMask}, v{d0}")
                a(f"v_lshlrev_b32 v{vT+2}, 16, v{d1}")
                a(f"v_and_b32 v{vT+3}, s{sMask}, v{d1}")
                a(f"v_pk_add_f32 v[{vAcc+4*h}:{vAcc+4*h+1}], v[{vAcc+4*h}:{vAcc+4*h+1}], v[{vT}:{vT+1}]")
                a(f"v_pk_add_f32 v[{vAcc+4*h+2}:{vAcc+4*h+3}], v[{vAcc+4*h+2}:{vAcc+4*h+3}], v[{vT+2}:{vT+3}]")

    unpacked = False
    for k in range(NT):
        pos = order.index(k)
        n_after = len(order) - 1 - pos
        a(f"s_waitcnt vmcnt({n_after})")
        if k == 0:
            stamp("tile0")
        if k + RW < NT:
            load(k + RW)
        wdone = all(order.index(k) > i for i, t in enumerate(order) if t == "w")
        if wdone and not unpacked:
            a.c("unpack w_down row to f32")
            for i in range(6):
                a(f"v_lshlrev_b32 v{vWD+2*i}, 16, v{vWD+6+i}")
                a(f"v_and_b32 v{vWD+2*i+1}, s{sMask}, v{vWD+6+i}")
            unpacked = True
        acc_tile(k)
    assert unpacked
    stamp("loaded")
    a.c("wave 0: the slots must have been reset before this workgroup publishes or trusts a slot")
    a(f"s_cmp_lg_u32 s{sW}, 0")
    a("s_cbranch_scc1 L_chk_ok")
    a.lab("L_chk")
    a(f"v_cmp_eq_u32 vcc, 0, v{vChk}")
    a("s_cbranch_vccz L_chk_ok")
    a("s_sleep 4")
    a(f"buffer_load_dword v{vChk}, v{vTk}, {srd(sDB)}, 0 offen sc1")
    a("s_waitcnt vmcnt(0)")
    a(f"s_sub_u32 s{sSpin}, s{sSpin}, 1")
    a("s_cbranch_scc0 L_chk")
    a.lab("L_chk_ok")

    A_ = vAcc
    a.c("butterfly 1: 8 accumulators x 8 lane rows -> one channel sum per lane")
    a("s_nop 1")
    for i in range(4):
        a(f"v_permlane32_swap_b32 v{A_+i}, v{A_+i+4}")
    for i in range(4):
        a(f"v_add_f32 v{A_+i}, v{A_+i}, v{A_+i+4}")
    a("s_nop 0")
    for i in range(2):
        a(f"v_permlane16_swap_b32 v{A_+i}, v{A_+i+2}")
    for i in range(2):
        a(f"v_add_f32 v{A_+i}, v{A_+i}, v{A_+i+2}")
    a("s_nop 1")
    a(f"v_add_f32_dpp v{A_+2}, v{A_}, v{A_} row_ror:8 row_mask:0xf bank_mask:0x3")
    a("s_nop 1")
    a(f"v_add_f32_dpp v{A_+2}, v{A_+1}, v{A_+1} row_ror:8 row_mask:0xf bank_mask:0xc")
    a.c("products with the w_down row, butterfly 2")
    for j in range(12):
        a(f"v_mul_f32 v{vWD+j}, v{A_+2}, v{vWD+j}")
    for i in range(6):
        a(f"v_permlane32_swap_b32 v{vWD+i}, v{vWD+i+6}")
    for i in range(6):
        a(f"v_add_f32 v{vWD+i}, v{vWD+i}, v{vWD+i+6}")
    a("s_nop 0")
    for i in range(3):
        a(f"v_permlane16_swap_b32 v{vWD+i}, v{vWD+i+3}")
    for i in range(3):
        a(f"v_add_f32 v{vWD+i}, v{vWD+i}, v{vWD+i+3}")
    a(f"v_mov_b32 v{vX1}, 1")
    a("s_nop 0")
    for sh in (8, 4, 2, 1):
        for i in range(3):
            a(f"v_add_f32_dpp v{vWD+i}, v{vWD+i}, v{vWD+i} row_ror:{sh} row_mask:0xf bank_mask:0xf")
    a.c("partials -> LDS, take a ticket, read all partials back (valid for the wave whose ticket is last)")
    a(f"s_mov_b64 exec, {p64(sLead)}")
    a(f"ds_write_b128 v{vPW}, v[{vWD}:{vWD+3}]")
    a("s_mov_b64 exec, 1")
    a(f"ds_add_rtn_u32 v{vX0}, v{vTk}, v{vX1} offset:4352")
    a(f"s_mov_b64 exec, {p64(sFull)}")
    a(f"ds_read_b32 v{vT}, v{vPR}")
    a(f"ds_read_b32 v{vT+1}, v{vPR} offset:256")
    a(f"ds_read_b32 v{vT+2}, v{vPR} offset:512")
    a("s_waitcnt lgkmcnt(0)")
    a(f"v_readfirstlane_b32 s{sTmp}, v{vX0}")
    a(f"v_add_f32 v{vT}, v{vT}, v{vT+1}")
    a(f"v_add_f32 v{vT}, v{vT}, v{vT+2}")
    a(f"v_mov_b32 v{vT+1}, v{vT}")
    a(f"s_cmp_lg_u32 s{sTmp}, 11")
    a("s_cbranch_scc1 L_nopub")
    a(f"v_permlane32_swap_b32 v{vT}, v{vT+1}")
    a(f"v_add_f32 v{vT}, v{vT}, v{vT+1}")
    a(f"v_mov_b32 v{vT+1}, v{vT}")
    a("s_nop 1")
    a(f"v_permlane16_swap_b32 v{vT}, v{vT+1}")
    a(f"v_add_f32 v{vT}, v{vT}, v{vT+1}")
    a(f"v_min_u32 v{vT}, -2, v{vT}")
    a(f"buffer_store_dword v{vT}, v{vPub}, {srd(sWS)}, 0 offen sc1")
    a.lab("L_nopub")
    stamp("pub")
    vGW, vGR, vEW, vER = vPR, vPub, vTk, vChk
    P = vAcc
    NL = 16 // npw
    a.c("shadow work: addresses, unpack w_up")
    a(f"s_mul_i32 s{sT}, s{sW}, {NL*16*slot}")
    for u in range(1, NL):
        a(f"s_add_u32 s{sMiss+u-1}, s{sT}, {u*16*slot}")
    a.c("G[12][npw] at 768: lane (row i, quad r) holds j = 3r + i")
    a(f"v_lshrrev_b32 v{vX0}, 4, v{vL}")
    a(f"v_and_b32 v{vX1}, 3, v{vL}")
    a(f"v_mad_u32_u24 v{vX0}, v{vX1}, 3, v{vX0}")
    a(f"s_lshl_b32 s{sTmp}, s{sW}, 2")
    a(f"s_add_u32 s{sTmp}, s{sTmp}, 768")
    a(f"v_lshl_add_u32 v{vGW}, v{vX0}, {(4*npw).bit_length()-1}, s{sTmp}")
    a(f"v_and_b32 v{vX0}, 15, v{vL}")
    a(f"v_min_u32 v{vX0}, 5, v{vX0}")
    a(f"v_lshrrev_b32 v{vX1}, 5, v{vL}")
    a(f"v_lshl_add_u32 v{vX0}, v{vX0}, 1, v{vX1}")
    a(f"v_lshlrev_b32 v{vGR}, {(4*npw).bit_length()-1}, v{vX0}")
    a(f"v_and_b32 v{vX0}, 31, v{vL}")
    a(f"v_lshl_add_u32 v{vX0}, v{vX0}, 1, v{vX1}")
    a(f"s_lshl_b32 s{sTmp}, s{sW}, 8")
    a(f"s_add_u32 s{sTmp}, s{sTmp}, 1280")
    a(f"v_lshl_add_u32 v{vEW}, v{vX0}, 2, s{sTmp}")
    a(f"v_and_b32 v{vX0}, 7, v{vL}")
    a(f"v_lshl_add_u32 v{vER}, v{vX0}, 5, s{sTmp}")
    for m in range(6):
        a(f"v_lshlrev_b32 v{vWD+2*m}, 16, v{vWU+m}")
        a(f"v_and_b32 v{vWD+2*m+1}, s{sMask}, v{vWU+m}")
    a(f"s_mov_b32 s{sLead}, 0x000f000f")
    a(f"s_mov_b32 s{sLead+1}, 0x0000000f")
    a(f"s_cmp_ge_u32 s{sW}, {npw}")
    a("s_barrier")
    stamp("bar1")
    a("s_cbranch_scc1 L_nopoll")
    Q = [P, P + 4, vWU, vWU + 4] if NL == 4 else [P, P + 4]
    if NL == 4: Q = [P, P + 4, vWU, vX0 - 2]
    a.lab("L_poll")
    for u in range(NL):
        so = sT if u == 0 else sMiss + u - 1
        a(f"buffer_load_dwordx3 v[{Q[u]}:{Q[u]+2}], v{vSl}, {srd(sWS)}, s{so} offen sc1")
    a("s_waitcnt vmcnt(0)")
    a(f"v_max3_u32 v{vT}, v{Q[0]}, v{Q[0]+1}, v{Q[0]+2}")
    for u in range(1, NL):
        a(f"v_max3_u32 v{vT+u}, v{Q[u]}, v{Q[u]+1}, v{Q[u]+2}")
    if NL == 2:
        a(f"v_max_u32 v{vT}, v{vT}, v{vT+1}")
    elif NL == 4:
        a(f"v_max3_u32 v{vT}, v{vT}, v{vT+1}, v{vT+2}")
        a(f"v_max_u32 v{vT}, v{vT}, v{vT+3}")
    a(f"v_cmp_eq_u32 vcc, -1, v{vT}")
    a("s_and_b64 exec, vcc, vcc")
    a("s_cbranch_scc0 L_got")
    if sleep and thr:
        a(f"s_bcnt1_i32_b64 s{sTmp}, vcc")
        a(f"s_cmp_lt_u32 s{sTmp}, {thr}")
        a("s_cbranch_scc1 L_nosleep")
        a(f"s_sleep {sleep}")
        a.lab("L_nosleep")
    elif sleep:
        a(f"s_sleep {sleep}")
    a(f"s_sub_u32 s{sSpin}, s{sSpin}, 1")
    a("s_cbranch_scc0 L_poll")
    a.lab("L_got")
    a(f"s_mov_b64 exec, {p64(sFull)}")
    if NL == 4:
        a(f"v_pk_add_f32 v[{Q[0]}:{Q[0]+1}], v[{Q[0]}:{Q[0]+1}], v[{Q[2]}:{Q[2]+1}]")
        a(f"v_pk_add_f32 v[{Q[1]}:{Q[1]+1}], v[{Q[1]}:{Q[1]+1}], v[{Q[3]}:{Q[3]+1}]")
        a(f"v_add_f32 v{Q[0]+2}, v{Q[0]+2}, v{Q[2]+2}")
        a(f"v_add_f32 v{Q[1]+2}, v{Q[1]+2}, v{Q[3]+2}")
    a(f"v_pk_add_f32 v[{P}:{P+1}], v[{P}:{P+1}], v[{P+4}:{P+5}]")
    a(f"v_add_f32 v{P+2}, v{P+2}, v{P+6}")
    a("s_nop 1")
    a(f"v_permlane32_swap_b32 v{P}, v{P+2}")
    a(f"v_permlane32_swap_b32 v{P+1}, v{P+3}")
    a(f"v_add_f32 v{P}, v{P}, v{P+2}")
    a(f"v_add_f32 v{P+1}, v{P+1}, v{P+3}")
    a("s_nop 1")
    a(f"v_permlane16_swap_b32 v{P}, v{P+1}")
    a(f"v_add_f32 v{P}, v{P}, v{P+1}")
    for sh in (8, 4):
        a("s_nop 1")
        a(f"v_add_f32_dpp v{P}, v{P}, v{P} row_ror:{sh} row_mask:0xf bank_mask:0xf")
    a(f"s_mov_b64 exec, {p64(sLead)}")
    a(f"ds_write_b32 v{vGW}, v{P}")
    a(f"s_mov_b64 exec, {p64(sFull)}")
    a("s_waitcnt lgkmcnt(0)")
    a.lab("L_nopoll")
    stamp("got")
    a("s_barrier")
    stamp("bar2")
    a(f"ds_read_b128 v[{P}:{P+3}], v{vGR} offset:768")
    if npw == 8:
        a(f"ds_read_b128 v[{P+4}:{P+7}], v{vGR} offset:784")
        a("s_waitcnt lgkmcnt(0)")
        a(f"v_pk_add_f32 v[{P}:{P+1}], v[{P}:{P+1}], v[{P+4}:{P+5}]")
        a(f"v_pk_add_f32 v[{P+2}:{P+3}], v[{P+2}:{P+3}], v[{P+6}:{P+7}]")
    else:
        a("s_waitcnt lgkmcnt(0)")
    a(f"v_pk_add_f32 v[{P}:{P+1}], v[{P}:{P+1}], v[{P+2}:{P+3}]")
    a(f"v_add_f32 v{P}, v{P}, v{P+1}")
    a.c("h = sum / 2^18; silu(h) = h / (1 + 2^(-h*log2 e))")
    c1 = struct.unpack("<I", struct.pack("<f", -1.4426950408889634 / 262144.0))[0]
    a(f"v_mul_f32 v{P+1}, 0x{c1:08x}, v{P}")
    a(f"v_exp_f32 v{P+1}, v{P+1}")
    a(f"v_mul_f32 v{P}, 0x36800000, v{P}")
    a(f"v_add_f32 v{P+1}, 1.0, v{P+1}")
    a(f"v_rcp_f32 v{P+1}, v{P+1}")
    a("s_nop 0")
    a(f"v_mul_f32 v{P}, v{P}, v{P+1}")
    a("s_nop 1")
    Z = vT
    for m in range(6):
        op = "v_mul_f32_dpp" if m < 2 else "v_fmac_f32_dpp"
        z = Z + 2 * (m & 1)
        a(f"{op} v{z}, v{P}, v{vWD+2*m} row_newbcast:{m} row_mask:0xf bank_mask:0xf")
        a(f"{op} v{z+1}, v{P}, v{vWD+2*m+1} row_newbcast:{m} row_mask:0xf bank_mask:0xf")
    a(f"v_pk_add_f32 v[{Z}:{Z+1}], v[{Z}:{Z+1}], v[{Z+2}:{Z+3}]")
    a("s_nop 1")
    a(f"v_permlane32_swap_b32 v{Z}, v{Z+1}")
    a(f"v_add_f32 v{Z}, v{Z}, v{Z+1}")
    a(f"v_mul_f32 v{Z}, 0xbfb8aa3b, v{Z}")
    a(f"v_exp_f32 v{Z}, v{Z}")
    a("s_nop 0")
    a(f"v_add_f32 v{Z}, 1.0, v{Z}")
    a(f"v_rcp_f32 v{Z}, v{Z}")
    a("s_nop 0")
    a(f"v_cvt_pk_bf16_f32 v{Z}, v{Z}, v{Z}")
    a(f"v_lshlrev_b32 v{Z}, 16, v{Z}")
    a(f"ds_write_b32 v{vEW}, v{Z}")
    a(f"ds_read_b128 v[{vAcc}:{vAcc+3}], v{vER}")
    a(f"ds_read_b128 v[{vAcc+4}:{vAcc+7}], v{vER} offset:16")
    a(f"s_mov_b32 s{sT}, s{sBase}")
    if winodd is not None:
        a(f"s_getreg_b32 s{sTmp}, hwreg(HW_REG_XCC_ID)")
        a(f"s_bitcmp1_b32 s{sTmp}, 0")
    a("s_waitcnt lgkmcnt(0)")
    stamp("gates")
    def phase2(win, plain_last=plain_last):
        for k in range(NT):
            for h in range(2):
                d0, d1 = D + 4 * k + 2 * h, D + 4 * k + 2 * h + 1
                a(f"v_lshlrev_b32 v{vT}, 16, v{d0}")
                a(f"v_and_b32 v{vT+1}, s{sMask}, v{d0}")
                a(f"v_lshlrev_b32 v{vT+2}, 16, v{d1}")
                a(f"v_and_b32 v{vT+3}, s{sMask}, v{d1}")
                a(f"v_pk_mul_f32 v[{vT}:{vT+1}], v[{vT}:{vT+1}], v[{vAcc+4*h}:{vAcc+4*h+1}]")
                a(f"v_pk_mul_f32 v[{vT+2}:{vT+3}], v[{vT+2}:{vT+3}], v[{vAcc+4*h+2}:{vAcc+4*h+3}]")
                a(f"v_cvt_pk_bf16_f32 v{d0}, v{vT}, v{vT+1}")
                a(f"v_cvt_pk_bf16_f32 v{d1}, v{vT+2}, v{vT+3}")
            if win and k >= win:
                a(f"s_waitcnt vmcnt({win - 1})")
            f = "" if k >= NT - plain_last else stf
            a(f"buffer_store_dwordx4 v[{D+4*k}:{D+4*k+3}], v{vOff}, {srd(sO)}, s{sT} offen{f}")
            if k < NT - 1:
                a(f"s_add_u32 s{sT}, s{sT}, s{dreg[deltas[k]]}")
    if winodd is not None:
        a("s_cbranch_scc1 L_odd")
        phase2(win)
        a("s_branch L_join")
        a.lab("L_odd")
        phase2(winodd)
        a.lab("L_join")
    elif lgw is not None:
        a(f"s_cmp_ge_u32 s{sW}, {lgw}")
        a("s_cbranch_scc1 L_odd")
        phase2(win)
        a("s_branch L_join")
        a.lab("L_odd")
        phase2(win, lgn)
        a.lab("L_join")
    else:
        phase2(win)
    stamp("stissued")
    if stamps:
        a("s_waitcnt vmcnt(0)")
        stamp("done")
        a("s_waitcnt lgkmcnt(0)")
    if stamps and diag is not None:
        if diag < 0:
            a(f"s_mov_b32 s{sTmp}, 10000")
        else:
            a(f"s_sub_u32 s{sTmp}, s{sSt+2*diag}, s{sSt}")
            a(f"s_mul_i32 s{sTmp}, s{sTmp}, {50 if diagw is not None else 10}")
        a(f"s_min_u32 s{sTmp}, s{sTmp}, 200000")
        if diagw is not None:
            a(f"s_cmp_eq_u32 s{sW}, {diagw}")
            a(f"s_cselect_b32 s{sTmp}, s{sTmp}, 0")
        a.lab("L_diag")
        a(f"s_memrealtime s[{sSt+2}:{sSt+3}]")
        a("s_waitcnt lgkmcnt(0)")
        a(f"s_sub_u32 s{sSt+2}, s{sSt+2}, s{sSt}")
        a(f"s_cmp_lt_u32 s{sSt+2}, s{sTmp}")
        a("s_cbranch_scc1 L_diag")
    elif stamps:
        a(f"v_mov_b32 v{vT}, 0")
        a(f"v_mov_b32 v{vT+1}, 0")
        for i in range(len(names)):
            a(f"v_writelane_b32 v{vT}, s{sSt+2*i}, {i}")
            a(f"v_writelane_b32 v{vT+1}, s{sSt+2*i+1}, {i}")
        a(f"s_mul_i32 s{sTmp}, s2, 12")
        a(f"s_add_u32 s{sTmp}, s{sTmp}, s{sW}")
        a(f"s_lshl_b32 s{sTmp}, s{sTmp}, 7")
        a(f"s_add_u32 s{sTmp}, s{sTmp}, {STAMP_OFF}")
        a(f"v_lshlrev_b32 v{vX0}, 3, v{vL}")
        a("s_mov_b64 exec, 0xffff")
        a(f"buffer_store_dwordx2 v[{vT}:{vT+1}], v{vX0}, {srd(sWS)}, s{sTmp} offen")
    a.lab("L_end")
    a("s_endpgm")

    out = HEADER
    out += f"; @launch grid=({NWG},1,1) block=(768,1,1) lds=4368\n"
    if stamps: out += "; stamps: " + " ".join(names) + "\n"
    out += """.amdgcn_target "amdgcn-amd-amdhsa--gfx950"
.text
.globl standalone__se_block__vision_kernel
.p2align 8
.type standalone__se_block__vision_kernel,@function
standalone__se_block__vision_kernel:
"""
    out += a.text()
    out += f""".section .rodata,"a"
.p2align 6
.amdhsa_kernel standalone__se_block__vision_kernel
  .amdhsa_next_free_vgpr 168
  .amdhsa_next_free_sgpr {96 if stamps else 64}
  .amdhsa_accum_offset 168
  .amdhsa_group_segment_fixed_size 0
  .amdhsa_kernarg_size 48
  .amdhsa_user_sgpr_count 2
  .amdhsa_user_sgpr_kernarg_segment_ptr 1
  .amdhsa_system_sgpr_workgroup_id_x 1
  .amdhsa_float_denorm_mode_32 3
.end_amdhsa_kernel
"""
    return out

if __name__ == "__main__":
    from build import build
    name = sys.argv[1]
    kw = {}
    for x in sys.argv[2:]:
        k, v = x.split("=")
        try: v = int(v)
        except ValueError: pass
        kw[k] = v
    open(name, "w").write(gen(**kw))
    print(build(name))
```

```python
import sys, argparse, struct
from gen import A, HEADER, NB, NWG, STAMP_OFF

NT = 32
K = 1024
M = 1 << 20

def gen(pat="g1", ld="nt", st="sc1", stamps=False, wpos=8, spin=1 << 20, dry=0, sleep=0, thr=0,
        diag=None, diagw=None, win=0, winodd=None, plain_last=0, rdwin=0, mask=True, abl="", barpos=2, slot=128, npw=8, lgw=None, lgn=0, plmod=0, plpos=0):
    a = A()
    D = 40
    sX, sO, sWS, sDB, sWD, sWU = 16, 20, 24, 28, 32, 36
    sW, sWp, sWq, sT, sBase, sMask, sSpin, sStr, sStr2, sTmp, sTmp2 = 40, 41, 42, 43, 44, 45, 46, 47, 48, 49, 54
    sFull, sLead, sMiss, sTk, sPo = 50, 52, 56, 59, 55
    sSt = 60
    vL, vOff, vPW, vPR, vPub, vChk, vTk, vSl = 1, 2, 3, 4, 5, 6, 7, 0
    vAcc, vT, vWD, vWU, vX0, vX1 = 8, 16, 20, 32, 38, 39
    def srd(s): return f"s[{s}:{s+3}]"
    def p64(s): return f"s[{s}:{s+1}]"
    names = []
    def stamp(n):
        if stamps:
            i = len(names)
            a(f"s_memrealtime s[{sSt+2*i}:{sSt+2*i+1}]")
            names.append(n)
    ldf = (" " + ld) if ld else ""
    stf = (" " + st) if st else ""
    pA, B, GK, S, T = {
        "g1": (12 * K, 3 * K, 1, 3 * M, 0),
        "q": (3 * K, 24 * M, 1, 768 * K, 0),
        "g2": (24 * K, 3 * K, 2, 6 * M, 12 * K),
        "k2": (24 * K, 6 * K, 2, 6 * M, 3 * K),
        "k4": (48 * K, 12 * K, 4, 12 * M, 3 * K),
        "qk2": (6 * K, 24 * M, 2, 1536 * K, 3 * K),
        "qk4": (12 * K, 24 * M, 4, 3 * M, 3 * K),
        "qk8": (24 * K, 24 * M, 8, 6 * M, 3 * K),
        "k8": (96 * K, 24 * K, 8, 24 * M, 3 * K),
        "g4": (48 * K, 3 * K, 4, 12 * M, 12 * K),
        "g8": (96 * K, 3 * K, 8, 24 * M, 12 * K),
        "cu": (384 * K, 3 * K, 1, 12 * K, 0),
    }[pat]
    offs = [(k // GK) * S + (k % GK) * T for k in range(NT)]
    cov = set()
    for p in range(NWG):
        for wq in range(4):
            for k in range(NT):
                cov.add(p * pA + wq * B + offs[k])
    assert len(cov) == NB // 3072 and min(cov) == 0 and max(cov) == NB - 3072 and all(c % 3072 == 0 for c in cov)
    deltas = [offs[k + 1] - offs[k] for k in range(NT - 1)]
    dv = sorted(set(deltas))
    assert len(dv) <= 2
    dreg = {d: sStr + i for i, d in enumerate(dv)}

    a(f"s_cmp_ge_u32 s2, {NWG}")
    a("s_cbranch_scc1 L_end")
    a("s_load_dwordx4 s[4:7], s[0:1], 0")
    a("s_load_dwordx4 s[8:11], s[0:1], 16")
    a("s_load_dwordx4 s[12:15], s[0:1], 32")
    stamp("entry")
    a(f"v_lshrrev_b32 v{vX0}, 6, v0")
    a(f"v_and_b32 v{vL}, 63, v0")
    a(f"v_readfirstlane_b32 s{sW}, v{vX0}")
    a(f"v_lshrrev_b32 v{vX0}, 3, v{vL}")
    a(f"v_and_b32 v{vX1}, 7, v{vL}")
    a(f"v_mul_u32_u24 v{vOff}, 384, v{vX0}")
    a(f"v_lshl_add_u32 v{vOff}, v{vX1}, 4, v{vOff}")
    a(f"s_mul_i32 s{sWq}, s{sW}, 43")
    a(f"s_lshr_b32 s{sWq}, s{sWq}, 7")
    a(f"s_mul_i32 s{sTmp}, s{sWq}, 3")
    a(f"s_sub_u32 s{sWp}, s{sW}, s{sTmp}")
    a(f"s_mul_i32 s{sBase}, s2, {pA}")
    a(f"s_mul_i32 s{sTmp}, s{sWq}, {B}")
    a(f"s_add_u32 s{sBase}, s{sBase}, s{sTmp}")
    a(f"s_lshl_b32 s{sTmp}, s{sWp}, 7")
    a(f"s_add_u32 s{sBase}, s{sBase}, s{sTmp}")
    a(f"s_mov_b32 s{sT}, s{sBase}")
    for d, r in dreg.items():
        a(f"s_mov_b32 s{r}, {d}")
    a(f"s_mov_b32 s{sX+2}, {NB}")
    a(f"s_mov_b32 s{sX+3}, 0x00020000")
    a(f"s_mov_b32 s{sWS+2}, {(2 << 20) if stamps else 256 * slot}")
    a(f"s_mov_b32 s{sWS+3}, 0x00020000")
    a.c("publish address: lanes 0..15 -> this workgroup's slot, word l; other lanes out of range")
    LS = slot.bit_length() - 1
    a(f"s_lshl_b32 s{sTmp}, s2, {LS}")
    a(f"v_lshl_add_u32 v{vPub}, v{vL}, 2, s{sTmp}")
    a(f"v_cmp_gt_u32 vcc, 16, v{vL}")
    a(f"v_mov_b32 v{vX1}, 0x40000000")
    a(f"v_lshrrev_b32 v{vX0}, 2, v{vL}")
    a(f"v_cndmask_b32 v{vPub}, v{vX1}, v{vPub}, vcc")
    a(f"v_and_b32 v{vX1}, 3, v{vL}")
    a(f"v_lshlrev_b32 v{vX0}, {LS}, v{vX0}")
    a(f"v_lshl_add_u32 v{vSl}, v{vX1}, 4, v{vX0}")
    a(f"s_mov_b32 s{sDB+2}, 256")
    a(f"s_mov_b32 s{sDB+3}, 0x00020000")
    a(f"s_or_b32 s{sTmp}, s{sW}, s2")
    a(f"v_mov_b32 v{vTk}, 0")
    a("s_waitcnt lgkmcnt(0)")
    a(f"ds_write_b32 v{vTk}, v{vTk} offset:4352")
    stamp("karg")
    a(f"s_mov_b32 s{sX}, s4")
    a(f"s_mov_b32 s{sX+1}, s5")
    a(f"s_mov_b32 s{sWS}, s14")
    a(f"s_mov_b32 s{sWS+1}, s15")
    a(f"s_mov_b32 s{sDB}, s12")
    a(f"s_mov_b32 s{sDB+1}, s13")
    a.c("workgroup 0, wave 0: set every slot to the 'empty' marker, then raise the flag in d_debug[0]")
    a("s_cbranch_scc1 L_noclear")
    for i in range(4):
        a(f"v_mov_b32 v{vT+i}, -1")
    for i in range(16):
        a(f"s_mov_b32 s{sTmp}, {16*slot*i}")
        a(f"buffer_store_dwordx4 v[{vT}:{vT+3}], v{vSl}, {srd(sWS)}, s{sTmp} offen sc1")
    a.lab("L_noclear")

    order = []
    def load(k):
        a(f"buffer_load_dwordx4 v[{D+4*k}:{D+4*k+3}], v{vOff}, {srd(sX)}, s{sT} offen{ldf}")
        if k < NT - 1:
            a(f"s_add_u32 s{sT}, s{sT}, s{dreg[deltas[k]]}")
        order.append(k)
        if k == NT - 1:
            a.c("wave 0: read the reset flag (returns behind the data)")
            a(f"s_cmp_lg_u32 s{sW}, 0")
            a("s_cbranch_scc1 L_noflag")
            a(f"buffer_load_dword v{vChk}, v{vTk}, {srd(sDB)}, 0 offen sc1")
            a.lab("L_noflag")
    def weights():
        if 'w' in abl:
            for (s, p, n) in ((sWD, 6, 4608), (sWU, 8, 4608), (sO, 10, NB)):
                a(f"s_mov_b32 s{s}, s{p}")
                a(f"s_mov_b32 s{s+1}, s{p+1}")
                a(f"s_mov_b32 s{s+2}, {n}")
                a(f"s_mov_b32 s{s+3}, 0x00020000")
            return
        a.c("weights: w_down row of channel c(l) = 64*wp + 8*(l&7) + (l>>3); w_up dwords")
        for (s, p, n) in ((sWD, 6, 4608), (sWU, 8, 4608), (sO, 10, NB)):
            a(f"s_mov_b32 s{s}, s{p}")
            a(f"s_mov_b32 s{s+1}, s{p+1}")
            a(f"s_mov_b32 s{s+2}, {n}")
            a(f"s_mov_b32 s{s+3}, 0x00020000")
        a(f"v_lshrrev_b32 v{vX0}, 3, v{vL}")
        a(f"v_and_b32 v{vX1}, 7, v{vL}")
        a(f"v_lshl_add_u32 v{vX0}, v{vX1}, 3, v{vX0}")
        a(f"v_mul_u32_u24 v{vX0}, 24, v{vX0}")
        a(f"s_mul_i32 s{sTmp}, s{sWp}, 1536")
        a(f"buffer_load_dwordx4 v[{vWD+6}:{vWD+9}], v{vX0}, {srd(sWD)}, s{sTmp} offen")
        a(f"buffer_load_dwordx2 v[{vWD+10}:{vWD+11}], v{vX0}, {srd(sWD)}, s{sTmp} offen offset:16")
        a(f"v_lshrrev_b32 v{vX0}, 5, v{vL}")
        a(f"v_and_b32 v{vX1}, 31, v{vL}")
        a(f"v_mul_u32_u24 v{vX0}, 384, v{vX0}")
        a(f"v_lshl_add_u32 v{vX0}, v{vX1}, 2, v{vX0}")
        a(f"s_lshl_b32 s{sTmp}, s{sWp}, 7")
        for m in range(6):
            a(f"buffer_load_dword v{vWU+m}, v{vX0}, {srd(sWU)}, s{sTmp} offen offset:{768*m}")
        order.extend(["w"] * 8)
    RW = rdwin or NT
    assert barpos < RW
    wp_ = min(wpos, RW)
    for k in range(RW):
        if k == barpos:
            a.c("the LDS ticket is zero before any wave can take one")
            a(f"s_or_b32 s{sTmp}, s{sW}, s2")
            a("s_waitcnt lgkmcnt(0)")
            a("s_barrier")
            a("s_cbranch_scc1 L_noflagset")
            a(f"v_lshlrev_b32 v{vX0}, 8, v{vL}")
            a(f"v_mov_b32 v{vX1}, 1")
            a("s_waitcnt vmcnt(0)")
            a(f"buffer_store_dword v{vX1}, v{vX0}, {srd(sDB)}, 0 offen sc1")
            a.lab("L_noflagset")
        if k == wp_: weights()
        load(k)
    if wp_ == RW: weights()
    stamp("issued")
    a.c("LDS: P[12][16] partial table at 0, ticket at 4352; G at 768; gates at 1280")
    a(f"s_mov_b32 s{sMask}, 0xffff0000")
    a(f"s_mov_b32 s{sSpin}, {spin}")
    a(f"v_lshrrev_b32 v{vX0}, 4, v{vL}")
    a(f"s_lshl_b32 s{sTmp}, s{sW}, 6")
    a(f"v_lshl_add_u32 v{vPW}, v{vX0}, 4, s{sTmp}")
    a(f"v_and_b32 v{vX1}, 15, v{vL}")
    a(f"v_lshlrev_b32 v{vX1}, 2, v{vX1}")
    a(f"v_lshl_add_u32 v{vPR}, v{vX0}, 6, v{vX1}")
    a(f"s_mov_b64 {p64(sFull)}, -1")
    a(f"s_mov_b32 s{sLead}, 0x00010001")
    a(f"s_mov_b32 s{sLead+1}, 0x00010001")

    def acc_tile(k):
        for h in range(2):
            d0, d1 = D + 4 * k + 2 * h, D + 4 * k + 2 * h + 1
            if k == 0:
                a(f"v_lshlrev_b32 v{vAcc+4*h}, 16, v{d0}")
                a(f"v_and_b32 v{vAcc+4*h+1}, s{sMask}, v{d0}")
                a(f"v_lshlrev_b32 v{vAcc+4*h+2}, 16, v{d1}")
                a(f"v_and_b32 v{vAcc+4*h+3}, s{sMask}, v{d1}")
            else:
                a(f"v_lshlrev_b32 v{vT}, 16, v{d0}")
                a(f"v_and_b32 v{vT+1}, s{sMask}, v{d0}")
                a(f"v_lshlrev_b32 v{vT+2}, 16, v{d1}")
                a(f"v_and_b32 v{vT+3}, s{sMask}, v{d1}")
                a(f"v_pk_add_f32 v[{vAcc+4*h}:{vAcc+4*h+1}], v[{vAcc+4*h}:{vAcc+4*h+1}], v[{vT}:{vT+1}]")
                a(f"v_pk_add_f32 v[{vAcc+4*h+2}:{vAcc+4*h+3}], v[{vAcc+4*h+2}:{vAcc+4*h+3}], v[{vT+2}:{vT+3}]")

    unpacked = False
    for k in range(NT):
        pos = order.index(k)
        n_after = len(order) - 1 - pos
        a(f"s_waitcnt vmcnt({n_after})")
        if k == 0:
            stamp("tile0")
        if k + RW < NT:
            load(k + RW)
        wdone = all(order.index(k) > i for i, t in enumerate(order) if t == "w")
        if wdone and not unpacked:
            a.c("unpack w_down row to f32")
            for i in range(6):
                a(f"v_lshlrev_b32 v{vWD+2*i}, 16, v{vWD+6+i}")
                a(f"v_and_b32 v{vWD+2*i+1}, s{sMask}, v{vWD+6+i}")
            unpacked = True
        acc_tile(k)
    assert unpacked
    stamp("loaded")
    a.c("wave 0: the slots must have been reset before this workgroup publishes or trusts a slot")
    a(f"s_cmp_lg_u32 s{sW}, 0")
    a("s_cbranch_scc1 L_chk_ok")
    a.lab("L_chk")
    a(f"v_cmp_eq_u32 vcc, 0, v{vChk}")
    a("s_cbranch_vccz L_chk_ok")
    a("s_sleep 4")
    a(f"buffer_load_dword v{vChk}, v{vTk}, {srd(sDB)}, 0 offen sc1")
    a("s_waitcnt vmcnt(0)")
    a(f"s_sub_u32 s{sSpin}, s{sSpin}, 1")
    a("s_cbranch_scc0 L_chk")
    a.lab("L_chk_ok")

    A_ = vAcc
    a.c("butterfly 1: 8 accumulators x 8 lane rows -> one channel sum per lane")
    a("s_nop 1")
    for i in range(4):
        a(f"v_permlane32_swap_b32 v{A_+i}, v{A_+i+4}")
    for i in range(4):
        a(f"v_add_f32 v{A_+i}, v{A_+i}, v{A_+i+4}")
    a("s_nop 0")
    for i in range(2):
        a(f"v_permlane16_swap_b32 v{A_+i}, v{A_+i+2}")
    for i in range(2):
        a(f"v_add_f32 v{A_+i}, v{A_+i}, v{A_+i+2}")
    a("s_nop 1")
    a(f"v_add_f32_dpp v{A_+2}, v{A_}, v{A_} row_ror:8 row_mask:0xf bank_mask:0x3")
    a("s_nop 1")
    a(f"v_add_f32_dpp v{A_+2}, v{A_+1}, v{A_+1} row_ror:8 row_mask:0xf bank_mask:0xc")
    a.c("products with the w_down row, butterfly 2")
    for j in range(12):
        a(f"v_mul_f32 v{vWD+j}, v{A_+2}, v{vWD+j}")
    for i in range(6):
        a(f"v_permlane32_swap_b32 v{vWD+i}, v{vWD+i+6}")
    for i in range(6):
        a(f"v_add_f32 v{vWD+i}, v{vWD+i}, v{vWD+i+6}")
    a("s_nop 0")
    for i in range(3):
        a(f"v_permlane16_swap_b32 v{vWD+i}, v{vWD+i+3}")
    for i in range(3):
        a(f"v_add_f32 v{vWD+i}, v{vWD+i}, v{vWD+i+3}")
    a(f"v_mov_b32 v{vX1}, 1")
    a("s_nop 0")
    for sh in (8, 4, 2, 1):
        for i in range(3):
            a(f"v_add_f32_dpp v{vWD+i}, v{vWD+i}, v{vWD+i} row_ror:{sh} row_mask:0xf bank_mask:0xf")
    a.c("partials -> LDS, take a ticket, read all partials back (valid for the wave whose ticket is last)")
    a(f"s_mov_b64 exec, {p64(sLead)}")
    a(f"ds_write_b128 v{vPW}, v[{vWD}:{vWD+3}]")
    a("s_mov_b64 exec, 1")
    a(f"ds_add_rtn_u32 v{vX0}, v{vTk}, v{vX1} offset:4352")
    a(f"s_mov_b64 exec, {p64(sFull)}")
    a(f"ds_read_b32 v{vT}, v{vPR}")
    a(f"ds_read_b32 v{vT+1}, v{vPR} offset:256")
    a(f"ds_read_b32 v{vT+2}, v{vPR} offset:512")
    a("s_waitcnt lgkmcnt(0)")
    a(f"v_readfirstlane_b32 s{sTk}, v{vX0}")
    a(f"v_add_f32 v{vT}, v{vT}, v{vT+1}")
    a(f"v_add_f32 v{vT}, v{vT}, v{vT+2}")
    a(f"v_mov_b32 v{vT+1}, v{vT}")
    a(f"s_cmp_lg_u32 s{sTk}, 11")
    a("s_cbranch_scc1 L_nopub")
    a.lab("L_pub")
    a(f"v_permlane32_swap_b32 v{vT}, v{vT+1}")
    a(f"v_add_f32 v{vT}, v{vT}, v{vT+1}")
    a(f"v_mov_b32 v{vT+1}, v{vT}")
    a("s_nop 1")
    a(f"v_permlane16_swap_b32 v{vT}, v{vT+1}")
    a(f"v_add_f32 v{vT}, v{vT}, v{vT+1}")
    a(f"v_min_u32 v{vT}, -2, v{vT}")
    if dry: a("s_cbranch_execz L_nopub")
    a(f"buffer_store_dword v{vT}, v{vPub}, {srd(sWS)}, 0 offen sc1")
    a.lab("L_nopub")
    if not dry: stamp("pub")
    vGW, vGR, vEW, vER = vPR, vPub, vTk, vChk
    P = vAcc
    NL = 16 // npw
    a.c("shadow work: addresses, unpack w_up")
    a(f"s_mul_i32 s{sPo}, s{sW}, {NL*16*slot}")
    for u in range(1, NL):
        a(f"s_add_u32 s{sMiss+u-1}, s{sPo}, {u*16*slot}")
    a.c("G[12][npw] at 768: lane (row i, quad r) holds j = 3r + i")
    a(f"v_lshrrev_b32 v{vX0}, 4, v{vL}")
    a(f"v_and_b32 v{vX1}, 3, v{vL}")
    a(f"v_mad_u32_u24 v{vX0}, v{vX1}, 3, v{vX0}")
    a(f"s_lshl_b32 s{sTmp}, s{sW}, 2")
    a(f"s_add_u32 s{sTmp}, s{sTmp}, 768")
    a(f"v_lshl_add_u32 v{vGW}, v{vX0}, {(4*npw).bit_length()-1}, s{sTmp}")
    a(f"v_and_b32 v{vX0}, 15, v{vL}")
    a(f"v_min_u32 v{vX0}, 5, v{vX0}")
    a(f"v_lshrrev_b32 v{vX1}, 5, v{vL}")
    a(f"v_lshl_add_u32 v{vX0}, v{vX0}, 1, v{vX1}")
    a(f"v_lshlrev_b32 v{vGR}, {(4*npw).bit_length()-1}, v{vX0}")
    a(f"v_and_b32 v{vX0}, 31, v{vL}")
    a(f"v_lshl_add_u32 v{vX0}, v{vX0}, 1, v{vX1}")
    a(f"s_lshl_b32 s{sTmp}, s{sW}, 8")
    a(f"s_add_u32 s{sTmp}, s{sTmp}, 1280")
    a(f"v_lshl_add_u32 v{vEW}, v{vX0}, 2, s{sTmp}")
    a(f"v_and_b32 v{vX0}, 7, v{vL}")
    a(f"v_lshl_add_u32 v{vER}, v{vX0}, 5, s{sTmp}")
    for m in range(6):
        a(f"v_lshlrev_b32 v{vWD+2*m}, 16, v{vWU+m}")
        a(f"v_and_b32 v{vWD+2*m+1}, s{sMask}, v{vWU+m}")
    a(f"s_and_b32 s{sLead}, s{sFull}, 0x000f000f")
    a(f"s_and_b32 s{sLead+1}, s{sFull}, 0x0000000f")
    if dry:
        a("s_cbranch_execz L_got")
        a.c("the first wave to finish walks the rest of the code once with no lane enabled (instruction cache)")
        a(f"s_cmp_lg_u32 s{sTk}, 0")
        a("s_cbranch_scc1 L_real")
        stamp("dry0")
        a(f"s_mov_b64 {p64(sFull)}, 0")
        a("s_mov_b64 exec, 0")
        a("s_branch L_pub")
        a.lab("L_back")
        a(f"s_mov_b64 {p64(sFull)}, -1")
        a("s_mov_b64 exec, -1")
        a(f"s_mov_b32 s{sLead}, 0x000f000f")
        a(f"s_mov_b32 s{sLead+1}, 0x0000000f")
        stamp("dry1")
        a.lab("L_real")
        stamp("pub")
    a(f"s_cmp_ge_u32 s{sW}, {npw}")
    a("s_barrier")
    stamp("bar1")
    a("s_cbranch_scc1 L_nopoll")
    Q = [P, P + 4, vWU, vWU + 4] if NL == 4 else [P, P + 4]
    if NL == 4: Q = [P, P + 4, vWU, vX0 - 2]
    a.lab("L_poll")
    for u in range(NL):
        so = sPo if u == 0 else sMiss + u - 1
        a(f"buffer_load_dwordx3 v[{Q[u]}:{Q[u]+2}], v{vSl}, {srd(sWS)}, s{so} offen sc1")
    a("s_waitcnt vmcnt(0)")
    a(f"v_max3_u32 v{vT}, v{Q[0]}, v{Q[0]+1}, v{Q[0]+2}")
    for u in range(1, NL):
        a(f"v_max3_u32 v{vT+u}, v{Q[u]}, v{Q[u]+1}, v{Q[u]+2}")
    if NL == 2:
        a(f"v_max_u32 v{vT}, v{vT}, v{vT+1}")
    elif NL == 4:
        a(f"v_max3_u32 v{vT}, v{vT}, v{vT+1}, v{vT+2}")
        a(f"v_max_u32 v{vT}, v{vT}, v{vT+3}")
    a(f"v_cmp_eq_u32 vcc, -1, v{vT}")
    a("s_and_b64 exec, vcc, vcc")
    a("s_cbranch_scc0 L_got")
    if sleep and thr:
        a(f"s_bcnt1_i32_b64 s{sTmp}, vcc")
        a(f"s_cmp_lt_u32 s{sTmp}, {thr}")
        a("s_cbranch_scc1 L_nosleep")
        a(f"s_sleep {sleep}")
        a.lab("L_nosleep")
    elif sleep:
        a(f"s_sleep {sleep}")
    a(f"s_sub_u32 s{sSpin}, s{sSpin}, 1")
    a("s_cbranch_scc0 L_poll")
    a.lab("L_got")
    a(f"s_mov_b64 exec, {p64(sFull)}")
    if NL == 4:
        a(f"v_pk_add_f32 v[{Q[0]}:{Q[0]+1}], v[{Q[0]}:{Q[0]+1}], v[{Q[2]}:{Q[2]+1}]")
        a(f"v_pk_add_f32 v[{Q[1]}:{Q[1]+1}], v[{Q[1]}:{Q[1]+1}], v[{Q[3]}:{Q[3]+1}]")
        a(f"v_add_f32 v{Q[0]+2}, v{Q[0]+2}, v{Q[2]+2}")
        a(f"v_add_f32 v{Q[1]+2}, v{Q[1]+2}, v{Q[3]+2}")
    a(f"v_pk_add_f32 v[{P}:{P+1}], v[{P}:{P+1}], v[{P+4}:{P+5}]")
    a(f"v_add_f32 v{P+2}, v{P+2}, v{P+6}")
    a("s_nop 1")
    a(f"v_permlane32_swap_b32 v{P}, v{P+2}")
    a(f"v_permlane32_swap_b32 v{P+1}, v{P+3}")
    a(f"v_add_f32 v{P}, v{P}, v{P+2}")
    a(f"v_add_f32 v{P+1}, v{P+1}, v{P+3}")
    a("s_nop 1")
    a(f"v_permlane16_swap_b32 v{P}, v{P+1}")
    a(f"v_add_f32 v{P}, v{P}, v{P+1}")
    for sh in (8, 4):
        a("s_nop 1")
        a(f"v_add_f32_dpp v{P}, v{P}, v{P} row_ror:{sh} row_mask:0xf bank_mask:0xf")
    a(f"s_mov_b64 exec, {p64(sLead)}")
    a(f"ds_write_b32 v{vGW}, v{P}")
    a(f"s_mov_b64 exec, {p64(sFull)}")
    a("s_waitcnt lgkmcnt(0)")
    a.lab("L_nopoll")
    if dry: a("s_cbranch_execz L_nobar2")
    stamp("got")
    a("s_barrier")
    stamp("bar2")
    a.lab("L_nobar2")
    a(f"ds_read_b128 v[{P}:{P+3}], v{vGR} offset:768")
    if npw == 8:
        a(f"ds_read_b128 v[{P+4}:{P+7}], v{vGR} offset:784")
        a("s_waitcnt lgkmcnt(0)")
        a(f"v_pk_add_f32 v[{P}:{P+1}], v[{P}:{P+1}], v[{P+4}:{P+5}]")
        a(f"v_pk_add_f32 v[{P+2}:{P+3}], v[{P+2}:{P+3}], v[{P+6}:{P+7}]")
    else:
        a("s_waitcnt lgkmcnt(0)")
    a(f"v_pk_add_f32 v[{P}:{P+1}], v[{P}:{P+1}], v[{P+2}:{P+3}]")
    a(f"v_add_f32 v{P}, v{P}, v{P+1}")
    a.c("h = sum / 2^18; silu(h) = h / (1 + 2^(-h*log2 e))")
    c1 = struct.unpack("<I", struct.pack("<f", -1.4426950408889634 / 262144.0))[0]
    a(f"v_mul_f32 v{P+1}, 0x{c1:08x}, v{P}")
    a(f"v_exp_f32 v{P+1}, v{P+1}")
    a(f"v_mul_f32 v{P}, 0x36800000, v{P}")
    a(f"v_add_f32 v{P+1}, 1.0, v{P+1}")
    a(f"v_rcp_f32 v{P+1}, v{P+1}")
    a("s_nop 0")
    a(f"v_mul_f32 v{P}, v{P}, v{P+1}")
    a("s_nop 1")
    Z = vT
    for m in range(6):
        op = "v_mul_f32_dpp" if m < 2 else "v_fmac_f32_dpp"
        z = Z + 2 * (m & 1)
        a(f"{op} v{z}, v{P}, v{vWD+2*m} row_newbcast:{m} row_mask:0xf bank_mask:0xf")
        a(f"{op} v{z+1}, v{P}, v{vWD+2*m+1} row_newbcast:{m} row_mask:0xf bank_mask:0xf")
    a(f"v_pk_add_f32 v[{Z}:{Z+1}], v[{Z}:{Z+1}], v[{Z+2}:{Z+3}]")
    a("s_nop 1")
    a(f"v_permlane32_swap_b32 v{Z}, v{Z+1}")
    a(f"v_add_f32 v{Z}, v{Z}, v{Z+1}")
    a(f"v_mul_f32 v{Z}, 0xbfb8aa3b, v{Z}")
    a(f"v_exp_f32 v{Z}, v{Z}")
    a("s_nop 0")
    a(f"v_add_f32 v{Z}, 1.0, v{Z}")
    a(f"v_rcp_f32 v{Z}, v{Z}")
    a("s_nop 0")
    a(f"v_cvt_pk_bf16_f32 v{Z}, v{Z}, v{Z}")
    a(f"v_lshlrev_b32 v{Z}, 16, v{Z}")
    a(f"ds_write_b32 v{vEW}, v{Z}")
    a(f"ds_read_b128 v[{vAcc}:{vAcc+3}], v{vER}")
    a(f"ds_read_b128 v[{vAcc+4}:{vAcc+7}], v{vER} offset:16")
    a(f"s_mov_b32 s{sT}, s{sBase}")
    if winodd is not None:
        a(f"s_getreg_b32 s{sTmp}, hwreg(HW_REG_XCC_ID)")
        a(f"s_bitcmp1_b32 s{sTmp}, 0")
    a("s_waitcnt lgkmcnt(0)")
    if dry and stamps: a("s_cbranch_execz L_nost")
    stamp("gates")
    a.lab("L_nost")
    def phase2(win, plain_last=plain_last):
        for k in range(NT):
            for h in range(2):
                d0, d1 = D + 4 * k + 2 * h, D + 4 * k + 2 * h + 1
                a(f"v_lshlrev_b32 v{vT}, 16, v{d0}")
                a(f"v_and_b32 v{vT+1}, s{sMask}, v{d0}")
                a(f"v_lshlrev_b32 v{vT+2}, 16, v{d1}")
                a(f"v_and_b32 v{vT+3}, s{sMask}, v{d1}")
                a(f"v_pk_mul_f32 v[{vT}:{vT+1}], v[{vT}:{vT+1}], v[{vAcc+4*h}:{vAcc+4*h+1}]")
                a(f"v_pk_mul_f32 v[{vT+2}:{vT+3}], v[{vT+2}:{vT+3}], v[{vAcc+4*h+2}:{vAcc+4*h+3}]")
                a(f"v_cvt_pk_bf16_f32 v{d0}, v{vT}, v{vT+1}")
                a(f"v_cvt_pk_bf16_f32 v{d1}, v{vT+2}, v{vT+3}")
            if win and k >= win:
                a(f"s_waitcnt vmcnt({win - 1})")
            f = "" if (k >= NT - plain_last or (plmod and k % plmod == plpos)) else stf
            if dry: a(f"s_cbranch_execz L_sk{k}_{len(a.l)}"); lb = f"L_sk{k}_{len(a.l)-1}"
            a(f"buffer_store_dwordx4 v[{D+4*k}:{D+4*k+3}], v{vOff}, {srd(sO)}, s{sT} offen{f}")
            if dry: a.lab(lb)
            if k < NT - 1:
                a(f"s_add_u32 s{sT}, s{sT}, s{dreg[deltas[k]]}")
    if winodd is not None:
        a("s_cbranch_scc1 L_odd")
        phase2(win)
        a("s_branch L_join")
        a.lab("L_odd")
        phase2(winodd)
        a.lab("L_join")
    elif lgw is not None:
        a(f"s_cmp_ge_u32 s{sW}, {lgw}")
        a("s_cbranch_scc1 L_odd")
        phase2(win)
        a("s_branch L_join")
        a.lab("L_odd")
        phase2(win, lgn)
        a.lab("L_join")
    else:
        phase2(win)
    if dry: a("s_cbranch_execz L_back")
    stamp("stissued")
    if stamps:
        a("s_waitcnt vmcnt(0)")
        stamp("done")
        a("s_waitcnt lgkmcnt(0)")
    if stamps and diag is not None:
        if diag < 0:
            a(f"s_mov_b32 s{sTmp}, 10000")
        else:
            a(f"s_sub_u32 s{sTmp}, s{sSt+2*diag}, s{sSt}")
            a(f"s_mul_i32 s{sTmp}, s{sTmp}, {50 if diagw is not None else 10}")
        a(f"s_min_u32 s{sTmp}, s{sTmp}, 200000")
        if diagw is not None:
            a(f"s_cmp_eq_u32 s{sW}, {diagw}")
            a(f"s_cselect_b32 s{sTmp}, s{sTmp}, 0")
        a.lab("L_diag")
        a(f"s_memrealtime s[{sSt+2}:{sSt+3}]")
        a("s_waitcnt lgkmcnt(0)")
        a(f"s_sub_u32 s{sSt+2}, s{sSt+2}, s{sSt}")
        a(f"s_cmp_lt_u32 s{sSt+2}, s{sTmp}")
        a("s_cbranch_scc1 L_diag")
    elif stamps:
        a(f"v_mov_b32 v{vT}, 0")
        a(f"v_mov_b32 v{vT+1}, 0")
        for i in range(len(names)):
            a(f"v_writelane_b32 v{vT}, s{sSt+2*i}, {i}")
            a(f"v_writelane_b32 v{vT+1}, s{sSt+2*i+1}, {i}")
        a(f"s_mul_i32 s{sTmp}, s2, 12")
        a(f"s_add_u32 s{sTmp}, s{sTmp}, s{sW}")
        a(f"s_lshl_b32 s{sTmp}, s{sTmp}, 7")
        a(f"s_add_u32 s{sTmp}, s{sTmp}, {STAMP_OFF}")
        a(f"v_lshlrev_b32 v{vX0}, 3, v{vL}")
        a("s_mov_b64 exec, 0xffff")
        a(f"buffer_store_dwordx2 v[{vT}:{vT+1}], v{vX0}, {srd(sWS)}, s{sTmp} offen")
    a.lab("L_end")
    a("s_endpgm")

    out = HEADER
    out += f"; @launch grid=({NWG},1,1) block=(768,1,1) lds=4368\n"
    if stamps: out += "; stamps: " + " ".join(names) + "\n"
    out += """.amdgcn_target "amdgcn-amd-amdhsa--gfx950"
.text
.globl standalone__se_block__vision_kernel
.p2align 8
.type standalone__se_block__vision_kernel,@function
standalone__se_block__vision_kernel:
"""
    out += a.text()
    out += f""".section .rodata,"a"
.p2align 6
.amdhsa_kernel standalone__se_block__vision_kernel
  .amdhsa_next_free_vgpr 168
  .amdhsa_next_free_sgpr {96 if stamps else 64}
  .amdhsa_accum_offset 168
  .amdhsa_group_segment_fixed_size 0
  .amdhsa_kernarg_size 48
  .amdhsa_user_sgpr_count 2
  .amdhsa_user_sgpr_kernarg_segment_ptr 1
  .amdhsa_system_sgpr_workgroup_id_x 1
  .amdhsa_float_denorm_mode_32 3
.end_amdhsa_kernel
"""
    return out

if __name__ == "__main__":
    from build import build
    name = sys.argv[1]
    kw = {}
    for x in sys.argv[2:]:
        k, v = x.split("=")
        try: v = int(v)
        except ValueError: pass
        kw[k] = v
    open(name, "w").write(gen(**kw))
    print(build(name))
```

```python
import sys, re
sys.path.insert(0, ".")
from gen import A, NB
import gen4
from build import build

def probe_body():
    a = A()
    a("s_cmp_ge_u32 s2, 1")
    a("s_cbranch_scc1 P_end")
    a("s_load_dwordx2 s[16:17], s[0:1], 0")
    a("s_load_dwordx2 s[20:21], s[0:1], 24")
    a("s_load_dwordx2 s[28:29], s[0:1], 32")
    a(f"s_mov_b32 s18, {NB}")
    a("s_mov_b32 s19, 0x00020000")
    a(f"s_mov_b32 s22, {NB}")
    a("s_mov_b32 s23, 0x00020000")
    a("s_mov_b32 s30, 256")
    a("s_mov_b32 s31, 0x00020000")
    a("s_mov_b64 exec, 1")
    a("v_mov_b32 v1, 0")
    a("s_getreg_b32 s50, hwreg(HW_REG_XCC_ID)")
    a("s_waitcnt lgkmcnt(0)")
    def timed(srd, off, dst):
        a(f"s_add_u32 s41, s40, {off}")
        a("s_memtime s[44:45]")
        a("s_waitcnt lgkmcnt(0)")
        a(f"buffer_load_dword v2, v1, {srd}, s41 offen sc1")
        a("s_waitcnt vmcnt(0)")
        a("s_memtime s[46:47]")
        a("s_waitcnt lgkmcnt(0)")
        a("s_sub_u32 s46, s46, s44")
        a(f"s_min_u32 s{dst}, s{dst}, s46")
    for bi, srd in enumerate(("s[16:19]", "s[20:23]")):
        res = 52 + 2 * bi
        a(f"s_mov_b64 s[{res}:{res+1}], 0")
        a("s_mov_b32 s42, 0")
        a.lab(f"P_loop{bi}")
        a("s_lshl_b32 s40, s42, 21")
        a(f"buffer_load_dword v2, v1, {srd}, s40 offen offset:4000 sc1")
        a("s_waitcnt vmcnt(0)")
        a("s_mov_b32 s48, -1")
        a("s_mov_b32 s49, -1")
        for i in range(4):
            timed(srd, 0x10000 * (i + 1) + 512 * i, 48)
            timed(srd, 0x10000 * (i + 1) + 0x2000 + 512 * i, 49)
        a("s_cmp_gt_u32 s48, s49")
        a("s_cselect_b32 s43, 1, 0")
        a("s_mov_b32 s60, s43")
        a("s_mov_b32 s61, 0")
        a("s_lshl_b64 s[60:61], s[60:61], s42")
        a(f"s_or_b64 s[{res}:{res+1}], s[{res}:{res+1}], s[60:61]")
        a(f"s_mov_b32 s{56+2*bi}, s48")
        a(f"s_mov_b32 s{57+2*bi}, s49")
        a("s_add_u32 s42, s42, 1")
        a("s_cmp_lt_u32 s42, 48")
        a(f"s_cbranch_scc1 P_loop{bi}")
    for i, r in enumerate((52, 53, 54, 55, 50, 56, 57, 58, 59, 16, 17, 20, 21)):
        a(f"v_mov_b32 v2, s{r}")
        a(f"buffer_store_dword v2, v1, s[28:31], 0 offen offset:{4*i}")
    a("s_waitcnt vmcnt(0)")
    a.lab("P_end")
    a("s_endpgm")
    return a.text()

def make(name, **kw):
    main = gen4.gen(**kw)
    m = re.search(r"; @launch grid=\((\d+),1,1\) block=\((\d+),1,1\) lds=(\d+)\n", main)
    lines = (f"; @launch kernel=standalone__se_block__vision_kernel grid=({m.group(1)},1,1) block=({m.group(2)},1,1) lds={m.group(3)}\n"
             f"; @launch kernel=probe_kernel grid=(1,1,1) block=(64,1,1) lds=0\n")
    main = main.replace(m.group(0), lines)
    pk = ".globl probe_kernel\n.p2align 8\n.type probe_kernel,@function\nprobe_kernel:\n" + probe_body()
    main = main.replace('.section .rodata,"a"', pk + '.section .rodata,"a"')
    main += """.p2align 6
.amdhsa_kernel probe_kernel
  .amdhsa_next_free_vgpr 8
  .amdhsa_next_free_sgpr 80
  .amdhsa_accum_offset 8
  .amdhsa_group_segment_fixed_size 0
  .amdhsa_kernarg_size 48
  .amdhsa_user_sgpr_count 2
  .amdhsa_user_sgpr_kernarg_segment_ptr 1
  .amdhsa_system_sgpr_workgroup_id_x 1
.end_amdhsa_kernel
"""
    open(name, "w").write(main)
    print(build(name))

make("pr_a.s", pat="k4", plmod=6)
```

```python
import sys, struct
from gen import A, HEADER, NB, NWG, STAMP_OFF

NT = 32
K = 1024
M = 1 << 20

PATS = {
    "g1": (12 * K, 3 * K, 1, 3 * M, 0),
    "k2": (24 * K, 6 * K, 2, 6 * M, 3 * K),
    "k4": (48 * K, 12 * K, 4, 12 * M, 3 * K),
    "k8": (96 * K, 24 * K, 8, 24 * M, 3 * K),
    "qk4": (12 * K, 24 * M, 4, 3 * M, 3 * K),
    "qk8": (24 * K, 24 * M, 8, 6 * M, 3 * K),
}

def gen(pat="k4", ld="nt", stamps=False, wpos=8, spin=1 << 20, barpos=2, slot=128, plmod=6, plpos=0,
        plset=None, win=0, diag=None, vmap='b', theta=120, pre=4, ncontr=24, clr=31, nsw=2, force=None, lanes=1, dbgdec=0, psleep=1, cst=0, nst2=1, pubk='cas', pw='3,7,11', amp=10):
    a = A()
    D = 40
    sX, sO, sWS, sDB, sWD, sWU = 4, 8, 12, 16, 20, 24
    sW, sWp, sWq, sT, sBase, sMask, sSpin, sStr, sTmp, sPo, sTk = 28, 29, 30, 31, 32, 33, 34, 36, 38, 40, 42
    sLead = 44
    sPr, sRole, sNeu, s3k, sDec = 46, 47, 48, 49, 35
    sMB, sMS = 50, 54
    sD3, sD4 = 36, 37
    sA, sB = 58, 59
    sSt = 60
    vSl, vL, vOff, vPW, vPR, vPub, vChk, vTk = 0, 1, 2, 3, 4, 5, 6, 7
    vAcc, vT, vWD, vWU, vX0, vX1 = 8, 16, 20, 32, 38, 39
    def srd(s): return f"s[{s}:{s+3}]"
    def p64(s): return f"s[{s}:{s+1}]"
    def v2(r): return f"v[{r}:{r+1}]"
    names = []
    def stamp(n):
        if stamps:
            i = len(names)
            a(f"s_memrealtime s[{sSt+2*i}:{sSt+2*i+1}]")
            names.append(n)
    ldf = (" " + ld) if ld else ""
    SU = 48 * K
    P_, Q_, R_ = {"a": (4, 1, 512), "b": (1, 512, 128), "d": (1, 128, 512)}[vmap]
    assert sorted(pr * P_ + wq * Q_ + m * R_ for pr in range(128) for wq in range(4) for m in range(4)) == list(range(2048))
    dl = [1, 1, 3, 1, 1, 4, 1]
    L0 = [0]
    for d in dl: L0.append(L0[-1] + d)
    assert sorted(L0 + [15 - u for u in L0]) == list(range(16))
    LS = slot.bit_length() - 1
    plain = set(int(x) for x in plset.split(",")) if plset else set(k for k in range(NT) if plmod and k % plmod == plpos)

    a.c("workgroups past the 256 that carry data leave at once")
    a(f"s_cmp_ge_u32 s2, {NWG}")
    a("s_cbranch_scc1 L_end")
    for (s, off) in ((sX, 0), (sWS, 40), (sDB, 32), (sWD, 8), (sWU, 16), (sO, 24)):
        a(f"s_load_dwordx2 {p64(s)}, s[0:1], {off}")
    stamp("entry")
    a.c("wave w = 3*wq + wp; lane l reads 16 bytes: row (l>>3) of an 8-row group, bytes wp*128 + (l&7)*16")
    a(f"v_lshrrev_b32 v{vX0}, 6, v0")
    a(f"v_and_b32 v{vL}, 63, v0")
    a(f"v_readfirstlane_b32 s{sW}, v{vX0}")
    a(f"v_lshrrev_b32 v{vX0}, 3, v{vL}")
    a(f"v_and_b32 v{vX1}, 7, v{vL}")
    a(f"v_mul_u32_u24 v{vOff}, 384, v{vX0}")
    a(f"v_lshl_add_u32 v{vOff}, v{vX1}, 4, v{vOff}")
    a(f"s_mul_i32 s{sWq}, s{sW}, 43")
    a(f"s_lshr_b32 s{sWq}, s{sWq}, 7")
    a(f"s_mul_i32 s{sTmp}, s{sWq}, 3")
    a(f"s_sub_u32 s{sWp}, s{sW}, s{sTmp}")
    a.c("workgroups id and id^4 form a pair that shares 48 KiB spans (16 units of 8 rows, 8 units each)")
    a(f"s_bfe_u32 s{sRole}, s2, 0x10002")
    a(f"s_and_b32 s{sPr}, s2, 3")
    a(f"s_lshr_b32 s{sTmp}, s2, 3")
    a(f"s_lshl_b32 s{sTmp}, s{sTmp}, 2")
    a(f"s_or_b32 s{sPr}, s{sPr}, s{sTmp}")
    a(f"s_mul_i32 s{sBase}, s{sPr}, {P_ * SU}")
    a(f"s_mul_i32 s{sTmp}, s{sWq}, {Q_ * SU}")
    a(f"s_add_u32 s{sBase}, s{sBase}, s{sTmp}")
    a(f"s_lshl_b32 s{sTmp}, s{sWp}, 7")
    a(f"s_add_u32 s{sBase}, s{sBase}, s{sTmp}")
    a(f"s_movk_i32 s{s3k}, 3072")
    a(f"s_xor_b32 s{sNeu}, s{sPr}, s{sWq}")
    a(f"s_xor_b32 s{sNeu}, s{sNeu}, s{sRole}")
    def addr(m):
        a(f"s_add_u32 s{sMB+m}, s{sBase}, {m * R_ * SU}")
        if m == 0:
            a(f"s_bitcmp1_b32 s{sNeu}, 0")
        else:
            a(f"s_add_u32 s{sA}, s{sMB+m}, {24 * K}")
            a(f"s_lshr_b32 s{sB}, s{sA}, 25")
            a(f"s_lshr_b32 s{sA}, s{sA}, 21")
            a(f"s_lshl_b32 s{sB}, s{sB}, 3")
            a(f"s_lshr_b32 s{sB}, s{sDec}, s{sB}")
            a(f"s_xor_b32 s{sA}, s{sA}, s{sRole}")
            a(f"s_lshr_b32 s{sTmp}, s{sB}, 1")
            a(f"s_xor_b32 s{sA}, s{sA}, s{sTmp}")
            a(f"s_xor_b32 s{sTmp}, s{sNeu}, {m & 1}")
            a(f"s_bitcmp1_b32 s{sB}, 0")
            a(f"s_cselect_b32 s{sA}, s{sA}, s{sTmp}")
            a(f"s_bitcmp1_b32 s{sA}, 0")
        a(f"s_cselect_b32 s{sA}, {15 * 3072}, 0")
        a(f"s_cselect_b32 s{sMS+m}, {(-3072) & 0xffffffff}, s{s3k}")
        a(f"s_add_u32 s{sMB+m}, s{sMB+m}, s{sA}")
    def start(m):
        a(f"s_mov_b32 s{sT}, s{sMB+m}")
        a(f"s_mul_i32 s{sD3}, s{sMS+m}, 3")
        a(f"s_lshl_b32 s{sD4}, s{sMS+m}, 2")
    def step(k):
        m, n = divmod(k, 8)
        if n < 7:
            a(f"s_add_u32 s{sT}, s{sT}, s{ {1: sMS + m, 3: sD3, 4: sD4}[dl[n]] }")
        elif m < 3:
            start(m + 1)
    addr(0)
    start(0)
    for (s, n) in ((sX, NB), (sWS, (2 << 20) if stamps else 256 * slot), (sDB, 256), (sWD, 4608), (sWU, 4608), (sO, NB)):
        a(f"s_mov_b32 s{s+2}, {n}")
        a(f"s_mov_b32 s{s+3}, 0x00020000")
    a.c("hand-off slots in d_ws: one line per workgroup; lane l covers slot (l>>2), bytes (l&3)*16")
    a(f"v_lshrrev_b32 v{vX0}, 2, v{vL}")
    a(f"v_and_b32 v{vX1}, 3, v{vL}")
    a(f"v_lshlrev_b32 v{vX0}, {LS}, v{vX0}")
    a(f"v_lshl_add_u32 v{vSl}, v{vX1}, 4, v{vX0}")
    a(f"v_mov_b32 v{vTk}, 0")
    a(f"ds_write_b32 v{vTk}, v{vTk} offset:4352")
    a(f"ds_write_b32 v{vTk}, v{vTk} offset:4356")
    a.c("placement probe (wave 0 of the first workgroups): two loads 8 KiB apart; a late second return shows it lives on the other die")
    a(f"s_cmp_ge_u32 s{sPr}, 6")
    a(f"s_cselect_b32 s{sTk}, 1, 0")
    a(f"s_cselect_b32 s{sTmp}, 6, 0")
    a(f"s_sub_u32 s{sLead}, s{sPr}, s{sTmp}")
    a(f"s_lshr_b32 s{sA}, s{sLead}, 1")
    a(f"s_lshl_b32 s{sA}, s{sA}, 25")
    a(f"s_mul_i32 s{sTmp}, s{sTk}, {16 * M + 0x2000}")
    a(f"s_add_u32 s{sA}, s{sA}, s{sTmp}")
    a(f"s_mul_i32 s{sTmp}, s2, {0x4000 + 0x500}")
    a(f"s_and_b32 s{sTmp}, s{sTmp}, 0xfdf00")
    a(f"s_add_u32 s{sA}, s{sA}, s{sTmp}")
    a(f"s_add_u32 s{sA}, s{sA}, {8 * M}")
    a(f"s_xor_b32 s{sB}, s{sA}, 0x2000")
    a(f"s_cmp_ge_u32 s2, {ncontr}")
    a("s_waitcnt lgkmcnt(0)")
    stamp("karg")
    a("s_cbranch_scc1 L_noprobe")
    a(f"s_cmp_lg_u32 s{sW}, 0")
    a("s_cbranch_scc1 L_probe_done")
    a("s_mov_b64 exec, 1")
    a(f"s_bitcmp1_b32 s{sLead}, 0")
    a("s_cbranch_scc1 L_probe_out")
    a(f"buffer_load_dword v{vX0}, v{vTk}, {srd(sX)}, s{sA} offen nt")
    a(f"buffer_load_dword v{vX1}, v{vTk}, {srd(sX)}, s{sB} offen nt")
    a("s_branch L_probe_wait")
    a.lab("L_probe_out")
    a(f"buffer_load_dword v{vX0}, v{vTk}, {srd(sO)}, s{sA} offen nt")
    a(f"buffer_load_dword v{vX1}, v{vTk}, {srd(sO)}, s{sB} offen nt")
    a.lab("L_probe_wait")
    a("s_barrier")
    a("s_waitcnt vmcnt(1)")
    a(f"s_memtime s[{sA}:{sA+1}]")
    a("s_waitcnt vmcnt(0)")
    a(f"s_memtime s[{sPo}:{sPo+1}]")
    if cst: stamp("c_probe")
    a.c("word 4*statistic + 2*copy + role of d_debug <- valid | ((die id - workgroup id) & 7) << 16 | (signed delay + 1024)")
    a(f"s_getreg_b32 s{sDec}, hwreg(HW_REG_XCC_ID, 0, 3)")
    a(f"s_sub_u32 s{sLead+1}, s{sDec}, s2")
    a(f"s_and_b32 s{sLead+1}, s{sLead+1}, 7")
    a(f"s_lshl_b32 s{sLead+1}, s{sLead+1}, 16")
    a(f"s_or_b32 s{sLead+1}, s{sLead+1}, 0x80000400")
    a(f"s_lshr_b32 s{sDec}, s{sDec}, 2")
    a(f"s_lshl_b32 s{sLead}, s{sLead}, 1")
    a(f"s_add_u32 s{sLead}, s{sLead}, s{sTk}")
    a(f"s_lshl_b32 s{sLead}, s{sLead}, 1")
    a(f"s_add_u32 s{sLead}, s{sLead}, s{sRole}")
    a(f"s_lshl_b32 s{sLead}, s{sLead}, 2")
    a(f"s_xor_b32 s{sTmp}, s{sTk}, s{sDec}")
    a(f"v_mov_b32 v{vT+1}, 0")
    a("s_waitcnt lgkmcnt(0)")
    a(f"s_sub_u32 s{sA}, s{sPo}, s{sA}")
    a(f"s_min_u32 s{sA}, s{sA}, 600")
    a(f"s_sub_u32 s{sB}, 0, s{sA}")
    a(f"s_cmp_lg_u32 s{sTmp}, 0")
    a(f"s_cselect_b32 s{sA}, s{sB}, s{sA}")
    a(f"s_add_u32 s{sA}, s{sA}, s{sLead+1}")
    a(f"v_mov_b32 v{vT}, s{sA}")
    if pubk == "cas":
        a(f"buffer_atomic_cmpswap v[{vT}:{vT+1}], v{vTk}, {srd(sDB)}, s{sLead} offen")
    else:
        a(f"buffer_store_dword v{vT}, v{vTk}, {srd(sDB)}, s{sLead} offen sc1")
    a.lab("L_probe_end")
    a("s_mov_b64 exec, -1")
    a("s_branch L_noprobe")
    a.lab("L_probe_done")
    a("s_barrier")
    a.lab("L_noprobe")
    a.c("one workgroup, wave 0: set every slot to the 'empty' marker; the flag in d_debug follows once these landed")
    a(f"s_xor_b32 s{sTmp}, s2, {clr}")
    a(f"s_or_b32 s{sTmp}, s{sTmp}, s{sW}")
    a("s_cbranch_scc1 L_noclear")
    for i in range(4):
        a(f"v_mov_b32 v{vT+i}, -1")
    for i in range(16):
        a(f"s_mov_b32 s{sTmp}, {16*slot*i}")
        a(f"buffer_store_dwordx4 v[{vT}:{vT+3}], v{vSl}, {srd(sWS)}, s{sTmp} offen sc1")
    a.lab("L_noclear")

    order = []
    def load(k):
        a(f"buffer_load_dwordx4 v[{D+4*k}:{D+4*k+3}], v{vOff}, {srd(sX)}, s{sT} offen{ldf}")
        if k != 7: step(k)
        order.append(k)
    for k in range(pre):
        load(k)
    a.c("the LDS ticket is zero before any wave can take one")
    a(f"s_xor_b32 s{sTmp}, s2, {clr}")
    a(f"s_or_b32 s{sTmp}, s{sTmp}, s{sW}")
    a("s_barrier")
    a("s_cbranch_scc1 L_noflagset")
    a(f"v_mov_b32 v{vX1}, 1")
    a("s_waitcnt vmcnt(0)")
    a("s_mov_b64 exec, 1")
    a(f"buffer_store_dword v{vX1}, v{vTk}, {srd(sDB)}, 0 offen offset:192 sc1")
    a("s_mov_b64 exec, -1")
    a.lab("L_noflagset")
    for k in range(pre, 8):
        load(k)
    a.c("weights: w_down row of channel 64*wp + 8*(l&7) + (l>>3); w_up dwords (row 2m + (l>>5), channels 64*wp + 2*(l&31), +1)")
    a(f"v_lshrrev_b32 v{vX0}, 3, v{vL}")
    a(f"v_and_b32 v{vX1}, 7, v{vL}")
    a(f"v_lshl_add_u32 v{vX0}, v{vX1}, 3, v{vX0}")
    a(f"v_mul_u32_u24 v{vX0}, 24, v{vX0}")
    a(f"s_mul_i32 s{sTmp}, s{sWp}, 1536")
    a(f"buffer_load_dwordx4 v[{vWD+6}:{vWD+9}], v{vX0}, {srd(sWD)}, s{sTmp} offen")
    a(f"buffer_load_dwordx2 v[{vWD+10}:{vWD+11}], v{vX0}, {srd(sWD)}, s{sTmp} offen offset:16")
    a(f"v_lshrrev_b32 v{vX0}, 5, v{vL}")
    a(f"v_and_b32 v{vX1}, 31, v{vL}")
    a(f"v_mul_u32_u24 v{vX0}, 384, v{vX0}")
    a(f"v_lshl_add_u32 v{vX0}, v{vX1}, 2, v{vX0}")
    a(f"s_lshl_b32 s{sTmp}, s{sWp}, 7")
    for m in range(6):
        a(f"buffer_load_dword v{vWU+m}, v{vX0}, {srd(sWU)}, s{sTmp} offen offset:{768*m}")
    a(f"s_mov_b32 s{sSpin}, {spin}")
    if not cst: stamp("static")
    a.c("the placement word decides which units of the remaining spans this workgroup takes")
    def lpoll(tag):
        a.lab(f"L_dec{tag}")
        a(f"ds_read_b32 v{vChk}, v{vTk} offset:4356")
        a("s_waitcnt lgkmcnt(0)")
        a(f"v_readfirstlane_b32 s{sDec}, v{vChk}")
        a("s_nop 3")
        a(f"s_cmp_lt_i32 s{sDec}, 0")
        a(f"s_cbranch_scc1 L_dec_ok{tag}")
        a(f"s_sleep {psleep}")
        a(f"s_sub_u32 s{sSpin}, s{sSpin}, 1")
        a(f"s_cbranch_scc0 L_dec{tag}")
    order.extend(["w"] * 8)
    a(f"s_mov_b32 s{sDec}, 0")
    a(f"s_cmp_lt_u32 s{sWq}, {nst2}")
    a("s_cbranch_scc1 L_dec_okA")
    lpoll("A")
    a.lab("L_dec_okA")
    addr(1)
    start(1)
    for k in range(8, 16):
        a(f"buffer_load_dwordx4 v[{D+4*k}:{D+4*k+3}], v{vOff}, {srd(sX)}, s{sT} offen{ldf}")
        if k != 15: step(k)
        order.append(k)
    a(f"s_cmp_ge_u32 s{sWq}, {nst2}")
    a("s_cbranch_scc1 L_dec_okB")
    a(f"s_cmp_lg_u32 s{sW}, 0")
    a("s_cbranch_scc1 L_decB")
    a.c("wave 0 reads the probe words at several moments (the returns queue behind the data) and decides for the workgroup")
    a(f"v_lshlrev_b32 v{vX0}, 2, v{vL}")
    a("s_mov_b64 exec, 0xffffff")
    pws = [int(x) for x in str(pw).split(",")] if pw != "" else []
    NP = len(pws) + 1
    def rd(i): a(f"buffer_load_dword v{vT+i}, v{vX0}, {srd(sDB)}, 0 offen sc1")
    rd(0)
    for i, t in enumerate(pws):
        a(f"s_waitcnt vmcnt({len(order) - 1 - order.index(t) + i + 1})")
        rd(i + 1)
    for i in range(NP):
        a(f"s_waitcnt vmcnt({NP - 1 - i})")
        a(f"v_cmp_le_i32 vcc, 0, v{vT+i}")
        if i: a(f"v_mov_b32 v{vT}, v{vT+i}")
        a("s_cbranch_vccz L_have")
    a.lab("L_again")
    rd(0)
    a("s_waitcnt vmcnt(0)")
    a(f"v_cmp_le_i32 vcc, 0, v{vT}")
    a("s_cbranch_vccz L_have")
    a(f"s_sub_u32 s{sSpin}, s{sSpin}, 1")
    a("s_cbranch_scc0 L_again")
    a.lab("L_have")
    stamp("have") if cst else None
    a(f"v_and_b32 v{vX1}, 0xfff, v{vT}")
    a(f"v_lshrrev_b32 v{vX0}, 16, v{vT}")
    a("s_nop 0")
    a(f"v_add_u32_dpp v{vX1}, v{vX1}, v{vX1} quad_perm:[1,0,3,2] row_mask:0xf bank_mask:0xf")
    a(f"v_readfirstlane_b32 s{sB}, v{vX0}")
    a("s_nop 0")
    a(f"v_add_u32_dpp v{vX1}, v{vX1}, v{vX1} quad_perm:[2,3,0,1] row_mask:0xf bank_mask:0xf")
    a(f"v_cmp_lt_u32 vcc, {4096 + theta}, v{vX1}")
    a(f"s_mov_b32 s{sTmp}, vcc_lo")
    a(f"v_cmp_gt_u32 vcc, {4096 - theta}, v{vX1}")
    a.c("a region is placed when input and output agree; bit 8r: placed, bit 8r+1: direction")
    a(f"s_lshr_b32 s{sA}, s{sTmp}, 4")
    a(f"s_and_b32 s{sTmp}, s{sTmp}, s{sA}")
    a(f"s_lshr_b32 s{sA}, vcc_lo, 4")
    a(f"s_and_b32 s{sA}, s{sA}, vcc_lo")
    a(f"v_cmp_ne_u32 vcc, s{sB}, v{vX0}")
    a(f"s_and_b32 s{sTmp}, s{sTmp}, 0x010101")
    a(f"s_and_b32 s{sA}, s{sA}, 0x030303")
    a(f"s_or_b32 s{sDec}, s{sTmp}, s{sA}")
    a.c("only if every probing workgroup sits where round-robin placement puts it; bit 2 of (id + offset) tells the die of a workgroup")
    a("s_cmp_eq_u32 vcc_lo, 0")
    a(f"s_cselect_b32 s{sDec}, s{sDec}, 0")
    if diag == "dec":
        a(f"s_cselect_b32 s{sSpin+0*1}, s{sSpin}, 0x100001")
    a(f"s_add_u32 s{sB}, s{sB}, s2")
    a(f"s_xor_b32 s{sB}, s{sB}, s2")
    a(f"s_and_b32 s{sB}, s{sB}, 4")
    a(f"s_lshr_b32 s{sB}, s{sB}, 1")
    a(f"s_mul_i32 s{sB}, s{sB}, 0x010101")
    a(f"s_xor_b32 s{sDec}, s{sDec}, s{sB}")
    if force is not None: a(f"s_mov_b32 s{sDec}, {force}")
    a(f"s_bitset1_b32 s{sDec}, 31")
    a(f"v_mov_b32 v{vX0}, s{sDec}")
    a(f"ds_write_b32 v{vTk}, v{vX0} offset:4356")
    if dbgdec:
        a(f"buffer_store_dword v{vX0}, v{vTk}, {srd(sDB)}, 0 offen offset:128")
    a("s_mov_b64 exec, -1")
    a("s_branch L_dec_okB")
    lpoll("B")
    a.lab("L_dec_okB")
    stamp("dec")
    for m in range(2, 4): addr(m)
    start(2)
    for k in range(16, NT):
        load(k)
    a.c("wave 0: read the reset flag (it returns behind the data)")
    a(f"s_cmp_lg_u32 s{sW}, 0")
    a("s_cbranch_scc1 L_noflag")
    a(f"buffer_load_dword v{vChk}, v{vTk}, {srd(sDB)}, 0 offen offset:192 sc1")
    a.lab("L_noflag")
    stamp("issued")
    a.c("LDS: P[12][16] per-wave partials at 0, G[12][8] at 768, gates at 1280, ticket at 4352")
    a(f"s_mov_b32 s{sMask}, 0xffff0000")
    a(f"v_lshrrev_b32 v{vX0}, 4, v{vL}")
    a(f"s_lshl_b32 s{sTmp}, s{sW}, 6")
    a(f"v_lshl_add_u32 v{vPW}, v{vX0}, 4, s{sTmp}")
    a(f"v_and_b32 v{vX1}, 15, v{vL}")
    a(f"v_lshlrev_b32 v{vX1}, 2, v{vX1}")
    a(f"v_lshl_add_u32 v{vPR}, v{vX0}, 6, v{vX1}")
    a(f"s_mov_b32 s{sLead}, 0x00010001")
    a(f"s_mov_b32 s{sLead+1}, 0x00010001")
    a.c("publish address: lanes 0..15 -> this workgroup's slot, word l; the other lanes are out of range")
    a(f"s_lshl_b32 s{sTmp}, s2, {LS}")
    a(f"v_lshl_add_u32 v{vPub}, v{vL}, 2, s{sTmp}")
    a(f"v_cmp_gt_u32 vcc, 16, v{vL}")
    a(f"v_mov_b32 v{vX0}, 0x40000000")
    a(f"v_mov_b32 v{vX1}, 1")
    a(f"v_cndmask_b32 v{vPub}, v{vX0}, v{vPub}, vcc")

    a.c("phase 1: f32 channel sums of this lane's 8 channels; the data stay in v40..v167")
    for k in range(NT):
        if k == 0: a("s_waitcnt vmcnt(16)")
        if k >= 16: a(f"s_waitcnt vmcnt({len(order) - 1 - order.index(k)})")
        if k == 8:
            for i in range(6):
                a(f"v_lshlrev_b32 v{vWD+2*i}, 16, v{vWD+6+i}")
                a(f"v_and_b32 v{vWD+2*i+1}, s{sMask}, v{vWD+6+i}")
        for h in range(2):
            d0, d1 = D + 4 * k + 2 * h, D + 4 * k + 2 * h + 1
            t = vAcc + 4 * h if k == 0 else vT
            a(f"v_lshlrev_b32 v{t}, 16, v{d0}")
            a(f"v_and_b32 v{t+1}, s{sMask}, v{d0}")
            a(f"v_lshlrev_b32 v{t+2}, 16, v{d1}")
            a(f"v_and_b32 v{t+3}, s{sMask}, v{d1}")
            if k:
                a(f"v_pk_add_f32 {v2(vAcc+4*h)}, {v2(vAcc+4*h)}, {v2(vT)}")
                a(f"v_pk_add_f32 {v2(vAcc+4*h+2)}, {v2(vAcc+4*h+2)}, {v2(vT+2)}")
    stamp("loaded")
    a.c("wave 0: the slots must have been reset before this workgroup publishes or trusts a slot")
    a(f"s_cmp_lg_u32 s{sW}, 0")
    a("s_cbranch_scc1 L_chk_ok")
    a.lab("L_chk")
    a(f"v_cmp_eq_u32 vcc, 0, v{vChk}")
    a("s_cbranch_vccz L_chk_ok")
    a("s_sleep 4")
    a(f"buffer_load_dword v{vChk}, v{vTk}, {srd(sDB)}, 0 offen offset:192 sc1")
    a("s_waitcnt vmcnt(0)")
    a(f"s_sub_u32 s{sSpin}, s{sSpin}, 1")
    a("s_cbranch_scc0 L_chk")
    a.lab("L_chk_ok")

    A_ = vAcc
    a.c("8 sums x 8 lane rows -> one channel sum per lane (channel 8*(l&7) + (l>>3))")
    for i in range(4):
        a(f"v_permlane32_swap_b32 v{A_+i}, v{A_+i+4}")
    a(f"v_pk_add_f32 {v2(A_)}, {v2(A_)}, {v2(A_+4)}")
    a(f"v_pk_add_f32 {v2(A_+2)}, {v2(A_+2)}, {v2(A_+6)}")
    a("s_nop 1")
    for i in range(2):
        a(f"v_permlane16_swap_b32 v{A_+i}, v{A_+i+2}")
    a(f"v_pk_add_f32 {v2(A_)}, {v2(A_)}, {v2(A_+2)}")
    a("s_nop 1")
    a(f"v_add_f32_dpp v{A_+2}, v{A_}, v{A_} row_ror:8 row_mask:0xf bank_mask:0x3")
    a("s_nop 1")
    a(f"v_add_f32_dpp v{A_+2}, v{A_+1}, v{A_+1} row_ror:8 row_mask:0xf bank_mask:0xc")
    a.c("times the w_down row, summed over the wave: row r of 16 lanes keeps outputs 3r..3r+2")
    for j in (0, 6, 2, 8, 4, 10):
        a(f"v_pk_mul_f32 {v2(vWD+j)}, {v2(A_+2)}, {v2(vWD+j)} op_sel_hi:[0,1]")
    for i in range(6):
        a(f"v_permlane32_swap_b32 v{vWD+i}, v{vWD+i+6}")
    for i in range(0, 6, 2):
        a(f"v_pk_add_f32 {v2(vWD+i)}, {v2(vWD+i)}, {v2(vWD+i+6)}")
    a("s_nop 1")
    for i in range(3):
        a(f"v_permlane16_swap_b32 v{vWD+i}, v{vWD+i+3}")
    for i in range(3):
        a(f"v_add_f32 v{vWD+i}, v{vWD+i}, v{vWD+i+3}")
    for sh in (8, 4, 2, 1):
        for i in range(3):
            a(f"v_add_f32_dpp v{vWD+i}, v{vWD+i}, v{vWD+i} row_ror:{sh} row_mask:0xf bank_mask:0xf")
    a.c("partials -> LDS, take a ticket, read all partials back (complete for the wave whose ticket is last)")
    a(f"s_mov_b64 exec, {p64(sLead)}")
    a(f"ds_write_b128 v{vPW}, v[{vWD}:{vWD+3}]")
    a("s_mov_b64 exec, 1")
    a(f"ds_add_rtn_u32 v{vX0}, v{vTk}, v{vX1} offset:4352")
    a("s_mov_b64 exec, -1")
    a(f"ds_read_b32 v{vT}, v{vPR}")
    a(f"ds_read_b32 v{vT+1}, v{vPR} offset:256")
    a(f"ds_read_b32 v{vT+2}, v{vPR} offset:512")
    a("s_waitcnt lgkmcnt(0)")
    a(f"v_readfirstlane_b32 s{sTk}, v{vX0}")
    a(f"v_add_f32 v{vT}, v{vT}, v{vT+1}")
    a(f"v_add_f32 v{vT}, v{vT}, v{vT+2}")
    a(f"v_mov_b32 v{vT+1}, v{vT}")
    a(f"s_cmp_lg_u32 s{sTk}, 11")
    a("s_cbranch_scc1 L_nopub")
    a(f"v_permlane32_swap_b32 v{vT}, v{vT+1}")
    a(f"v_add_f32 v{vT}, v{vT}, v{vT+1}")
    a(f"v_mov_b32 v{vT+1}, v{vT}")
    a("s_nop 1")
    a(f"v_permlane16_swap_b32 v{vT}, v{vT+1}")
    a(f"v_add_f32 v{vT}, v{vT}, v{vT+1}")
    a(f"v_min_u32 v{vT}, -2, v{vT}")
    a(f"buffer_store_dword v{vT}, v{vPub}, {srd(sWS)}, 0 offen sc1")
    a.lab("L_nopub")
    stamp("pub")
    vGW, vGR, vEW, vER = vPR, vPub, vTk, vChk
    P = vAcc
    a.c("addresses for the rest, w_up to f32")
    a(f"s_lshl_b32 s{sPo}, s{sW}, {LS+5}")
    a(f"s_add_u32 s{sPo+1}, s{sPo}, {16*slot}")
    a(f"v_lshrrev_b32 v{vX0}, 4, v{vL}")
    a(f"v_and_b32 v{vX1}, 3, v{vL}")
    a(f"v_mad_u32_u24 v{vX0}, v{vX1}, 3, v{vX0}")
    a(f"s_lshl_b32 s{sTmp}, s{sW}, 2")
    a(f"s_add_u32 s{sTmp}, s{sTmp}, 768")
    a(f"v_lshl_add_u32 v{vGW}, v{vX0}, 5, s{sTmp}")
    a(f"v_and_b32 v{vX0}, 15, v{vL}")
    a(f"v_min_u32 v{vX0}, 5, v{vX0}")
    a(f"v_lshrrev_b32 v{vX1}, 5, v{vL}")
    a(f"v_lshl_add_u32 v{vX0}, v{vX0}, 1, v{vX1}")
    a(f"v_lshlrev_b32 v{vGR}, 5, v{vX0}")
    a(f"v_and_b32 v{vX0}, 31, v{vL}")
    a(f"v_lshl_add_u32 v{vX0}, v{vX0}, 1, v{vX1}")
    a(f"s_lshl_b32 s{sTmp}, s{sW}, 8")
    a(f"s_add_u32 s{sTmp}, s{sTmp}, 1280")
    a(f"v_lshl_add_u32 v{vEW}, v{vX0}, 2, s{sTmp}")
    a(f"v_and_b32 v{vX0}, 7, v{vL}")
    a(f"v_lshl_add_u32 v{vER}, v{vX0}, 5, s{sTmp}")
    for m in range(6):
        a(f"v_lshlrev_b32 v{vWD+2*m}, 16, v{vWU+m}")
        a(f"v_and_b32 v{vWD+2*m+1}, s{sMask}, v{vWU+m}")
    a(f"s_mov_b32 s{sLead}, 0x000f000f")
    a(f"s_mov_b32 s{sLead+1}, 0x0000000f")
    start(0)
    a(f"s_cmp_ge_u32 s{sW}, 8")
    a("s_barrier")
    stamp("bar1")
    a("s_cbranch_scc1 L_nopoll")
    a.c("waves 0..7: gather 32 slots each; only the lanes whose words are still 'empty' read again")
    a.lab("L_poll")
    a(f"buffer_load_dwordx3 v[{P}:{P+2}], v{vSl}, {srd(sWS)}, s{sPo} offen sc1")
    a(f"buffer_load_dwordx3 v[{P+4}:{P+6}], v{vSl}, {srd(sWS)}, s{sPo+1} offen sc1")
    a("s_waitcnt vmcnt(0)")
    a(f"v_max3_u32 v{vT}, v{P}, v{P+1}, v{P+2}")
    a(f"v_max3_u32 v{vT+1}, v{P+4}, v{P+5}, v{P+6}")
    a(f"v_max_u32 v{vT}, v{vT}, v{vT+1}")
    a(f"v_cmp_eq_u32 vcc, -1, v{vT}")
    a("s_and_b64 exec, vcc, vcc")
    a("s_cbranch_scc0 L_got")
    a(f"s_sub_u32 s{sSpin}, s{sSpin}, 1")
    a("s_cbranch_scc0 L_poll")
    a.lab("L_got")
    a("s_mov_b64 exec, -1")
    a(f"v_pk_add_f32 {v2(P)}, {v2(P)}, {v2(P+4)}")
    a(f"v_add_f32 v{P+2}, v{P+2}, v{P+6}")
    a("s_nop 1")
    a(f"v_permlane32_swap_b32 v{P}, v{P+2}")
    a(f"v_permlane32_swap_b32 v{P+1}, v{P+3}")
    a(f"v_pk_add_f32 {v2(P)}, {v2(P)}, {v2(P+2)}")
    a("s_nop 1")
    a(f"v_permlane16_swap_b32 v{P}, v{P+1}")
    a(f"v_add_f32 v{P}, v{P}, v{P+1}")
    for sh in (8, 4):
        a("s_nop 1")
        a(f"v_add_f32_dpp v{P}, v{P}, v{P} row_ror:{sh} row_mask:0xf bank_mask:0xf")
    a(f"s_mov_b64 exec, {p64(sLead)}")
    a(f"ds_write_b32 v{vGW}, v{P}")
    a("s_mov_b64 exec, -1")
    a("s_waitcnt lgkmcnt(0)")
    a.lab("L_nopoll")
    stamp("got")
    a("s_barrier")
    stamp("bar2")
    a(f"ds_read_b128 v[{P}:{P+3}], v{vGR} offset:768")
    a(f"ds_read_b128 v[{P+4}:{P+7}], v{vGR} offset:784")
    a("s_waitcnt lgkmcnt(0)")
    a(f"v_pk_add_f32 {v2(P)}, {v2(P)}, {v2(P+4)}")
    a(f"v_pk_add_f32 {v2(P+2)}, {v2(P+2)}, {v2(P+6)}")
    a(f"v_pk_add_f32 {v2(P)}, {v2(P)}, {v2(P+2)}")
    a(f"v_add_f32 v{P}, v{P}, v{P+1}")
    a.c("h = sum / 2^18; silu(h) = h / (1 + 2^(-h*log2 e))")
    c1 = struct.unpack("<I", struct.pack("<f", -1.4426950408889634 / 262144.0))[0]
    a(f"v_mul_f32 v{P+1}, 0x{c1:08x}, v{P}")
    a(f"v_exp_f32 v{P+1}, v{P+1}")
    a(f"v_mul_f32 v{P}, 0x36800000, v{P}")
    a(f"v_add_f32 v{P+1}, 1.0, v{P+1}")
    a(f"v_rcp_f32 v{P+1}, v{P+1}")
    a("s_nop 0")
    a(f"v_mul_f32 v{P}, v{P}, v{P+1}")
    a("s_nop 1")
    a.c("z = silu(h) @ w_up for channel 2*(l&31) + (l>>5); gate = bf16(1 / (1 + 2^(-z*log2 e)))")
    Z = vT
    for m in range(6):
        op = "v_mul_f32_dpp" if m < 2 else "v_fmac_f32_dpp"
        z = Z + 2 * (m & 1)
        a(f"{op} v{z}, v{P}, v{vWD+2*m} row_newbcast:{m} row_mask:0xf bank_mask:0xf")
        a(f"{op} v{z+1}, v{P}, v{vWD+2*m+1} row_newbcast:{m} row_mask:0xf bank_mask:0xf")
    a(f"v_pk_add_f32 {v2(Z)}, {v2(Z)}, {v2(Z+2)}")
    a("s_nop 1")
    a(f"v_permlane32_swap_b32 v{Z}, v{Z+1}")
    a(f"v_add_f32 v{Z}, v{Z}, v{Z+1}")
    a(f"v_mul_f32 v{Z}, 0xbfb8aa3b, v{Z}")
    a(f"v_exp_f32 v{Z}, v{Z}")
    a("s_nop 0")
    a(f"v_add_f32 v{Z}, 1.0, v{Z}")
    a(f"v_rcp_f32 v{Z}, v{Z}")
    a("s_nop 0")
    a(f"v_cvt_pk_bf16_f32 v{Z}, v{Z}, v{Z}")
    a(f"v_lshlrev_b32 v{Z}, 16, v{Z}")
    a(f"ds_write_b32 v{vEW}, v{Z}")
    a(f"ds_read_b128 v[{vAcc}:{vAcc+3}], v{vER}")
    a(f"ds_read_b128 v[{vAcc+4}:{vAcc+7}], v{vER} offset:16")
    a.c("phase 2: out = bf16(x * gate); most stores write through, a few stay in L2 for the end-of-kernel write-back")
    U = vWD
    for i in range(4):
        a(f"v_lshlrev_b32 v{U+2*i}, 16, v{D+i}")
        a(f"v_and_b32 v{U+2*i+1}, s{sMask}, v{D+i}")
    a(f"s_and_b32 s{sTmp}, s{sDec}, 0x010101")
    a(f"s_bcnt1_i32_b32 s{sTmp}, s{sTmp}")
    a(f"s_cmp_ge_u32 s{sTmp}, {nsw}")
    a("s_waitcnt lgkmcnt(0)")
    stamp("gates")
    def phase2(plain):
        for k in range(NT):
            if k == 0:
                pass
            else:
                for h in range(2):
                    d0, d1 = D + 4 * k + 2 * h, D + 4 * k + 2 * h + 1
                    t = vT if h == 0 else U
                    a(f"v_lshlrev_b32 v{t}, 16, v{d0}")
                    a(f"v_and_b32 v{t+1}, s{sMask}, v{d0}")
                    a(f"v_lshlrev_b32 v{t+2}, 16, v{d1}")
                    a(f"v_and_b32 v{t+3}, s{sMask}, v{d1}")
                    a(f"v_pk_mul_f32 {v2(t)}, {v2(t)}, {v2(vAcc+4*h)}")
                    a(f"v_pk_mul_f32 {v2(t+2)}, {v2(t+2)}, {v2(vAcc+4*h+2)}")
                    a(f"v_cvt_pk_bf16_f32 v{d0}, v{t}, v{t+1}")
                    a(f"v_cvt_pk_bf16_f32 v{d1}, v{t+2}, v{t+3}")
            f = "" if k in plain else " sc1"
            a(f"buffer_store_dwordx4 v[{D+4*k}:{D+4*k+3}], v{vOff}, {srd(sO)}, s{sT} offen{f}")
            step(k)
    for i in range(4):
        a(f"v_pk_mul_f32 {v2(U+2*i)}, {v2(U+2*i)}, {v2(vAcc+2*i)}")
    for i in range(4):
        a(f"v_cvt_pk_bf16_f32 v{D+i}, v{U+2*i}, v{U+2*i+1}")
    a("s_cbranch_scc1 L_through")
    phase2(plain)
    a("s_branch L_stored" if stamps else "s_endpgm")
    a.lab("L_through")
    phase2(set())
    a.lab("L_stored")
    stamp("stissued")
    if stamps:
        a("s_waitcnt vmcnt(0)")
        stamp("done")
        a("s_waitcnt lgkmcnt(0)")
    if diag is not None:
        if diag == "dec":
            a(f"s_and_b32 s{sTmp}, s{sDec}, 0x010101")
            a(f"s_bcnt1_i32_b32 s{sTmp}, s{sTmp}")
            a(f"s_mul_i32 s{sTmp}, s{sTmp}, 2000")
            a(f"s_add_u32 s{sTmp}, s{sTmp}, 5000")
            a(f"s_cmp_eq_u32 s{sSpin}, 0x100001")
            a(f"s_cselect_b32 s{sA}, 10000, 0")
            a(f"s_add_u32 s{sTmp}, s{sTmp}, s{sA}")
        else:
            i = names.index(diag)
            a(f"s_sub_u32 s{sTmp}, s{sSt+2*i}, s{sSt}")
            a(f"s_mul_i32 s{sTmp}, s{sTmp}, {amp}")
            if diag in ("have", "c_probe"):
                a(f"s_cmp_eq_u32 s{sW}, 0")
                a(f"s_cselect_b32 s{sTmp}, s{sTmp}, 0")
            if diag == "c_probe":
                a(f"s_cmp_lt_u32 s2, {ncontr}")
                a(f"s_cselect_b32 s{sTmp}, s{sTmp}, 0")
        a(f"s_min_u32 s{sTmp}, s{sTmp}, 200000")
        a.lab("L_diag")
        a(f"s_memrealtime s[{sSt+2}:{sSt+3}]")
        a("s_waitcnt lgkmcnt(0)")
        a(f"s_sub_u32 s{sSt+2}, s{sSt+2}, s{sSt}")
        a(f"s_cmp_lt_u32 s{sSt+2}, s{sTmp}")
        a("s_cbranch_scc1 L_diag")
    elif stamps:
        a(f"v_mov_b32 v{vT}, 0")
        a(f"v_mov_b32 v{vT+1}, 0")
        for i in range(len(names)):
            a(f"v_writelane_b32 v{vT}, s{sSt+2*i}, {i}")
            a(f"v_writelane_b32 v{vT+1}, s{sSt+2*i+1}, {i}")
        a(f"s_mul_i32 s{sTmp}, s2, 12")
        a(f"s_add_u32 s{sTmp}, s{sTmp}, s{sW}")
        a(f"s_lshl_b32 s{sTmp}, s{sTmp}, 7")
        a(f"s_add_u32 s{sTmp}, s{sTmp}, {STAMP_OFF}")
        a(f"v_lshlrev_b32 v{vX0}, 3, v{vL}")
        a("s_mov_b64 exec, 0xffff")
        a(f"buffer_store_dwordx2 v[{vT}:{vT+1}], v{vX0}, {srd(sWS)}, s{sTmp} offen")
    a.lab("L_end")
    a("s_endpgm")

    out = HEADER
    out += f"; @launch grid=({NWG},1,1) block=(768,1,1) lds=4368\n"
    if stamps: out += "; stamps: " + " ".join(names) + "\n"
    out += """.amdgcn_target "amdgcn-amd-amdhsa--gfx950"
.text
.globl standalone__se_block__vision_kernel
.p2align 8
.type standalone__se_block__vision_kernel,@function
standalone__se_block__vision_kernel:
"""
    out += a.text()
    out += f""".section .rodata,"a"
.p2align 6
.amdhsa_kernel standalone__se_block__vision_kernel
  .amdhsa_next_free_vgpr 168
  .amdhsa_next_free_sgpr {96 if stamps else 64}
  .amdhsa_accum_offset 168
  .amdhsa_group_segment_fixed_size 0
  .amdhsa_kernarg_size 48
  .amdhsa_user_sgpr_count 2
  .amdhsa_user_sgpr_kernarg_segment_ptr 1
  .amdhsa_system_sgpr_workgroup_id_x 1
  .amdhsa_float_denorm_mode_32 3
.end_amdhsa_kernel
"""
    return out

if __name__ == "__main__":
    from build import build
    name = sys.argv[1]
    kw = {}
    for x in sys.argv[2:]:
        k, v = x.split("=")
        try: v = int(v)
        except ValueError: pass
        kw[k] = v
    open(name, "w").write(gen(**kw))
    print(build(name))
```

```python
import sys, struct
from gen import A, HEADER, NB, NWG, STAMP_OFF

NT = 32
K = 1024
M = 1 << 20

PATS = {
    "g1": (12 * K, 3 * K, 1, 3 * M, 0),
    "k2": (24 * K, 6 * K, 2, 6 * M, 3 * K),
    "k4": (48 * K, 12 * K, 4, 12 * M, 3 * K),
    "k8": (96 * K, 24 * K, 8, 24 * M, 3 * K),
    "qk4": (12 * K, 24 * M, 4, 3 * M, 3 * K),
    "qk8": (24 * K, 24 * M, 8, 6 * M, 3 * K),
}

def gen(pat="k4", ld="nt", stamps=False, wpos=8, spin=1 << 20, barpos=2, slot=128, plmod=6, plpos=0,
        plset=None, win=0, diag=None, vmap='b', theta=120, pre=4, ncontr=24, clr=31, nsw=2, force=None, lanes=1, dbgdec=0, psleep=1, cst=0, nst2=1, pubk='cas', pw='3,7,11', amp=10, addn=0):
    a = A()
    D = 40
    sX, sO, sWS, sDB, sWD, sWU = 4, 8, 12, 16, 20, 24
    sW, sWp, sWq, sT, sBase, sMask, sSpin, sStr, sTmp, sPo, sTk = 28, 29, 30, 31, 32, 33, 34, 36, 38, 40, 42
    sLead = 44
    sPr, sRole, sNeu, s3k, sDec = 46, 47, 48, 49, 35
    sMB, sMS = 50, 54
    sD3, sD4 = 36, 37
    sA, sB = 58, 59
    sSt = 60
    vSl, vL, vOff, vPW, vPR, vPub, vChk, vTk = 0, 1, 2, 3, 4, 5, 6, 7
    vAcc, vT, vWD, vWU, vX0, vX1 = 8, 16, 20, 32, 38, 39
    def srd(s): return f"s[{s}:{s+3}]"
    def p64(s): return f"s[{s}:{s+1}]"
    def v2(r): return f"v[{r}:{r+1}]"
    names = []
    def stamp(n):
        if stamps:
            i = len(names)
            a(f"s_memrealtime s[{sSt+2*i}:{sSt+2*i+1}]")
            names.append(n)
    ldf = (" " + ld) if ld else ""
    SU = 48 * K
    P_, Q_, R_ = {"a": (4, 1, 512), "b": (1, 512, 128), "d": (1, 128, 512)}[vmap]
    assert sorted(pr * P_ + wq * Q_ + m * R_ for pr in range(128) for wq in range(4) for m in range(4)) == list(range(2048))
    dl = [1, 1, 3, 1, 1, 4, 1]
    L0 = [0]
    for d in dl: L0.append(L0[-1] + d)
    assert sorted(L0 + [15 - u for u in L0]) == list(range(16))
    LS = slot.bit_length() - 1
    plain = set(int(x) for x in plset.split(",")) if plset else set(k for k in range(NT) if plmod and k % plmod == plpos)

    a.c("workgroups past the 256 that carry data leave at once")
    a(f"s_cmp_ge_u32 s2, {NWG}")
    a("s_cbranch_scc1 L_end")
    for (s, off) in ((sX, 0), (sWS, 40), (sDB, 32), (sWD, 8), (sWU, 16), (sO, 24)):
        a(f"s_load_dwordx2 {p64(s)}, s[0:1], {off}")
    stamp("entry")
    a.c("wave w = 3*wq + wp; lane l reads 16 bytes: row (l>>3) of an 8-row group, bytes wp*128 + (l&7)*16")
    a(f"v_lshrrev_b32 v{vX0}, 6, v0")
    a(f"v_and_b32 v{vL}, 63, v0")
    a(f"v_readfirstlane_b32 s{sW}, v{vX0}")
    a(f"v_lshrrev_b32 v{vX0}, 3, v{vL}")
    a(f"v_and_b32 v{vX1}, 7, v{vL}")
    a(f"v_mul_u32_u24 v{vOff}, 384, v{vX0}")
    a(f"v_lshl_add_u32 v{vOff}, v{vX1}, 4, v{vOff}")
    a(f"s_mul_i32 s{sWq}, s{sW}, 43")
    a(f"s_lshr_b32 s{sWq}, s{sWq}, 7")
    a(f"s_mul_i32 s{sTmp}, s{sWq}, 3")
    a(f"s_sub_u32 s{sWp}, s{sW}, s{sTmp}")
    a.c("workgroups id and id^4 form a pair that shares 48 KiB spans (16 units of 8 rows, 8 units each)")
    a(f"s_bfe_u32 s{sRole}, s2, 0x10002")
    a(f"s_and_b32 s{sPr}, s2, 3")
    a(f"s_lshr_b32 s{sTmp}, s2, 3")
    a(f"s_lshl_b32 s{sTmp}, s{sTmp}, 2")
    a(f"s_or_b32 s{sPr}, s{sPr}, s{sTmp}")
    a(f"s_mul_i32 s{sBase}, s{sPr}, {P_ * SU}")
    a(f"s_mul_i32 s{sTmp}, s{sWq}, {Q_ * SU}")
    a(f"s_add_u32 s{sBase}, s{sBase}, s{sTmp}")
    a(f"s_lshl_b32 s{sTmp}, s{sWp}, 7")
    a(f"s_add_u32 s{sBase}, s{sBase}, s{sTmp}")
    a(f"s_movk_i32 s{s3k}, 3072")
    a(f"s_xor_b32 s{sNeu}, s{sPr}, s{sWq}")
    a(f"s_xor_b32 s{sNeu}, s{sNeu}, s{sRole}")
    def addr(m):
        a(f"s_add_u32 s{sMB+m}, s{sBase}, {m * R_ * SU}")
        if m == 0:
            a(f"s_bitcmp1_b32 s{sNeu}, 0")
        else:
            a(f"s_add_u32 s{sA}, s{sMB+m}, {24 * K}")
            a(f"s_lshr_b32 s{sB}, s{sA}, 25")
            a(f"s_lshr_b32 s{sA}, s{sA}, 21")
            a(f"s_lshl_b32 s{sB}, s{sB}, 3")
            a(f"s_lshr_b32 s{sB}, s{sDec}, s{sB}")
            a(f"s_xor_b32 s{sA}, s{sA}, s{sRole}")
            a(f"s_lshr_b32 s{sTmp}, s{sB}, 1")
            a(f"s_xor_b32 s{sA}, s{sA}, s{sTmp}")
            a(f"s_xor_b32 s{sTmp}, s{sNeu}, {m & 1}")
            a(f"s_bitcmp1_b32 s{sB}, 0")
            a(f"s_cselect_b32 s{sA}, s{sA}, s{sTmp}")
            a(f"s_bitcmp1_b32 s{sA}, 0")
        a(f"s_cselect_b32 s{sA}, {15 * 3072}, 0")
        a(f"s_cselect_b32 s{sMS+m}, {(-3072) & 0xffffffff}, s{s3k}")
        a(f"s_add_u32 s{sMB+m}, s{sMB+m}, s{sA}")
    def start(m):
        a(f"s_mov_b32 s{sT}, s{sMB+m}")
        a(f"s_mul_i32 s{sD3}, s{sMS+m}, 3")
        a(f"s_lshl_b32 s{sD4}, s{sMS+m}, 2")
    def step(k):
        m, n = divmod(k, 8)
        if n < 7:
            a(f"s_add_u32 s{sT}, s{sT}, s{ {1: sMS + m, 3: sD3, 4: sD4}[dl[n]] }")
        elif m < 3:
            start(m + 1)
    addr(0)
    start(0)
    for (s, n) in ((sX, NB), (sWS, (2 << 20) if stamps else 256 * slot), (sDB, 256), (sWD, 4608), (sWU, 4608), (sO, NB)):
        a(f"s_mov_b32 s{s+2}, {n}")
        a(f"s_mov_b32 s{s+3}, 0x00020000")
    a.c("hand-off slots in d_ws: one line per workgroup; lane l covers slot (l>>2), bytes (l&3)*16")
    a(f"v_lshrrev_b32 v{vX0}, 2, v{vL}")
    a(f"v_and_b32 v{vX1}, 3, v{vL}")
    a(f"v_lshlrev_b32 v{vX0}, {LS}, v{vX0}")
    a(f"v_lshl_add_u32 v{vSl}, v{vX1}, 4, v{vX0}")
    a(f"v_mov_b32 v{vTk}, 0")
    a(f"ds_write_b32 v{vTk}, v{vTk} offset:4352")
    a(f"ds_write_b32 v{vTk}, v{vTk} offset:4356")
    a.c("placement probe (wave 0 of the first workgroups): two loads 8 KiB apart; a late second return shows it lives on the other die")
    a(f"s_cmp_ge_u32 s{sPr}, 6")
    a(f"s_cselect_b32 s{sTk}, 1, 0")
    a(f"s_cselect_b32 s{sTmp}, 6, 0")
    a(f"s_sub_u32 s{sLead}, s{sPr}, s{sTmp}")
    a(f"s_lshr_b32 s{sA}, s{sLead}, 1")
    a(f"s_lshl_b32 s{sA}, s{sA}, 25")
    a(f"s_mul_i32 s{sTmp}, s{sTk}, {16 * M + 0x2000}")
    a(f"s_add_u32 s{sA}, s{sA}, s{sTmp}")
    a(f"s_mul_i32 s{sTmp}, s2, {0x4000 + 0x500}")
    a(f"s_and_b32 s{sTmp}, s{sTmp}, 0xfdf00")
    a(f"s_add_u32 s{sA}, s{sA}, s{sTmp}")
    a(f"s_add_u32 s{sA}, s{sA}, {8 * M}")
    a(f"s_xor_b32 s{sB}, s{sA}, 0x2000")
    a(f"s_cmp_ge_u32 s2, {ncontr}")
    a("s_waitcnt lgkmcnt(0)")
    stamp("karg")
    a("s_cbranch_scc1 L_noprobe")
    a(f"s_cmp_lg_u32 s{sW}, 0")
    a("s_cbranch_scc1 L_probe_done")
    a("s_mov_b64 exec, 1")
    a(f"s_bitcmp1_b32 s{sLead}, 0")
    a("s_cbranch_scc1 L_probe_out")
    a(f"buffer_load_dword v{vX0}, v{vTk}, {srd(sX)}, s{sA} offen nt")
    a(f"buffer_load_dword v{vX1}, v{vTk}, {srd(sX)}, s{sB} offen nt")
    a("s_branch L_probe_wait")
    a.lab("L_probe_out")
    a(f"buffer_load_dword v{vX0}, v{vTk}, {srd(sO)}, s{sA} offen nt")
    a(f"buffer_load_dword v{vX1}, v{vTk}, {srd(sO)}, s{sB} offen nt")
    a.lab("L_probe_wait")
    a("s_barrier")
    a("s_waitcnt vmcnt(1)")
    a(f"s_memtime s[{sA}:{sA+1}]")
    a("s_waitcnt vmcnt(0)")
    a(f"s_memtime s[{sPo}:{sPo+1}]")
    if cst: stamp("c_probe")
    a.c("word 4*statistic + 2*copy + role of d_debug <- valid | ((die id - workgroup id) & 7) << 16 | (signed delay + 1024)")
    a(f"s_getreg_b32 s{sDec}, hwreg(HW_REG_XCC_ID, 0, 3)")
    a(f"s_sub_u32 s{sLead+1}, s{sDec}, s2")
    a(f"s_and_b32 s{sLead+1}, s{sLead+1}, 7")
    a(f"s_lshl_b32 s{sLead+1}, s{sLead+1}, 16")
    a(f"s_or_b32 s{sLead+1}, s{sLead+1}, 0x80000400")
    a(f"s_lshr_b32 s{sDec}, s{sDec}, 2")
    a(f"s_lshl_b32 s{sLead}, s{sLead}, 1")
    a(f"s_add_u32 s{sLead}, s{sLead}, s{sTk}")
    a(f"s_lshl_b32 s{sLead}, s{sLead}, 1")
    a(f"s_add_u32 s{sLead}, s{sLead}, s{sRole}")
    a(f"s_lshl_b32 s{sLead}, s{sLead}, 2")
    a(f"s_xor_b32 s{sTmp}, s{sTk}, s{sDec}")
    a(f"v_mov_b32 v{vT+1}, 0")
    a("s_waitcnt lgkmcnt(0)")
    a(f"s_sub_u32 s{sA}, s{sPo}, s{sA}")
    a(f"s_min_u32 s{sA}, s{sA}, 600")
    a(f"s_sub_u32 s{sB}, 0, s{sA}")
    a(f"s_cmp_lg_u32 s{sTmp}, 0")
    a(f"s_cselect_b32 s{sA}, s{sB}, s{sA}")
    a(f"s_add_u32 s{sA}, s{sA}, s{sLead+1}")
    a(f"v_mov_b32 v{vT}, s{sA}")
    if pubk == "cas":
        a(f"buffer_atomic_cmpswap v[{vT}:{vT+1}], v{vTk}, {srd(sDB)}, s{sLead} offen")
    else:
        a(f"buffer_store_dword v{vT}, v{vTk}, {srd(sDB)}, s{sLead} offen sc1")
    a.lab("L_probe_end")
    a("s_mov_b64 exec, -1")
    a("s_branch L_noprobe")
    a.lab("L_probe_done")
    a("s_barrier")
    a.lab("L_noprobe")
    a.c("one workgroup, wave 0: set every slot to the 'empty' marker; the flag in d_debug follows once these landed")
    a(f"s_xor_b32 s{sTmp}, s2, {clr}")
    a(f"s_or_b32 s{sTmp}, s{sTmp}, s{sW}")
    a("s_cbranch_scc1 L_noclear")
    for i in range(4):
        a(f"v_mov_b32 v{vT+i}, -1")
    for i in range(16):
        a(f"s_mov_b32 s{sTmp}, {16*slot*i}")
        a(f"buffer_store_dwordx4 v[{vT}:{vT+3}], v{vSl}, {srd(sWS)}, s{sTmp} offen sc1")
    a.lab("L_noclear")

    order = []
    def load(k):
        a(f"buffer_load_dwordx4 v[{D+4*k}:{D+4*k+3}], v{vOff}, {srd(sX)}, s{sT} offen{ldf}")
        if k != 7: step(k)
        order.append(k)
    for k in range(pre):
        load(k)
    a.c("the LDS ticket is zero before any wave can take one")
    a(f"s_xor_b32 s{sTmp}, s2, {clr}")
    a(f"s_or_b32 s{sTmp}, s{sTmp}, s{sW}")
    a("s_barrier")
    a("s_cbranch_scc1 L_noflagset")
    a(f"v_mov_b32 v{vX1}, 1")
    a("s_waitcnt vmcnt(0)")
    a("s_mov_b64 exec, 1")
    a(f"buffer_store_dword v{vX1}, v{vTk}, {srd(sDB)}, 0 offen offset:192 sc1")
    a("s_mov_b64 exec, -1")
    a.lab("L_noflagset")
    for k in range(pre, 8):
        load(k)
    a.c("weights: w_down row of channel 64*wp + 8*(l&7) + (l>>3); w_up dwords (row 2m + (l>>5), channels 64*wp + 2*(l&31), +1)")
    a(f"v_lshrrev_b32 v{vX0}, 3, v{vL}")
    a(f"v_and_b32 v{vX1}, 7, v{vL}")
    a(f"v_lshl_add_u32 v{vX0}, v{vX1}, 3, v{vX0}")
    a(f"v_mul_u32_u24 v{vX0}, 24, v{vX0}")
    a(f"s_mul_i32 s{sTmp}, s{sWp}, 1536")
    a(f"buffer_load_dwordx4 v[{vWD+6}:{vWD+9}], v{vX0}, {srd(sWD)}, s{sTmp} offen")
    a(f"buffer_load_dwordx2 v[{vWD+10}:{vWD+11}], v{vX0}, {srd(sWD)}, s{sTmp} offen offset:16")
    a(f"v_lshrrev_b32 v{vX0}, 5, v{vL}")
    a(f"v_and_b32 v{vX1}, 31, v{vL}")
    a(f"v_mul_u32_u24 v{vX0}, 384, v{vX0}")
    a(f"v_lshl_add_u32 v{vX0}, v{vX1}, 2, v{vX0}")
    a(f"s_lshl_b32 s{sTmp}, s{sWp}, 7")
    for m in range(6):
        a(f"buffer_load_dword v{vWU+m}, v{vX0}, {srd(sWU)}, s{sTmp} offen offset:{768*m}")
    a(f"s_mov_b32 s{sSpin}, {spin}")
    if not cst: stamp("static")
    a.c("the placement word decides which units of the remaining spans this workgroup takes")
    def lpoll(tag):
        a.lab(f"L_dec{tag}")
        a(f"ds_read_b32 v{vChk}, v{vTk} offset:4356")
        a("s_waitcnt lgkmcnt(0)")
        a(f"v_readfirstlane_b32 s{sDec}, v{vChk}")
        a("s_nop 3")
        a(f"s_cmp_lt_i32 s{sDec}, 0")
        a(f"s_cbranch_scc1 L_dec_ok{tag}")
        a(f"s_sleep {psleep}")
        a(f"s_sub_u32 s{sSpin}, s{sSpin}, 1")
        a(f"s_cbranch_scc0 L_dec{tag}")
    order.extend(["w"] * 8)
    a(f"s_mov_b32 s{sDec}, 0")
    a(f"s_cmp_lt_u32 s{sWq}, {nst2}")
    a("s_cbranch_scc1 L_dec_okA")
    lpoll("A")
    a.lab("L_dec_okA")
    addr(1)
    start(1)
    for k in range(8, 16):
        a(f"buffer_load_dwordx4 v[{D+4*k}:{D+4*k+3}], v{vOff}, {srd(sX)}, s{sT} offen{ldf}")
        if k != 15: step(k)
        order.append(k)
    a(f"s_cmp_ge_u32 s{sWq}, {nst2}")
    a("s_cbranch_scc1 L_dec_okB")
    a(f"s_cmp_lg_u32 s{sW}, 0")
    a("s_cbranch_scc1 L_decB")
    a.c("wave 0 reads the probe words at several moments (the returns queue behind the data) and decides for the workgroup")
    a(f"v_lshlrev_b32 v{vX0}, 2, v{vL}")
    a("s_mov_b64 exec, 0xffffff")
    pws = [int(x) for x in str(pw).split(",")] if pw != "" else []
    NP = len(pws) + 1
    def rd(i): a(f"buffer_load_dword v{vT+i}, v{vX0}, {srd(sDB)}, 0 offen sc1")
    rd(0)
    for i, t in enumerate(pws):
        a(f"s_waitcnt vmcnt({len(order) - 1 - order.index(t) + i + 1})")
        rd(i + 1)
    for i in range(NP):
        a(f"s_waitcnt vmcnt({NP - 1 - i})")
        a(f"v_cmp_le_i32 vcc, 0, v{vT+i}")
        if i: a(f"v_mov_b32 v{vT}, v{vT+i}")
        a("s_cbranch_vccz L_have")
    a.lab("L_again")
    rd(0)
    a("s_waitcnt vmcnt(0)")
    a(f"v_cmp_le_i32 vcc, 0, v{vT}")
    a("s_cbranch_vccz L_have")
    a(f"s_sub_u32 s{sSpin}, s{sSpin}, 1")
    a("s_cbranch_scc0 L_again")
    a.lab("L_have")
    stamp("have") if cst else None
    a(f"v_and_b32 v{vX1}, 0xfff, v{vT}")
    a(f"v_lshrrev_b32 v{vX0}, 16, v{vT}")
    a("s_nop 0")
    a(f"v_add_u32_dpp v{vX1}, v{vX1}, v{vX1} quad_perm:[1,0,3,2] row_mask:0xf bank_mask:0xf")
    a(f"v_readfirstlane_b32 s{sB}, v{vX0}")
    a("s_nop 0")
    a(f"v_add_u32_dpp v{vX1}, v{vX1}, v{vX1} quad_perm:[2,3,0,1] row_mask:0xf bank_mask:0xf")
    a(f"v_cmp_lt_u32 vcc, {4096 + theta}, v{vX1}")
    a(f"s_mov_b32 s{sTmp}, vcc_lo")
    a(f"v_cmp_gt_u32 vcc, {4096 - theta}, v{vX1}")
    a.c("a region is placed when input and output agree; bit 8r: placed, bit 8r+1: direction")
    a(f"s_lshr_b32 s{sA}, s{sTmp}, 4")
    a(f"s_and_b32 s{sTmp}, s{sTmp}, s{sA}")
    a(f"s_lshr_b32 s{sA}, vcc_lo, 4")
    a(f"s_and_b32 s{sA}, s{sA}, vcc_lo")
    a(f"v_cmp_ne_u32 vcc, s{sB}, v{vX0}")
    a(f"s_and_b32 s{sTmp}, s{sTmp}, 0x010101")
    a(f"s_and_b32 s{sA}, s{sA}, 0x030303")
    a(f"s_or_b32 s{sDec}, s{sTmp}, s{sA}")
    a.c("only if every probing workgroup sits where round-robin placement puts it; bit 2 of (id + offset) tells the die of a workgroup")
    a("s_cmp_eq_u32 vcc_lo, 0")
    a(f"s_cselect_b32 s{sDec}, s{sDec}, 0")
    if diag == "dec":
        a(f"s_cselect_b32 s{sSpin+0*1}, s{sSpin}, 0x100001")
    a(f"s_add_u32 s{sB}, s{sB}, s2")
    a(f"s_xor_b32 s{sB}, s{sB}, s2")
    a(f"s_and_b32 s{sB}, s{sB}, 4")
    a(f"s_lshr_b32 s{sB}, s{sB}, 1")
    a(f"s_mul_i32 s{sB}, s{sB}, 0x010101")
    a(f"s_xor_b32 s{sDec}, s{sDec}, s{sB}")
    if force is not None: a(f"s_mov_b32 s{sDec}, {force}")
    a(f"s_bitset1_b32 s{sDec}, 31")
    a(f"v_mov_b32 v{vX0}, s{sDec}")
    a(f"ds_write_b32 v{vTk}, v{vX0} offset:4356")
    if dbgdec:
        a(f"buffer_store_dword v{vX0}, v{vTk}, {srd(sDB)}, 0 offen offset:128")
    a("s_mov_b64 exec, -1")
    a("s_branch L_dec_okB")
    lpoll("B")
    a.lab("L_dec_okB")
    stamp("dec")
    for m in range(2, 4): addr(m)
    start(2)
    for k in range(16, NT):
        load(k)
    a.c("wave 0: read the reset flag (it returns behind the data)")
    a(f"s_cmp_lg_u32 s{sW}, 0")
    a("s_cbranch_scc1 L_noflag")
    a(f"buffer_load_dword v{vChk}, v{vTk}, {srd(sDB)}, 0 offen offset:192 sc1")
    a.lab("L_noflag")
    stamp("issued")
    a.c("LDS: P[12][16] per-wave partials at 0, G[12][8] at 768, gates at 1280, ticket at 4352")
    a(f"s_mov_b32 s{sMask}, 0xffff0000")
    a(f"v_lshrrev_b32 v{vX0}, 4, v{vL}")
    a(f"s_lshl_b32 s{sTmp}, s{sW}, 6")
    a(f"v_lshl_add_u32 v{vPW}, v{vX0}, 4, s{sTmp}")
    a(f"v_and_b32 v{vX1}, 15, v{vL}")
    a(f"v_lshlrev_b32 v{vX1}, 2, v{vX1}")
    a(f"v_lshl_add_u32 v{vPR}, v{vX0}, 6, v{vX1}")
    a(f"s_mov_b32 s{sLead}, 0x00010001")
    a(f"s_mov_b32 s{sLead+1}, 0x00010001")
    a.c("publish address: lanes 0..15 -> this workgroup's slot, word l; the other lanes are out of range")
    a(f"s_lshl_b32 s{sTmp}, s2, {LS}")
    a(f"v_lshl_add_u32 v{vPub}, v{vL}, 2, s{sTmp}")
    a(f"v_cmp_gt_u32 vcc, 16, v{vL}")
    a(f"v_mov_b32 v{vX0}, 0x40000000")
    a(f"v_mov_b32 v{vX1}, 1")
    a(f"v_cndmask_b32 v{vPub}, v{vX0}, v{vPub}, vcc")

    a.c("phase 1: f32 channel sums of this lane's 8 channels; the data stay in v40..v167")
    for k in range(NT):
        if k == 0: a("s_waitcnt vmcnt(16)")
        if k >= 16: a(f"s_waitcnt vmcnt({len(order) - 1 - order.index(k)})")
        if k == 8:
            for i in range(6):
                a(f"v_lshlrev_b32 v{vWD+2*i}, 16, v{vWD+6+i}")
                a(f"v_and_b32 v{vWD+2*i+1}, s{sMask}, v{vWD+6+i}")
        for h in range(2):
            d0, d1 = D + 4 * k + 2 * h, D + 4 * k + 2 * h + 1
            t = vAcc + 4 * h if k == 0 else vT
            a(f"v_lshlrev_b32 v{t}, 16, v{d0}")
            a(f"v_and_b32 v{t+1}, s{sMask}, v{d0}")
            a(f"v_lshlrev_b32 v{t+2}, 16, v{d1}")
            a(f"v_and_b32 v{t+3}, s{sMask}, v{d1}")
            if k:
                a(f"v_pk_add_f32 {v2(vAcc+4*h)}, {v2(vAcc+4*h)}, {v2(vT)}")
                a(f"v_pk_add_f32 {v2(vAcc+4*h+2)}, {v2(vAcc+4*h+2)}, {v2(vT+2)}")
    stamp("loaded")
    a.c("wave 0: the slots must have been reset before this workgroup publishes or trusts a slot")
    a(f"s_cmp_lg_u32 s{sW}, 0")
    a("s_cbranch_scc1 L_chk_ok")
    a.lab("L_chk")
    a(f"v_cmp_eq_u32 vcc, 0, v{vChk}")
    a("s_cbranch_vccz L_chk_ok")
    a("s_sleep 4")
    a(f"buffer_load_dword v{vChk}, v{vTk}, {srd(sDB)}, 0 offen offset:192 sc1")
    a("s_waitcnt vmcnt(0)")
    a(f"s_sub_u32 s{sSpin}, s{sSpin}, 1")
    a("s_cbranch_scc0 L_chk")
    a.lab("L_chk_ok")

    A_ = vAcc
    a.c("8 sums x 8 lane rows -> one channel sum per lane (channel 8*(l&7) + (l>>3))")
    for i in range(4):
        a(f"v_permlane32_swap_b32 v{A_+i}, v{A_+i+4}")
    a(f"v_pk_add_f32 {v2(A_)}, {v2(A_)}, {v2(A_+4)}")
    a(f"v_pk_add_f32 {v2(A_+2)}, {v2(A_+2)}, {v2(A_+6)}")
    a("s_nop 1")
    for i in range(2):
        a(f"v_permlane16_swap_b32 v{A_+i}, v{A_+i+2}")
    a(f"v_pk_add_f32 {v2(A_)}, {v2(A_)}, {v2(A_+2)}")
    a("s_nop 1")
    a(f"v_add_f32_dpp v{A_+2}, v{A_}, v{A_} row_ror:8 row_mask:0xf bank_mask:0x3")
    a("s_nop 1")
    a(f"v_add_f32_dpp v{A_+2}, v{A_+1}, v{A_+1} row_ror:8 row_mask:0xf bank_mask:0xc")
    a.c("times the w_down row, summed over the wave: row r of 16 lanes keeps outputs 3r..3r+2")
    for j in (0, 6, 2, 8, 4, 10):
        a(f"v_pk_mul_f32 {v2(vWD+j)}, {v2(A_+2)}, {v2(vWD+j)} op_sel_hi:[0,1]")
    for i in range(6):
        a(f"v_permlane32_swap_b32 v{vWD+i}, v{vWD+i+6}")
    for i in range(0, 6, 2):
        a(f"v_pk_add_f32 {v2(vWD+i)}, {v2(vWD+i)}, {v2(vWD+i+6)}")
    a("s_nop 1")
    for i in range(3):
        a(f"v_permlane16_swap_b32 v{vWD+i}, v{vWD+i+3}")
    for i in range(3):
        a(f"v_add_f32 v{vWD+i}, v{vWD+i}, v{vWD+i+3}")
    for sh in (8, 4, 2, 1):
        for i in range(3):
            a(f"v_add_f32_dpp v{vWD+i}, v{vWD+i}, v{vWD+i} row_ror:{sh} row_mask:0xf bank_mask:0xf")
    a.c("partials -> LDS, take a ticket, read all partials back (complete for the wave whose ticket is last)")
    a(f"s_mov_b64 exec, {p64(sLead)}")
    a(f"ds_write_b128 v{vPW}, v[{vWD}:{vWD+3}]")
    a("s_mov_b64 exec, 1")
    a(f"ds_add_rtn_u32 v{vX0}, v{vTk}, v{vX1} offset:4352")
    a("s_mov_b64 exec, -1")
    a(f"ds_read_b32 v{vT}, v{vPR}")
    a(f"ds_read_b32 v{vT+1}, v{vPR} offset:256")
    a(f"ds_read_b32 v{vT+2}, v{vPR} offset:512")
    a("s_waitcnt lgkmcnt(0)")
    a(f"v_readfirstlane_b32 s{sTk}, v{vX0}")
    a(f"v_add_f32 v{vT}, v{vT}, v{vT+1}")
    a(f"v_add_f32 v{vT}, v{vT}, v{vT+2}")
    a(f"v_mov_b32 v{vT+1}, v{vT}")
    a(f"s_cmp_lg_u32 s{sTk}, 11")
    a("s_cbranch_scc1 L_nopub")
    a(f"v_permlane32_swap_b32 v{vT}, v{vT+1}")
    a(f"v_add_f32 v{vT}, v{vT}, v{vT+1}")
    a(f"v_mov_b32 v{vT+1}, v{vT}")
    a("s_nop 1")
    a(f"v_permlane16_swap_b32 v{vT}, v{vT+1}")
    a(f"v_add_f32 v{vT}, v{vT}, v{vT+1}")
    a(f"v_min_u32 v{vT}, -2, v{vT}")
    a(f"buffer_store_dword v{vT}, v{vPub}, {srd(sWS)}, 0 offen sc1")
    a.lab("L_nopub")
    stamp("pub")
    vGW, vGR, vEW, vER = vPR, vPub, vTk, vChk
    P = vAcc
    a.c("addresses for the rest, w_up to f32")
    a(f"s_lshl_b32 s{sPo}, s{sW}, {LS+5}")
    a(f"s_add_u32 s{sPo+1}, s{sPo}, {16*slot}")
    a(f"v_lshrrev_b32 v{vX0}, 4, v{vL}")
    a(f"v_and_b32 v{vX1}, 3, v{vL}")
    a(f"v_mad_u32_u24 v{vX0}, v{vX1}, 3, v{vX0}")
    a(f"s_lshl_b32 s{sTmp}, s{sW}, 2")
    a(f"s_add_u32 s{sTmp}, s{sTmp}, 768")
    a(f"v_lshl_add_u32 v{vGW}, v{vX0}, 5, s{sTmp}")
    a(f"v_and_b32 v{vX0}, 15, v{vL}")
    a(f"v_min_u32 v{vX0}, 5, v{vX0}")
    a(f"v_lshrrev_b32 v{vX1}, 5, v{vL}")
    a(f"v_lshl_add_u32 v{vX0}, v{vX0}, 1, v{vX1}")
    a(f"v_lshlrev_b32 v{vGR}, 5, v{vX0}")
    a(f"v_and_b32 v{vX0}, 31, v{vL}")
    a(f"v_lshl_add_u32 v{vX0}, v{vX0}, 1, v{vX1}")
    a(f"s_lshl_b32 s{sTmp}, s{sW}, 8")
    a(f"s_add_u32 s{sTmp}, s{sTmp}, 1280")
    a(f"v_lshl_add_u32 v{vEW}, v{vX0}, 2, s{sTmp}")
    a(f"v_and_b32 v{vX0}, 7, v{vL}")
    a(f"v_lshl_add_u32 v{vER}, v{vX0}, 5, s{sTmp}")
    for m in range(6):
        a(f"v_lshlrev_b32 v{vWD+2*m}, 16, v{vWU+m}")
        a(f"v_and_b32 v{vWD+2*m+1}, s{sMask}, v{vWU+m}")
    a(f"s_mov_b32 s{sLead}, 0x000f000f")
    a(f"s_mov_b32 s{sLead+1}, 0x0000000f")
    start(0)
    a(f"s_cmp_ge_u32 s{sW}, 8")
    a("s_barrier")
    stamp("bar1")
    a("s_cbranch_scc1 L_nopoll")
    a.c("waves 0..7: gather 32 slots each; only the lanes whose words are still 'empty' read again")
    a.lab("L_poll")
    a(f"buffer_load_dwordx3 v[{P}:{P+2}], v{vSl}, {srd(sWS)}, s{sPo} offen sc1")
    a(f"buffer_load_dwordx3 v[{P+4}:{P+6}], v{vSl}, {srd(sWS)}, s{sPo+1} offen sc1")
    a("s_waitcnt vmcnt(0)")
    a(f"v_max3_u32 v{vT}, v{P}, v{P+1}, v{P+2}")
    a(f"v_max3_u32 v{vT+1}, v{P+4}, v{P+5}, v{P+6}")
    a(f"v_max_u32 v{vT}, v{vT}, v{vT+1}")
    a(f"v_cmp_eq_u32 vcc, -1, v{vT}")
    a("s_and_b64 exec, vcc, vcc")
    a("s_cbranch_scc0 L_got")
    a(f"s_sub_u32 s{sSpin}, s{sSpin}, 1")
    a("s_cbranch_scc0 L_poll")
    a.lab("L_got")
    a("s_mov_b64 exec, -1")
    a(f"v_pk_add_f32 {v2(P)}, {v2(P)}, {v2(P+4)}")
    a(f"v_add_f32 v{P+2}, v{P+2}, v{P+6}")
    a("s_nop 1")
    a(f"v_permlane32_swap_b32 v{P}, v{P+2}")
    a(f"v_permlane32_swap_b32 v{P+1}, v{P+3}")
    a(f"v_pk_add_f32 {v2(P)}, {v2(P)}, {v2(P+2)}")
    a("s_nop 1")
    a(f"v_permlane16_swap_b32 v{P}, v{P+1}")
    a(f"v_add_f32 v{P}, v{P}, v{P+1}")
    for sh in (8, 4):
        a("s_nop 1")
        a(f"v_add_f32_dpp v{P}, v{P}, v{P} row_ror:{sh} row_mask:0xf bank_mask:0xf")
    a(f"s_mov_b64 exec, {p64(sLead)}")
    a(f"ds_write_b32 v{vGW}, v{P}")
    a("s_mov_b64 exec, -1")
    a("s_waitcnt lgkmcnt(0)")
    a.lab("L_nopoll")
    stamp("got")
    a("s_barrier")
    stamp("bar2")
    a(f"ds_read_b128 v[{P}:{P+3}], v{vGR} offset:768")
    a(f"ds_read_b128 v[{P+4}:{P+7}], v{vGR} offset:784")
    a("s_waitcnt lgkmcnt(0)")
    a(f"v_pk_add_f32 {v2(P)}, {v2(P)}, {v2(P+4)}")
    a(f"v_pk_add_f32 {v2(P+2)}, {v2(P+2)}, {v2(P+6)}")
    a(f"v_pk_add_f32 {v2(P)}, {v2(P)}, {v2(P+2)}")
    a(f"v_add_f32 v{P}, v{P}, v{P+1}")
    a.c("h = sum / 2^18; silu(h) = h / (1 + 2^(-h*log2 e))")
    c1 = struct.unpack("<I", struct.pack("<f", -1.4426950408889634 / 262144.0))[0]
    a(f"v_mul_f32 v{P+1}, 0x{c1:08x}, v{P}")
    a(f"v_exp_f32 v{P+1}, v{P+1}")
    a(f"v_mul_f32 v{P}, 0x36800000, v{P}")
    a(f"v_add_f32 v{P+1}, 1.0, v{P+1}")
    a(f"v_rcp_f32 v{P+1}, v{P+1}")
    a("s_nop 0")
    a(f"v_mul_f32 v{P}, v{P}, v{P+1}")
    a("s_nop 1")
    a.c("z = silu(h) @ w_up for channel 2*(l&31) + (l>>5); gate = bf16(1 / (1 + 2^(-z*log2 e)))")
    Z = vT
    for m in range(6):
        op = "v_mul_f32_dpp" if m < 2 else "v_fmac_f32_dpp"
        z = Z + 2 * (m & 1)
        a(f"{op} v{z}, v{P}, v{vWD+2*m} row_newbcast:{m} row_mask:0xf bank_mask:0xf")
        a(f"{op} v{z+1}, v{P}, v{vWD+2*m+1} row_newbcast:{m} row_mask:0xf bank_mask:0xf")
    a(f"v_pk_add_f32 {v2(Z)}, {v2(Z)}, {v2(Z+2)}")
    a("s_nop 1")
    a(f"v_permlane32_swap_b32 v{Z}, v{Z+1}")
    a(f"v_add_f32 v{Z}, v{Z}, v{Z+1}")
    a(f"v_mul_f32 v{Z}, 0xbfb8aa3b, v{Z}")
    a(f"v_exp_f32 v{Z}, v{Z}")
    a("s_nop 0")
    a(f"v_add_f32 v{Z}, 1.0, v{Z}")
    a(f"v_rcp_f32 v{Z}, v{Z}")
    a("s_nop 0")
    a(f"v_cvt_pk_bf16_f32 v{Z}, v{Z}, v{Z}")
    a(f"v_lshlrev_b32 v{Z}, 16, v{Z}")
    a(f"ds_write_b32 v{vEW}, v{Z}")
    a(f"ds_read_b128 v[{vAcc}:{vAcc+3}], v{vER}")
    a(f"ds_read_b128 v[{vAcc+4}:{vAcc+7}], v{vER} offset:16")
    a.c("phase 2: out = bf16(x * gate); most stores write through, a few stay in L2 for the end-of-kernel write-back")
    U = vWD
    for i in range(4):
        a(f"v_lshlrev_b32 v{U+2*i}, 16, v{D+i}")
        a(f"v_and_b32 v{U+2*i+1}, s{sMask}, v{D+i}")
    a(f"s_and_b32 s{sTmp}, s{sDec}, 0x010101")
    a(f"s_bcnt1_i32_b32 s{sTmp}, s{sTmp}")
    a(f"s_cmp_ge_u32 s{sTmp}, {nsw}")
    a("s_waitcnt lgkmcnt(0)")
    stamp("gates")
    def phase2(plain):
        for k in range(NT):
            if k == 0:
                pass
            else:
                for h in range(2):
                    d0, d1 = D + 4 * k + 2 * h, D + 4 * k + 2 * h + 1
                    t = vT if h == 0 else U
                    a(f"v_lshlrev_b32 v{t}, 16, v{d0}")
                    a(f"v_and_b32 v{t+1}, s{sMask}, v{d0}")
                    a(f"v_lshlrev_b32 v{t+2}, 16, v{d1}")
                    a(f"v_and_b32 v{t+3}, s{sMask}, v{d1}")
                    a(f"v_pk_mul_f32 {v2(t)}, {v2(t)}, {v2(vAcc+4*h)}")
                    a(f"v_pk_mul_f32 {v2(t+2)}, {v2(t+2)}, {v2(vAcc+4*h+2)}")
                    a(f"v_cvt_pk_bf16_f32 v{d0}, v{t}, v{t+1}")
                    a(f"v_cvt_pk_bf16_f32 v{d1}, v{t+2}, v{t+3}")
            f = "" if k in plain else " sc1"
            a(f"buffer_store_dwordx4 v[{D+4*k}:{D+4*k+3}], v{vOff}, {srd(sO)}, s{sT} offen{f}")
            step(k)
    for i in range(4):
        a(f"v_pk_mul_f32 {v2(U+2*i)}, {v2(U+2*i)}, {v2(vAcc+2*i)}")
    for i in range(4):
        a(f"v_cvt_pk_bf16_f32 v{D+i}, v{U+2*i}, v{U+2*i+1}")
    a("s_cbranch_scc1 L_through")
    phase2(plain)
    a("s_branch L_stored" if (stamps or addn) else "s_endpgm")
    a.lab("L_through")
    phase2(set())
    a.lab("L_stored")
    stamp("stissued")
    if addn:
        a("s_waitcnt vmcnt(0)")
        a("s_memrealtime s[60:61]")
        a(f"s_and_b32 s{sTmp}, s{sDec}, 0x010101")
        a(f"s_bcnt1_i32_b32 s{sTmp}, s{sTmp}")
        a(f"s_mul_i32 s{sTmp}, s{sTmp}, 10000")
        a.lab("L_addn")
        a("s_memrealtime s[62:63]")
        a("s_waitcnt lgkmcnt(0)")
        a("s_sub_u32 s62, s62, s60")
        a(f"s_cmp_lt_u32 s62, s{sTmp}")
        a("s_cbranch_scc1 L_addn")
    if stamps:
        a("s_waitcnt vmcnt(0)")
        stamp("done")
        a("s_waitcnt lgkmcnt(0)")
    if diag is not None:
        if diag == "dec":
            a(f"s_and_b32 s{sTmp}, s{sDec}, 0x010101")
            a(f"s_bcnt1_i32_b32 s{sTmp}, s{sTmp}")
            a(f"s_mul_i32 s{sTmp}, s{sTmp}, 2000")
            a(f"s_add_u32 s{sTmp}, s{sTmp}, 5000")
            a(f"s_cmp_eq_u32 s{sSpin}, 0x100001")
            a(f"s_cselect_b32 s{sA}, 10000, 0")
            a(f"s_add_u32 s{sTmp}, s{sTmp}, s{sA}")
        else:
            i = names.index(diag)
            a(f"s_sub_u32 s{sTmp}, s{sSt+2*i}, s{sSt}")
            a(f"s_mul_i32 s{sTmp}, s{sTmp}, {amp}")
            if diag in ("have", "c_probe"):
                a(f"s_cmp_eq_u32 s{sW}, 0")
                a(f"s_cselect_b32 s{sTmp}, s{sTmp}, 0")
            if diag == "c_probe":
                a(f"s_cmp_lt_u32 s2, {ncontr}")
                a(f"s_cselect_b32 s{sTmp}, s{sTmp}, 0")
        a(f"s_min_u32 s{sTmp}, s{sTmp}, 200000")
        a.lab("L_diag")
        a(f"s_memrealtime s[{sSt+2}:{sSt+3}]")
        a("s_waitcnt lgkmcnt(0)")
        a(f"s_sub_u32 s{sSt+2}, s{sSt+2}, s{sSt}")
        a(f"s_cmp_lt_u32 s{sSt+2}, s{sTmp}")
        a("s_cbranch_scc1 L_diag")
    elif stamps:
        a(f"v_mov_b32 v{vT}, 0")
        a(f"v_mov_b32 v{vT+1}, 0")
        for i in range(len(names)):
            a(f"v_writelane_b32 v{vT}, s{sSt+2*i}, {i}")
            a(f"v_writelane_b32 v{vT+1}, s{sSt+2*i+1}, {i}")
        a(f"s_mul_i32 s{sTmp}, s2, 12")
        a(f"s_add_u32 s{sTmp}, s{sTmp}, s{sW}")
        a(f"s_lshl_b32 s{sTmp}, s{sTmp}, 7")
        a(f"s_add_u32 s{sTmp}, s{sTmp}, {STAMP_OFF}")
        a(f"v_lshlrev_b32 v{vX0}, 3, v{vL}")
        a("s_mov_b64 exec, 0xffff")
        a(f"buffer_store_dwordx2 v[{vT}:{vT+1}], v{vX0}, {srd(sWS)}, s{sTmp} offen")
    a.lab("L_end")
    a("s_endpgm")

    out = HEADER
    out += f"; @launch grid=({NWG},1,1) block=(768,1,1) lds=4368\n"
    if stamps: out += "; stamps: " + " ".join(names) + "\n"
    out += """.amdgcn_target "amdgcn-amd-amdhsa--gfx950"
.text
.globl standalone__se_block__vision_kernel
.p2align 8
.type standalone__se_block__vision_kernel,@function
standalone__se_block__vision_kernel:
"""
    out += a.text()
    out += f""".section .rodata,"a"
.p2align 6
.amdhsa_kernel standalone__se_block__vision_kernel
  .amdhsa_next_free_vgpr 168
  .amdhsa_next_free_sgpr {96 if stamps else 64}
  .amdhsa_accum_offset 168
  .amdhsa_group_segment_fixed_size 0
  .amdhsa_kernarg_size 48
  .amdhsa_user_sgpr_count 2
  .amdhsa_user_sgpr_kernarg_segment_ptr 1
  .amdhsa_system_sgpr_workgroup_id_x 1
  .amdhsa_float_denorm_mode_32 3
.end_amdhsa_kernel
"""
    return out

if __name__ == "__main__":
    from build import build
    name = sys.argv[1]
    kw = {}
    for x in sys.argv[2:]:
        k, v = x.split("=")
        try: v = int(v)
        except ValueError: pass
        kw[k] = v
    open(name, "w").write(gen(**kw))
    print(build(name))
```

```python
import sys, struct
from gen import A, HEADER, NB, NWG, STAMP_OFF

NT = 32
K = 1024
M = 1 << 20

PATS = {
    "g1": (12 * K, 3 * K, 1, 3 * M, 0),
    "k2": (24 * K, 6 * K, 2, 6 * M, 3 * K),
    "k4": (48 * K, 12 * K, 4, 12 * M, 3 * K),
    "k8": (96 * K, 24 * K, 8, 24 * M, 3 * K),
    "qk4": (12 * K, 24 * M, 4, 3 * M, 3 * K),
    "qk8": (24 * K, 24 * M, 8, 6 * M, 3 * K),
}

def gen(pat="k4", ld="nt", stamps=False, wpos=8, spin=1 << 20, barpos=2, slot=128, plmod=6, plpos=0,
        plset=None, win=0, diag=None, vmap='b', theta=120, pre=4, ncontr=24, clr=31, nsw=2, force=None, lanes=1, dbgdec=0, psleep=1, cst=0, nst2=1, pubk='cas', pw='3,7,11', amp=10, addn=0):
    a = A()
    D = 40
    sX, sO, sWS, sDB, sWD, sWU = 4, 8, 12, 16, 20, 24
    sW, sWp, sWq, sT, sBase, sMask, sSpin, sStr, sTmp, sPo, sTk = 28, 29, 30, 31, 32, 33, 34, 36, 38, 40, 42
    sLead = 44
    sPr, sRole, sNeu, s3k, sDec = 46, 47, 48, 49, 35
    sMB, sMS = 50, 54
    sD3, sD4 = 36, 37
    sA, sB = 58, 59
    sSt = 60
    vSl, vL, vOff, vPW, vPR, vPub, vChk, vTk = 0, 1, 2, 3, 4, 5, 6, 7
    vAcc, vT, vWD, vWU, vX0, vX1 = 8, 16, 20, 32, 38, 39
    def srd(s): return f"s[{s}:{s+3}]"
    def p64(s): return f"s[{s}:{s+1}]"
    def v2(r): return f"v[{r}:{r+1}]"
    names = []
    def stamp(n):
        if stamps:
            i = len(names)
            a(f"s_memrealtime s[{sSt+2*i}:{sSt+2*i+1}]")
            names.append(n)
    ldf = (" " + ld) if ld else ""
    SU = 48 * K
    P_, Q_, R_ = {"a": (4, 1, 512), "b": (1, 512, 128), "d": (1, 128, 512)}[vmap]
    assert sorted(pr * P_ + wq * Q_ + m * R_ for pr in range(128) for wq in range(4) for m in range(4)) == list(range(2048))
    dl = [1, 1, 3, 1, 1, 4, 1]
    L0 = [0]
    for d in dl: L0.append(L0[-1] + d)
    assert sorted(L0 + [15 - u for u in L0]) == list(range(16))
    LS = slot.bit_length() - 1
    plain = set(int(x) for x in plset.split(",")) if plset else set(k for k in range(NT) if plmod and k % plmod == plpos)

    a.c("workgroups past the 256 that carry data leave at once")
    a(f"s_cmp_ge_u32 s2, {NWG}")
    a("s_cbranch_scc1 L_end")
    for (s, off) in ((sX, 0), (sWS, 40), (sDB, 32), (sWD, 8), (sWU, 16), (sO, 24)):
        a(f"s_load_dwordx2 {p64(s)}, s[0:1], {off}")
    stamp("entry")
    a.c("wave w = 3*wq + wp; lane l reads 16 bytes: row (l>>3) of an 8-row group, bytes wp*128 + (l&7)*16")
    a(f"v_lshrrev_b32 v{vX0}, 6, v0")
    a(f"v_and_b32 v{vL}, 63, v0")
    a(f"v_readfirstlane_b32 s{sW}, v{vX0}")
    a(f"v_lshrrev_b32 v{vX0}, 3, v{vL}")
    a(f"v_and_b32 v{vX1}, 7, v{vL}")
    a(f"v_mul_u32_u24 v{vOff}, 384, v{vX0}")
    a(f"v_lshl_add_u32 v{vOff}, v{vX1}, 4, v{vOff}")
    a(f"s_mul_i32 s{sWq}, s{sW}, 43")
    a(f"s_lshr_b32 s{sWq}, s{sWq}, 7")
    a(f"s_mul_i32 s{sTmp}, s{sWq}, 3")
    a(f"s_sub_u32 s{sWp}, s{sW}, s{sTmp}")
    a.c("workgroups id and id^4 form a pair that shares 48 KiB spans (16 units of 8 rows, 8 units each)")
    a(f"s_bfe_u32 s{sRole}, s2, 0x10002")
    a(f"s_and_b32 s{sPr}, s2, 3")
    a(f"s_lshr_b32 s{sTmp}, s2, 3")
    a(f"s_lshl_b32 s{sTmp}, s{sTmp}, 2")
    a(f"s_or_b32 s{sPr}, s{sPr}, s{sTmp}")
    a(f"s_mul_i32 s{sBase}, s{sPr}, {P_ * SU}")
    a(f"s_mul_i32 s{sTmp}, s{sWq}, {Q_ * SU}")
    a(f"s_add_u32 s{sBase}, s{sBase}, s{sTmp}")
    a(f"s_lshl_b32 s{sTmp}, s{sWp}, 7")
    a(f"s_add_u32 s{sBase}, s{sBase}, s{sTmp}")
    a(f"s_movk_i32 s{s3k}, 3072")
    a(f"s_xor_b32 s{sNeu}, s{sPr}, s{sWq}")
    a(f"s_xor_b32 s{sNeu}, s{sNeu}, s{sRole}")
    def addr(m):
        a(f"s_add_u32 s{sMB+m}, s{sBase}, {m * R_ * SU}")
        if m == 0:
            a(f"s_bitcmp1_b32 s{sNeu}, 0")
        else:
            a(f"s_add_u32 s{sA}, s{sMB+m}, {24 * K}")
            a(f"s_lshr_b32 s{sB}, s{sA}, 25")
            a(f"s_lshr_b32 s{sA}, s{sA}, 21")
            a(f"s_lshl_b32 s{sB}, s{sB}, 3")
            a(f"s_lshr_b32 s{sB}, s{sDec}, s{sB}")
            a(f"s_xor_b32 s{sA}, s{sA}, s{sRole}")
            a(f"s_lshr_b32 s{sTmp}, s{sB}, 1")
            a(f"s_xor_b32 s{sA}, s{sA}, s{sTmp}")
            a(f"s_xor_b32 s{sTmp}, s{sNeu}, {m & 1}")
            a(f"s_bitcmp1_b32 s{sB}, 0")
            a(f"s_cselect_b32 s{sA}, s{sA}, s{sTmp}")
            a(f"s_bitcmp1_b32 s{sA}, 0")
        a(f"s_cselect_b32 s{sA}, {15 * 3072}, 0")
        a(f"s_cselect_b32 s{sMS+m}, {(-3072) & 0xffffffff}, s{s3k}")
        a(f"s_add_u32 s{sMB+m}, s{sMB+m}, s{sA}")
    def start(m):
        a(f"s_mov_b32 s{sT}, s{sMB+m}")
        a(f"s_mul_i32 s{sD3}, s{sMS+m}, 3")
        a(f"s_lshl_b32 s{sD4}, s{sMS+m}, 2")
    def step(k):
        m, n = divmod(k, 8)
        if n < 7:
            a(f"s_add_u32 s{sT}, s{sT}, s{ {1: sMS + m, 3: sD3, 4: sD4}[dl[n]] }")
        elif m < 3:
            start(m + 1)
    addr(0)
    start(0)
    for (s, n) in ((sX, NB), (sWS, (2 << 20) if stamps else 256 * slot), (sDB, 256), (sWD, 4608), (sWU, 4608), (sO, NB)):
        a(f"s_mov_b32 s{s+2}, {n}")
        a(f"s_mov_b32 s{s+3}, 0x00020000")
    a.c("hand-off slots in d_ws: one line per workgroup; lane l covers slot (l>>2), bytes (l&3)*16")
    a(f"v_lshrrev_b32 v{vX0}, 2, v{vL}")
    a(f"v_and_b32 v{vX1}, 3, v{vL}")
    a(f"v_lshlrev_b32 v{vX0}, {LS}, v{vX0}")
    a(f"v_lshl_add_u32 v{vSl}, v{vX1}, 4, v{vX0}")
    a(f"v_mov_b32 v{vTk}, 0")
    a(f"ds_write_b32 v{vTk}, v{vTk} offset:4352")
    a(f"ds_write_b32 v{vTk}, v{vTk} offset:4356")
    a.c("placement probe (wave 0 of the first workgroups): two loads 8 KiB apart; a late second return shows it lives on the other die")
    a(f"s_cmp_ge_u32 s{sPr}, 6")
    a(f"s_cselect_b32 s{sTk}, 1, 0")
    a(f"s_cselect_b32 s{sTmp}, 6, 0")
    a(f"s_sub_u32 s{sLead}, s{sPr}, s{sTmp}")
    a(f"s_lshr_b32 s{sA}, s{sLead}, 1")
    a(f"s_lshl_b32 s{sA}, s{sA}, 25")
    a(f"s_mul_i32 s{sTmp}, s{sTk}, {16 * M + 0x2000}")
    a(f"s_add_u32 s{sA}, s{sA}, s{sTmp}")
    a(f"s_mul_i32 s{sTmp}, s2, {0x4000 + 0x500}")
    a(f"s_and_b32 s{sTmp}, s{sTmp}, 0xfdf00")
    a(f"s_add_u32 s{sA}, s{sA}, s{sTmp}")
    a(f"s_add_u32 s{sA}, s{sA}, {8 * M}")
    a(f"s_xor_b32 s{sB}, s{sA}, 0x2000")
    a(f"s_cmp_ge_u32 s2, {ncontr}")
    a("s_waitcnt lgkmcnt(0)")
    stamp("karg")
    a("s_cbranch_scc1 L_noprobe")
    a(f"s_cmp_lg_u32 s{sW}, 0")
    a("s_cbranch_scc1 L_probe_done")
    a("s_mov_b64 exec, 1")
    a(f"s_bitcmp1_b32 s{sLead}, 0")
    a("s_cbranch_scc1 L_probe_out")
    a(f"buffer_load_dword v{vX0}, v{vTk}, {srd(sX)}, s{sA} offen nt")
    a(f"buffer_load_dword v{vX1}, v{vTk}, {srd(sX)}, s{sB} offen nt")
    a("s_branch L_probe_wait")
    a.lab("L_probe_out")
    a(f"buffer_load_dword v{vX0}, v{vTk}, {srd(sO)}, s{sA} offen nt")
    a(f"buffer_load_dword v{vX1}, v{vTk}, {srd(sO)}, s{sB} offen nt")
    a.lab("L_probe_wait")
    a("s_barrier")
    a("s_waitcnt vmcnt(1)")
    a(f"s_memtime s[{sA}:{sA+1}]")
    a("s_waitcnt vmcnt(0)")
    a(f"s_memtime s[{sPo}:{sPo+1}]")
    if cst: stamp("c_probe")
    a.c("word 4*statistic + 2*copy + role of d_debug <- valid | ((die id - workgroup id) & 7) << 16 | (signed delay + 1024)")
    a(f"s_getreg_b32 s{sDec}, hwreg(HW_REG_XCC_ID, 0, 3)")
    a(f"s_sub_u32 s{sLead+1}, s{sDec}, s2")
    a(f"s_and_b32 s{sLead+1}, s{sLead+1}, 7")
    a(f"s_lshl_b32 s{sLead+1}, s{sLead+1}, 16")
    a(f"s_or_b32 s{sLead+1}, s{sLead+1}, 0x80000400")
    a(f"s_lshr_b32 s{sDec}, s{sDec}, 2")
    a(f"s_lshl_b32 s{sLead}, s{sLead}, 1")
    a(f"s_add_u32 s{sLead}, s{sLead}, s{sTk}")
    a(f"s_lshl_b32 s{sLead}, s{sLead}, 1")
    a(f"s_add_u32 s{sLead}, s{sLead}, s{sRole}")
    a(f"s_lshl_b32 s{sLead}, s{sLead}, 2")
    a(f"s_xor_b32 s{sTmp}, s{sTk}, s{sDec}")
    a(f"v_mov_b32 v{vT+1}, 0")
    a("s_waitcnt lgkmcnt(0)")
    a(f"s_sub_u32 s{sA}, s{sPo}, s{sA}")
    a(f"s_min_u32 s{sA}, s{sA}, 600")
    a(f"s_sub_u32 s{sB}, 0, s{sA}")
    a(f"s_cmp_lg_u32 s{sTmp}, 0")
    a(f"s_cselect_b32 s{sA}, s{sB}, s{sA}")
    a(f"s_add_u32 s{sA}, s{sA}, s{sLead+1}")
    a(f"v_mov_b32 v{vT}, s{sA}")
    if pubk == "cas":
        a(f"buffer_atomic_cmpswap v[{vT}:{vT+1}], v{vTk}, {srd(sDB)}, s{sLead} offen")
    else:
        a(f"buffer_store_dword v{vT}, v{vTk}, {srd(sDB)}, s{sLead} offen sc1")
    a.lab("L_probe_end")
    a("s_mov_b64 exec, -1")
    a("s_branch L_noprobe")
    a.lab("L_probe_done")
    a("s_barrier")
    a.lab("L_noprobe")
    a.c("one workgroup, wave 0: set every slot to the 'empty' marker; the flag in d_debug follows once these landed")
    a(f"s_xor_b32 s{sTmp}, s2, {clr}")
    a(f"s_or_b32 s{sTmp}, s{sTmp}, s{sW}")
    a("s_cbranch_scc1 L_noclear")
    for i in range(4):
        a(f"v_mov_b32 v{vT+i}, -1")
    for i in range(16):
        a(f"s_mov_b32 s{sTmp}, {16*slot*i}")
        a(f"buffer_store_dwordx4 v[{vT}:{vT+3}], v{vSl}, {srd(sWS)}, s{sTmp} offen sc1")
    a.lab("L_noclear")

    order = []
    def load(k):
        a(f"buffer_load_dwordx4 v[{D+4*k}:{D+4*k+3}], v{vOff}, {srd(sX)}, s{sT} offen{ldf}")
        if k != 7: step(k)
        order.append(k)
    for k in range(pre):
        load(k)
    a.c("the LDS ticket is zero before any wave can take one")
    a(f"s_xor_b32 s{sTmp}, s2, {clr}")
    a(f"s_or_b32 s{sTmp}, s{sTmp}, s{sW}")
    a("s_barrier")
    a("s_cbranch_scc1 L_noflagset")
    a(f"v_mov_b32 v{vX1}, 1")
    a("s_waitcnt vmcnt(0)")
    a("s_mov_b64 exec, 1")
    a(f"buffer_store_dword v{vX1}, v{vTk}, {srd(sDB)}, 0 offen offset:192 sc1")
    a("s_mov_b64 exec, -1")
    a.lab("L_noflagset")
    for k in range(pre, 8):
        load(k)
    a.c("weights: w_down row of channel 64*wp + 8*(l&7) + (l>>3); w_up dwords (row 2m + (l>>5), channels 64*wp + 2*(l&31), +1)")
    a(f"v_lshrrev_b32 v{vX0}, 3, v{vL}")
    a(f"v_and_b32 v{vX1}, 7, v{vL}")
    a(f"v_lshl_add_u32 v{vX0}, v{vX1}, 3, v{vX0}")
    a(f"v_mul_u32_u24 v{vX0}, 24, v{vX0}")
    a(f"s_mul_i32 s{sTmp}, s{sWp}, 1536")
    a(f"buffer_load_dwordx4 v[{vWD+6}:{vWD+9}], v{vX0}, {srd(sWD)}, s{sTmp} offen")
    a(f"buffer_load_dwordx2 v[{vWD+10}:{vWD+11}], v{vX0}, {srd(sWD)}, s{sTmp} offen offset:16")
    a(f"v_lshrrev_b32 v{vX0}, 5, v{vL}")
    a(f"v_and_b32 v{vX1}, 31, v{vL}")
    a(f"v_mul_u32_u24 v{vX0}, 384, v{vX0}")
    a(f"v_lshl_add_u32 v{vX0}, v{vX1}, 2, v{vX0}")
    a(f"s_lshl_b32 s{sTmp}, s{sWp}, 7")
    for m in range(6):
        a(f"buffer_load_dword v{vWU+m}, v{vX0}, {srd(sWU)}, s{sTmp} offen offset:{768*m}")
    a(f"s_mov_b32 s{sSpin}, {spin}")
    if not cst: stamp("static")
    a.c("the placement word decides which units of the remaining spans this workgroup takes")
    def lpoll(tag):
        a.lab(f"L_dec{tag}")
        a(f"ds_read_b32 v{vChk}, v{vTk} offset:4356")
        a("s_waitcnt lgkmcnt(0)")
        a(f"v_readfirstlane_b32 s{sDec}, v{vChk}")
        a("s_nop 3")
        a(f"s_cmp_lt_i32 s{sDec}, 0")
        a(f"s_cbranch_scc1 L_dec_ok{tag}")
        a(f"s_sleep {psleep}")
        a(f"s_sub_u32 s{sSpin}, s{sSpin}, 1")
        a(f"s_cbranch_scc0 L_dec{tag}")
    order.extend(["w"] * 8)
    a(f"s_mov_b32 s{sDec}, 0")
    a(f"s_cmp_lt_u32 s{sWq}, {nst2}")
    a("s_cbranch_scc1 L_dec_okA")
    lpoll("A")
    a.lab("L_dec_okA")
    addr(1)
    start(1)
    for k in range(8, 16):
        a(f"buffer_load_dwordx4 v[{D+4*k}:{D+4*k+3}], v{vOff}, {srd(sX)}, s{sT} offen{ldf}")
        if k != 15: step(k)
        order.append(k)
    a(f"s_cmp_ge_u32 s{sWq}, {nst2}")
    a("s_cbranch_scc1 L_dec_okB")
    a(f"s_cmp_lg_u32 s{sW}, 0")
    a("s_cbranch_scc1 L_decB")
    a.c("wave 0 reads the probe words at several moments (the returns queue behind the data) and decides for the workgroup")
    a(f"v_lshlrev_b32 v{vX0}, 2, v{vL}")
    a("s_mov_b64 exec, 0xffffff")
    pws = [int(x) for x in str(pw).split(",")] if pw != "" else []
    NP = len(pws) + 1
    def rd(i): a(f"buffer_load_dword v{vT+i}, v{vX0}, {srd(sDB)}, 0 offen sc1")
    rd(0)
    for i, t in enumerate(pws):
        a(f"s_waitcnt vmcnt({len(order) - 1 - order.index(t) + i + 1})")
        rd(i + 1)
    for i in range(NP):
        a(f"s_waitcnt vmcnt({NP - 1 - i})")
        a(f"v_cmp_le_i32 vcc, 0, v{vT+i}")
        if i: a(f"v_mov_b32 v{vT}, v{vT+i}")
        a("s_cbranch_vccz L_have")
    a.lab("L_again")
    rd(0)
    a("s_waitcnt vmcnt(0)")
    a(f"v_cmp_le_i32 vcc, 0, v{vT}")
    a("s_cbranch_vccz L_have")
    a(f"s_sub_u32 s{sSpin}, s{sSpin}, 1")
    a("s_cbranch_scc0 L_again")
    a.lab("L_have")
    stamp("have") if cst else None
    a(f"v_and_b32 v{vX1}, 0xfff, v{vT}")
    a(f"v_lshrrev_b32 v{vX0}, 16, v{vT}")
    a("s_nop 0")
    a(f"v_add_u32_dpp v{vX1}, v{vX1}, v{vX1} quad_perm:[1,0,3,2] row_mask:0xf bank_mask:0xf")
    a(f"v_readfirstlane_b32 s{sB}, v{vX0}")
    a("s_nop 0")
    a(f"v_add_u32_dpp v{vX1}, v{vX1}, v{vX1} quad_perm:[2,3,0,1] row_mask:0xf bank_mask:0xf")
    a(f"v_cmp_lt_u32 vcc, {4096 + theta}, v{vX1}")
    a(f"s_mov_b32 s{sTmp}, vcc_lo")
    a(f"v_cmp_gt_u32 vcc, {4096 - theta}, v{vX1}")
    a.c("a region is placed when input and output agree; bit 8r: placed, bit 8r+1: direction")
    a(f"s_lshr_b32 s{sA}, s{sTmp}, 4")
    a(f"s_and_b32 s{sTmp}, s{sTmp}, s{sA}")
    a(f"s_lshr_b32 s{sA}, vcc_lo, 4")
    a(f"s_and_b32 s{sA}, s{sA}, vcc_lo")
    a(f"v_cmp_ne_u32 vcc, s{sB}, v{vX0}")
    a(f"s_and_b32 s{sTmp}, s{sTmp}, 0x010101")
    a(f"s_and_b32 s{sA}, s{sA}, 0x030303")
    a(f"s_or_b32 s{sDec}, s{sTmp}, s{sA}")
    a.c("only if every probing workgroup sits where round-robin placement puts it; bit 2 of (id + offset) tells the die of a workgroup")
    a("s_cmp_eq_u32 vcc_lo, 0")
    a(f"s_cselect_b32 s{sDec}, s{sDec}, 0")
    if diag == "dec":
        a(f"s_cselect_b32 s{sSpin+0*1}, s{sSpin}, 0x100001")
    a(f"s_add_u32 s{sB}, s{sB}, s2")
    a(f"s_xor_b32 s{sB}, s{sB}, s2")
    a(f"s_and_b32 s{sB}, s{sB}, 4")
    a(f"s_lshr_b32 s{sB}, s{sB}, 1")
    a(f"s_mul_i32 s{sB}, s{sB}, 0x010101")
    a(f"s_xor_b32 s{sDec}, s{sDec}, s{sB}")
    if force is not None: a(f"s_mov_b32 s{sDec}, {force}")
    a(f"s_bitset1_b32 s{sDec}, 31")
    a(f"v_mov_b32 v{vX0}, s{sDec}")
    a(f"ds_write_b32 v{vTk}, v{vX0} offset:4356")
    if dbgdec:
        a(f"buffer_store_dword v{vX0}, v{vTk}, {srd(sDB)}, 0 offen offset:128")
    a("s_mov_b64 exec, -1")
    a("s_branch L_dec_okB")
    lpoll("B")
    a.lab("L_dec_okB")
    stamp("dec")
    for m in range(2, 4): addr(m)
    start(2)
    for k in range(16, NT):
        load(k)
    a.c("wave 0: read the reset flag (it returns behind the data)")
    a(f"s_cmp_lg_u32 s{sW}, 0")
    a("s_cbranch_scc1 L_noflag")
    a(f"buffer_load_dword v{vChk}, v{vTk}, {srd(sDB)}, 0 offen offset:192 sc1")
    a.lab("L_noflag")
    stamp("issued")
    a.c("LDS: P[12][16] per-wave partials at 0, G[12][8] at 768, gates at 1280, ticket at 4352")
    a(f"s_mov_b32 s{sMask}, 0xffff0000")
    a(f"v_lshrrev_b32 v{vX0}, 4, v{vL}")
    a(f"s_lshl_b32 s{sTmp}, s{sW}, 6")
    a(f"v_lshl_add_u32 v{vPW}, v{vX0}, 4, s{sTmp}")
    a(f"v_and_b32 v{vX1}, 15, v{vL}")
    a(f"v_lshlrev_b32 v{vX1}, 2, v{vX1}")
    a(f"v_lshl_add_u32 v{vPR}, v{vX0}, 6, v{vX1}")
    a(f"s_mov_b32 s{sLead}, 0x00010001")
    a(f"s_mov_b32 s{sLead+1}, 0x00010001")
    a.c("publish address: lanes 0..15 -> this workgroup's slot, word l; the other lanes are out of range")
    a(f"s_lshl_b32 s{sTmp}, s2, {LS}")
    a(f"v_lshl_add_u32 v{vPub}, v{vL}, 2, s{sTmp}")
    a(f"v_cmp_gt_u32 vcc, 16, v{vL}")
    a(f"v_mov_b32 v{vX0}, 0x40000000")
    a(f"v_mov_b32 v{vX1}, 1")
    a(f"v_cndmask_b32 v{vPub}, v{vX0}, v{vPub}, vcc")

    a.c("phase 1: f32 channel sums of this lane's 8 channels; the data stay in v40..v167")
    for k in range(NT):
        if k == 0: a("s_waitcnt vmcnt(16)")
        if k >= 16: a(f"s_waitcnt vmcnt({len(order) - 1 - order.index(k)})")
        if k == 8:
            for i in range(6):
                a(f"v_lshlrev_b32 v{vWD+2*i}, 16, v{vWD+6+i}")
                a(f"v_and_b32 v{vWD+2*i+1}, s{sMask}, v{vWD+6+i}")
        for h in range(2):
            d0, d1 = D + 4 * k + 2 * h, D + 4 * k + 2 * h + 1
            t = vAcc + 4 * h if k == 0 else vT
            a(f"v_lshlrev_b32 v{t}, 16, v{d0}")
            a(f"v_and_b32 v{t+1}, s{sMask}, v{d0}")
            a(f"v_lshlrev_b32 v{t+2}, 16, v{d1}")
            a(f"v_and_b32 v{t+3}, s{sMask}, v{d1}")
            if k:
                a(f"v_pk_add_f32 {v2(vAcc+4*h)}, {v2(vAcc+4*h)}, {v2(vT)}")
                a(f"v_pk_add_f32 {v2(vAcc+4*h+2)}, {v2(vAcc+4*h+2)}, {v2(vT+2)}")
    stamp("loaded")
    a.c("wave 0: the slots must have been reset before this workgroup publishes or trusts a slot")
    a(f"s_cmp_lg_u32 s{sW}, 0")
    a("s_cbranch_scc1 L_chk_ok")
    a.lab("L_chk")
    a(f"v_cmp_eq_u32 vcc, 0, v{vChk}")
    a("s_cbranch_vccz L_chk_ok")
    a("s_sleep 4")
    a(f"buffer_load_dword v{vChk}, v{vTk}, {srd(sDB)}, 0 offen offset:192 sc1")
    a("s_waitcnt vmcnt(0)")
    a(f"s_sub_u32 s{sSpin}, s{sSpin}, 1")
    a("s_cbranch_scc0 L_chk")
    a.lab("L_chk_ok")

    A_ = vAcc
    a.c("8 sums x 8 lane rows -> one channel sum per lane (channel 8*(l&7) + (l>>3))")
    for i in range(4):
        a(f"v_permlane32_swap_b32 v{A_+i}, v{A_+i+4}")
    a(f"v_pk_add_f32 {v2(A_)}, {v2(A_)}, {v2(A_+4)}")
    a(f"v_pk_add_f32 {v2(A_+2)}, {v2(A_+2)}, {v2(A_+6)}")
    a("s_nop 1")
    for i in range(2):
        a(f"v_permlane16_swap_b32 v{A_+i}, v{A_+i+2}")
    a(f"v_pk_add_f32 {v2(A_)}, {v2(A_)}, {v2(A_+2)}")
    a("s_nop 1")
    a(f"v_add_f32_dpp v{A_+2}, v{A_}, v{A_} row_ror:8 row_mask:0xf bank_mask:0x3")
    a("s_nop 1")
    a(f"v_add_f32_dpp v{A_+2}, v{A_+1}, v{A_+1} row_ror:8 row_mask:0xf bank_mask:0xc")
    a.c("times the w_down row, summed over the wave: row r of 16 lanes keeps outputs 3r..3r+2")
    for j in (0, 6, 2, 8, 4, 10):
        a(f"v_pk_mul_f32 {v2(vWD+j)}, {v2(A_+2)}, {v2(vWD+j)} op_sel_hi:[0,1]")
    for i in range(6):
        a(f"v_permlane32_swap_b32 v{vWD+i}, v{vWD+i+6}")
    for i in range(0, 6, 2):
        a(f"v_pk_add_f32 {v2(vWD+i)}, {v2(vWD+i)}, {v2(vWD+i+6)}")
    a("s_nop 1")
    for i in range(3):
        a(f"v_permlane16_swap_b32 v{vWD+i}, v{vWD+i+3}")
    for i in range(3):
        a(f"v_add_f32 v{vWD+i}, v{vWD+i}, v{vWD+i+3}")
    for sh in (8, 4, 2, 1):
        for i in range(3):
            a(f"v_add_f32_dpp v{vWD+i}, v{vWD+i}, v{vWD+i} row_ror:{sh} row_mask:0xf bank_mask:0xf")
    a.c("partials -> LDS, take a ticket, read all partials back (complete for the wave whose ticket is last)")
    a(f"s_mov_b64 exec, {p64(sLead)}")
    a(f"ds_write_b128 v{vPW}, v[{vWD}:{vWD+3}]")
    a("s_mov_b64 exec, 1")
    a(f"ds_add_rtn_u32 v{vX0}, v{vTk}, v{vX1} offset:4352")
    a("s_mov_b64 exec, -1")
    a(f"ds_read_b32 v{vT}, v{vPR}")
    a(f"ds_read_b32 v{vT+1}, v{vPR} offset:256")
    a(f"ds_read_b32 v{vT+2}, v{vPR} offset:512")
    a("s_waitcnt lgkmcnt(0)")
    a(f"v_readfirstlane_b32 s{sTk}, v{vX0}")
    a(f"v_add_f32 v{vT}, v{vT}, v{vT+1}")
    a(f"v_add_f32 v{vT}, v{vT}, v{vT+2}")
    a(f"v_mov_b32 v{vT+1}, v{vT}")
    a(f"s_cmp_lg_u32 s{sTk}, 11")
    a("s_cbranch_scc1 L_nopub")
    a(f"v_permlane32_swap_b32 v{vT}, v{vT+1}")
    a(f"v_add_f32 v{vT}, v{vT}, v{vT+1}")
    a(f"v_mov_b32 v{vT+1}, v{vT}")
    a("s_nop 1")
    a(f"v_permlane16_swap_b32 v{vT}, v{vT+1}")
    a(f"v_add_f32 v{vT}, v{vT}, v{vT+1}")
    a(f"v_min_u32 v{vT}, -2, v{vT}")
    a(f"buffer_store_dword v{vT}, v{vPub}, {srd(sWS)}, 0 offen sc1")
    a.lab("L_nopub")
    stamp("pub")
    vGW, vGR, vEW, vER = vPR, vPub, vTk, vChk
    P = vAcc
    a.c("addresses for the rest, w_up to f32")
    a(f"s_lshl_b32 s{sPo}, s{sW}, {LS+5}")
    a(f"s_add_u32 s{sPo+1}, s{sPo}, {16*slot}")
    a(f"v_lshrrev_b32 v{vX0}, 4, v{vL}")
    a(f"v_and_b32 v{vX1}, 3, v{vL}")
    a(f"v_mad_u32_u24 v{vX0}, v{vX1}, 3, v{vX0}")
    a(f"s_lshl_b32 s{sTmp}, s{sW}, 2")
    a(f"s_add_u32 s{sTmp}, s{sTmp}, 768")
    a(f"v_lshl_add_u32 v{vGW}, v{vX0}, 5, s{sTmp}")
    a(f"v_and_b32 v{vX0}, 15, v{vL}")
    a(f"v_min_u32 v{vX0}, 5, v{vX0}")
    a(f"v_lshrrev_b32 v{vX1}, 5, v{vL}")
    a(f"v_lshl_add_u32 v{vX0}, v{vX0}, 1, v{vX1}")
    a(f"v_lshlrev_b32 v{vGR}, 5, v{vX0}")
    a(f"v_and_b32 v{vX0}, 31, v{vL}")
    a(f"v_lshl_add_u32 v{vX0}, v{vX0}, 1, v{vX1}")
    a(f"s_lshl_b32 s{sTmp}, s{sW}, 8")
    a(f"s_add_u32 s{sTmp}, s{sTmp}, 1280")
    a(f"v_lshl_add_u32 v{vEW}, v{vX0}, 2, s{sTmp}")
    a(f"v_and_b32 v{vX0}, 7, v{vL}")
    a(f"v_lshl_add_u32 v{vER}, v{vX0}, 5, s{sTmp}")
    for m in range(6):
        a(f"v_lshlrev_b32 v{vWD+2*m}, 16, v{vWU+m}")
        a(f"v_and_b32 v{vWD+2*m+1}, s{sMask}, v{vWU+m}")
    a(f"s_mov_b32 s{sLead}, 0x000f000f")
    a(f"s_mov_b32 s{sLead+1}, 0x0000000f")
    start(0)
    a(f"s_cmp_ge_u32 s{sW}, 8")
    a("s_barrier")
    stamp("bar1")
    a("s_cbranch_scc1 L_nopoll")
    a.c("waves 0..7: gather 32 slots each; only the lanes whose words are still 'empty' read again")
    a.lab("L_poll")
    a(f"buffer_load_dwordx3 v[{P}:{P+2}], v{vSl}, {srd(sWS)}, s{sPo} offen sc1")
    a(f"buffer_load_dwordx3 v[{P+4}:{P+6}], v{vSl}, {srd(sWS)}, s{sPo+1} offen sc1")
    a("s_waitcnt vmcnt(0)")
    a(f"v_max3_u32 v{vT}, v{P}, v{P+1}, v{P+2}")
    a(f"v_max3_u32 v{vT+1}, v{P+4}, v{P+5}, v{P+6}")
    a(f"v_max_u32 v{vT}, v{vT}, v{vT+1}")
    a(f"v_cmp_eq_u32 vcc, -1, v{vT}")
    a("s_and_b64 exec, vcc, vcc")
    a("s_cbranch_scc0 L_got")
    a(f"s_sub_u32 s{sSpin}, s{sSpin}, 1")
    a("s_cbranch_scc0 L_poll")
    a.lab("L_got")
    a("s_mov_b64 exec, -1")
    a(f"v_pk_add_f32 {v2(P)}, {v2(P)}, {v2(P+4)}")
    a(f"v_add_f32 v{P+2}, v{P+2}, v{P+6}")
    a("s_nop 1")
    a(f"v_permlane32_swap_b32 v{P}, v{P+2}")
    a(f"v_permlane32_swap_b32 v{P+1}, v{P+3}")
    a(f"v_pk_add_f32 {v2(P)}, {v2(P)}, {v2(P+2)}")
    a("s_nop 1")
    a(f"v_permlane16_swap_b32 v{P}, v{P+1}")
    a(f"v_add_f32 v{P}, v{P}, v{P+1}")
    for sh in (8, 4):
        a("s_nop 1")
        a(f"v_add_f32_dpp v{P}, v{P}, v{P} row_ror:{sh} row_mask:0xf bank_mask:0xf")
    a(f"s_mov_b64 exec, {p64(sLead)}")
    a(f"ds_write_b32 v{vGW}, v{P}")
    a("s_mov_b64 exec, -1")
    a("s_waitcnt lgkmcnt(0)")
    a.lab("L_nopoll")
    stamp("got")
    a("s_barrier")
    stamp("bar2")
    a(f"ds_read_b128 v[{P}:{P+3}], v{vGR} offset:768")
    a(f"ds_read_b128 v[{P+4}:{P+7}], v{vGR} offset:784")
    a("s_waitcnt lgkmcnt(0)")
    a(f"v_pk_add_f32 {v2(P)}, {v2(P)}, {v2(P+4)}")
    a(f"v_pk_add_f32 {v2(P+2)}, {v2(P+2)}, {v2(P+6)}")
    a(f"v_pk_add_f32 {v2(P)}, {v2(P)}, {v2(P+2)}")
    a(f"v_add_f32 v{P}, v{P}, v{P+1}")
    a.c("h = sum / 2^18; silu(h) = h / (1 + 2^(-h*log2 e))")
    c1 = struct.unpack("<I", struct.pack("<f", -1.4426950408889634 / 262144.0))[0]
    a(f"v_mul_f32 v{P+1}, 0x{c1:08x}, v{P}")
    a(f"v_exp_f32 v{P+1}, v{P+1}")
    a(f"v_mul_f32 v{P}, 0x36800000, v{P}")
    a(f"v_add_f32 v{P+1}, 1.0, v{P+1}")
    a(f"v_rcp_f32 v{P+1}, v{P+1}")
    a("s_nop 0")
    a(f"v_mul_f32 v{P}, v{P}, v{P+1}")
    a("s_nop 1")
    a.c("z = silu(h) @ w_up for channel 2*(l&31) + (l>>5); gate = bf16(1 / (1 + 2^(-z*log2 e)))")
    Z = vT
    for m in range(6):
        op = "v_mul_f32_dpp" if m < 2 else "v_fmac_f32_dpp"
        z = Z + 2 * (m & 1)
        a(f"{op} v{z}, v{P}, v{vWD+2*m} row_newbcast:{m} row_mask:0xf bank_mask:0xf")
        a(f"{op} v{z+1}, v{P}, v{vWD+2*m+1} row_newbcast:{m} row_mask:0xf bank_mask:0xf")
    a(f"v_pk_add_f32 {v2(Z)}, {v2(Z)}, {v2(Z+2)}")
    a("s_nop 1")
    a(f"v_permlane32_swap_b32 v{Z}, v{Z+1}")
    a(f"v_add_f32 v{Z}, v{Z}, v{Z+1}")
    a(f"v_mul_f32 v{Z}, 0xbfb8aa3b, v{Z}")
    a(f"v_exp_f32 v{Z}, v{Z}")
    a("s_nop 0")
    a(f"v_add_f32 v{Z}, 1.0, v{Z}")
    a(f"v_rcp_f32 v{Z}, v{Z}")
    a("s_nop 0")
    a(f"v_cvt_pk_bf16_f32 v{Z}, v{Z}, v{Z}")
    a(f"v_lshlrev_b32 v{Z}, 16, v{Z}")
    a(f"ds_write_b32 v{vEW}, v{Z}")
    a(f"ds_read_b128 v[{vAcc}:{vAcc+3}], v{vER}")
    a(f"ds_read_b128 v[{vAcc+4}:{vAcc+7}], v{vER} offset:16")
    a.c("phase 2: out = bf16(x * gate); most stores write through, a few stay in L2 for the end-of-kernel write-back")
    U = vWD
    for i in range(4):
        a(f"v_lshlrev_b32 v{U+2*i}, 16, v{D+i}")
        a(f"v_and_b32 v{U+2*i+1}, s{sMask}, v{D+i}")
    a(f"s_and_b32 s{sTmp}, s{sDec}, 0x010101")
    a(f"s_bcnt1_i32_b32 s{sTmp}, s{sTmp}")
    a(f"s_cmp_ge_u32 s{sTmp}, {nsw}")
    a("s_waitcnt lgkmcnt(0)")
    stamp("gates")
    def phase2(plain):
        for k in range(NT):
            if k == 0:
                pass
            else:
                for h in range(2):
                    d0, d1 = D + 4 * k + 2 * h, D + 4 * k + 2 * h + 1
                    t = vT if h == 0 else U
                    a(f"v_lshlrev_b32 v{t}, 16, v{d0}")
                    a(f"v_and_b32 v{t+1}, s{sMask}, v{d0}")
                    a(f"v_lshlrev_b32 v{t+2}, 16, v{d1}")
                    a(f"v_and_b32 v{t+3}, s{sMask}, v{d1}")
                    a(f"v_pk_mul_f32 {v2(t)}, {v2(t)}, {v2(vAcc+4*h)}")
                    a(f"v_pk_mul_f32 {v2(t+2)}, {v2(t+2)}, {v2(vAcc+4*h+2)}")
                    a(f"v_cvt_pk_bf16_f32 v{d0}, v{t}, v{t+1}")
                    a(f"v_cvt_pk_bf16_f32 v{d1}, v{t+2}, v{t+3}")
            f = "" if k in plain else " sc1"
            a(f"buffer_store_dwordx4 v[{D+4*k}:{D+4*k+3}], v{vOff}, {srd(sO)}, s{sT} offen{f}")
            step(k)
    for i in range(4):
        a(f"v_pk_mul_f32 {v2(U+2*i)}, {v2(U+2*i)}, {v2(vAcc+2*i)}")
    for i in range(4):
        a(f"v_cvt_pk_bf16_f32 v{D+i}, v{U+2*i}, v{U+2*i+1}")
    a("s_cbranch_scc1 L_through")
    phase2(plain)
    a("s_branch L_stored" if (stamps or addn) else "s_endpgm")
    a.lab("L_through")
    phase2(set())
    a.lab("L_stored")
    stamp("stissued")
    if addn:
        a("s_waitcnt vmcnt(0)")
        a("s_memrealtime s[60:61]")
        a(f"s_and_b32 s{sTmp}, s{sDec}, 0x010101")
        a(f"s_bcnt1_i32_b32 s{sTmp}, s{sTmp}")
        a(f"s_mul_i32 s{sTmp}, s{sTmp}, 10000")
        if addn == 2:
            a(f"s_bfe_u32 s{sTmp}, s{sX}, 0x2000c")
            a(f"s_mul_i32 s{sTmp}, s{sTmp}, 5000")
            a(f"s_bfe_u32 s{sA}, s{sO}, 0x2000c")
            a(f"s_mul_i32 s{sA}, s{sA}, 20000")
            a(f"s_add_u32 s{sTmp}, s{sTmp}, s{sA}")
            a(f"s_or_b32 s{sA}, s{sX}, s{sO}")
            a(f"s_and_b32 s{sA}, s{sA}, 0xfff")
            a(f"s_cselect_b32 s{sA}, 100000, 0")
            a(f"s_add_u32 s{sTmp}, s{sTmp}, s{sA}")
        if addn == 3:
            a(f"s_bfe_u32 s{sTmp}, s{sX}, 0x7000e")
            a(f"s_mul_i32 s{sTmp}, s{sTmp}, 1000")
        if addn == 4:
            a(f"s_bfe_u32 s{sTmp}, s{sO}, 0x7000e")
            a(f"s_mul_i32 s{sTmp}, s{sTmp}, 1000")
        if addn == 5:
            a(f"s_getreg_b32 s{sTmp}, hwreg(HW_REG_XCC_ID, 0, 3)")
            a(f"s_sub_u32 s{sTmp}, s{sTmp}, s2")
            a(f"s_and_b32 s{sTmp}, s{sTmp}, 7")
            a(f"s_mul_i32 s{sTmp}, s{sTmp}, 10000")
        a.lab("L_addn")
        a("s_memrealtime s[62:63]")
        a("s_waitcnt lgkmcnt(0)")
        a("s_sub_u32 s62, s62, s60")
        a(f"s_cmp_lt_u32 s62, s{sTmp}")
        a("s_cbranch_scc1 L_addn")
    if stamps:
        a("s_waitcnt vmcnt(0)")
        stamp("done")
        a("s_waitcnt lgkmcnt(0)")
    if diag is not None:
        if diag == "dec":
            a(f"s_and_b32 s{sTmp}, s{sDec}, 0x010101")
            a(f"s_bcnt1_i32_b32 s{sTmp}, s{sTmp}")
            a(f"s_mul_i32 s{sTmp}, s{sTmp}, 2000")
            a(f"s_add_u32 s{sTmp}, s{sTmp}, 5000")
            a(f"s_cmp_eq_u32 s{sSpin}, 0x100001")
            a(f"s_cselect_b32 s{sA}, 10000, 0")
            a(f"s_add_u32 s{sTmp}, s{sTmp}, s{sA}")
        else:
            i = names.index(diag)
            a(f"s_sub_u32 s{sTmp}, s{sSt+2*i}, s{sSt}")
            a(f"s_mul_i32 s{sTmp}, s{sTmp}, {amp}")
            if diag in ("have", "c_probe"):
                a(f"s_cmp_eq_u32 s{sW}, 0")
                a(f"s_cselect_b32 s{sTmp}, s{sTmp}, 0")
            if diag == "c_probe":
                a(f"s_cmp_lt_u32 s2, {ncontr}")
                a(f"s_cselect_b32 s{sTmp}, s{sTmp}, 0")
        a(f"s_min_u32 s{sTmp}, s{sTmp}, 200000")
        a.lab("L_diag")
        a(f"s_memrealtime s[{sSt+2}:{sSt+3}]")
        a("s_waitcnt lgkmcnt(0)")
        a(f"s_sub_u32 s{sSt+2}, s{sSt+2}, s{sSt}")
        a(f"s_cmp_lt_u32 s{sSt+2}, s{sTmp}")
        a("s_cbranch_scc1 L_diag")
    elif stamps:
        a(f"v_mov_b32 v{vT}, 0")
        a(f"v_mov_b32 v{vT+1}, 0")
        for i in range(len(names)):
            a(f"v_writelane_b32 v{vT}, s{sSt+2*i}, {i}")
            a(f"v_writelane_b32 v{vT+1}, s{sSt+2*i+1}, {i}")
        a(f"s_mul_i32 s{sTmp}, s2, 12")
        a(f"s_add_u32 s{sTmp}, s{sTmp}, s{sW}")
        a(f"s_lshl_b32 s{sTmp}, s{sTmp}, 7")
        a(f"s_add_u32 s{sTmp}, s{sTmp}, {STAMP_OFF}")
        a(f"v_lshlrev_b32 v{vX0}, 3, v{vL}")
        a("s_mov_b64 exec, 0xffff")
        a(f"buffer_store_dwordx2 v[{vT}:{vT+1}], v{vX0}, {srd(sWS)}, s{sTmp} offen")
    a.lab("L_end")
    a("s_endpgm")

    out = HEADER
    out += f"; @launch grid=({NWG},1,1) block=(768,1,1) lds=4368\n"
    if stamps: out += "; stamps: " + " ".join(names) + "\n"
    out += """.amdgcn_target "amdgcn-amd-amdhsa--gfx950"
.text
.globl standalone__se_block__vision_kernel
.p2align 8
.type standalone__se_block__vision_kernel,@function
standalone__se_block__vision_kernel:
"""
    out += a.text()
    out += f""".section .rodata,"a"
.p2align 6
.amdhsa_kernel standalone__se_block__vision_kernel
  .amdhsa_next_free_vgpr 168
  .amdhsa_next_free_sgpr {96 if stamps else 64}
  .amdhsa_accum_offset 168
  .amdhsa_group_segment_fixed_size 0
  .amdhsa_kernarg_size 48
  .amdhsa_user_sgpr_count 2
  .amdhsa_user_sgpr_kernarg_segment_ptr 1
  .amdhsa_system_sgpr_workgroup_id_x 1
  .amdhsa_float_denorm_mode_32 3
.end_amdhsa_kernel
"""
    return out

if __name__ == "__main__":
    from build import build
    name = sys.argv[1]
    kw = {}
    for x in sys.argv[2:]:
        k, v = x.split("=")
        try: v = int(v)
        except ValueError: pass
        kw[k] = v
    open(name, "w").write(gen(**kw))
    print(build(name))
```

```python
import sys, struct
from gen import A, HEADER, NB, NWG, STAMP_OFF

NT = 32
K = 1024
M = 1 << 20

PATS = {
    "g1": (12 * K, 3 * K, 1, 3 * M, 0),
    "k2": (24 * K, 6 * K, 2, 6 * M, 3 * K),
    "k4": (48 * K, 12 * K, 4, 12 * M, 3 * K),
    "k8": (96 * K, 24 * K, 8, 24 * M, 3 * K),
    "qk4": (12 * K, 24 * M, 4, 3 * M, 3 * K),
    "qk8": (24 * K, 24 * M, 8, 6 * M, 3 * K),
}

def gen(pat="k4", ld="nt", stamps=False, wpos=8, spin=1 << 20, barpos=2, slot=128, plmod=6, plpos=0,
        plset=None, win=0, diag=None, vmap='b', theta=120, pre=4, ncontr=24, clr=31, nsw=2, force=None, lanes=1, dbgdec=0, psleep=1, cst=0, nst2=1, pubk='cas', pw='3,7,11', amp=10, addn=0):
    a = A()
    D = 40
    sX, sO, sWS, sDB, sWD, sWU = 4, 8, 12, 16, 20, 24
    sW, sWp, sWq, sT, sBase, sMask, sSpin, sStr, sTmp, sPo, sTk = 28, 29, 30, 31, 32, 33, 34, 36, 38, 40, 42
    sLead = 44
    sPr, sRole, sNeu, s3k, sDec = 46, 47, 48, 49, 35
    sMB, sMS = 50, 54
    sTA, sTQ = 36, 37
    sOdd = 39
    sA, sB = 58, 59
    sSt = 60
    vSl, vL, vOff, vPW, vPR, vPub, vChk, vTk = 0, 1, 2, 3, 4, 5, 6, 7
    vAcc, vT, vWD, vWU, vX0, vX1 = 8, 16, 20, 32, 38, 39
    def srd(s): return f"s[{s}:{s+3}]"
    def p64(s): return f"s[{s}:{s+1}]"
    def v2(r): return f"v[{r}:{r+1}]"
    names = []
    def stamp(n):
        if stamps:
            i = len(names)
            a(f"s_memrealtime s[{sSt+2*i}:{sSt+2*i+1}]")
            names.append(n)
    ldf = (" " + ld) if ld else ""
    SU = 48 * K
    P_, Q_, R_ = {"a": (4, 1, 512), "b": (1, 512, 128), "d": (1, 128, 512)}[vmap]
    assert sorted(pr * P_ + wq * Q_ + m * R_ for pr in range(128) for wq in range(4) for m in range(4)) == list(range(2048))
    dl = [1, 1, 3, 1, 1, 4, 1]
    L0 = [0]
    for d in dl: L0.append(L0[-1] + d)
    assert sorted(L0 + [15 - u for u in L0]) == list(range(16))
    LS = slot.bit_length() - 1
    plain = set(int(x) for x in plset.split(",")) if plset else set(k for k in range(NT) if plmod and k % plmod == plpos)

    a.c("workgroups past the 256 that carry data leave at once")
    a(f"s_cmp_ge_u32 s2, {NWG}")
    a("s_cbranch_scc1 L_end")
    for (s, off) in ((sX, 0), (sWS, 40), (sDB, 32), (sWD, 8), (sWU, 16), (sO, 24)):
        a(f"s_load_dwordx2 {p64(s)}, s[0:1], {off}")
    stamp("entry")
    a.c("wave w = 3*wq + wp; lane l reads 16 bytes: row (l>>3) of an 8-row group, bytes wp*128 + (l&7)*16")
    a(f"v_lshrrev_b32 v{vX0}, 6, v0")
    a(f"v_and_b32 v{vL}, 63, v0")
    a(f"v_readfirstlane_b32 s{sW}, v{vX0}")
    a(f"v_lshrrev_b32 v{vX0}, 3, v{vL}")
    a(f"v_and_b32 v{vX1}, 7, v{vL}")
    a(f"v_mul_u32_u24 v{vOff}, 384, v{vX0}")
    a(f"v_lshl_add_u32 v{vOff}, v{vX1}, 4, v{vOff}")
    a(f"s_mul_i32 s{sWq}, s{sW}, 43")
    a(f"s_lshr_b32 s{sWq}, s{sWq}, 7")
    a(f"s_mul_i32 s{sTmp}, s{sWq}, 3")
    a(f"s_sub_u32 s{sWp}, s{sW}, s{sTmp}")
    a.c("workgroups id and id^4 form a pair that shares 48 KiB spans (16 units of 8 rows, 8 units each)")
    a(f"s_bfe_u32 s{sRole}, s2, 0x10002")
    a(f"s_and_b32 s{sPr}, s2, 3")
    a(f"s_lshr_b32 s{sTmp}, s2, 3")
    a(f"s_lshl_b32 s{sTmp}, s{sTmp}, 2")
    a(f"s_or_b32 s{sPr}, s{sPr}, s{sTmp}")
    a(f"s_mul_i32 s{sBase}, s{sPr}, {P_ * SU}")
    a(f"s_mul_i32 s{sTmp}, s{sWq}, {Q_ * SU}")
    a(f"s_add_u32 s{sBase}, s{sBase}, s{sTmp}")
    a(f"s_lshl_b32 s{sTmp}, s{sWp}, 7")
    a(f"s_add_u32 s{sBase}, s{sBase}, s{sTmp}")
    a(f"s_movk_i32 s{s3k}, 3072")
    a(f"s_xor_b32 s{sNeu}, s{sPr}, s{sWq}")
    a(f"s_xor_b32 s{sNeu}, s{sNeu}, s{sRole}")
    TA = sum(u << (4 * n) for n, u in enumerate(L0))
    TB = sum(((u + 4) & 15) << (4 * n) for n, u in enumerate(L0))
    def addr(m):
        a(f"s_add_u32 s{sMB+m}, s{sBase}, {m * R_ * SU}")
        if m == 0:
            a(f"s_bitcmp1_b32 s{sNeu}, 0")
            a(f"s_cselect_b32 s{sMS}, 0x{TA ^ 0x88888888:x}, s{sTA}")
            return
        a(f"s_add_u32 s{sA}, s{sMB+m}, {24 * K}")
        a(f"s_lshr_b32 s{sB}, s{sA}, 25")
        a(f"s_add_u32 s{sA}, s{sA}, s{sO}")
        a(f"s_lshr_b32 s{sA}, s{sA}, 21")
        a(f"s_lshl_b32 s{sB}, s{sB}, 3")
        a(f"s_lshr_b32 s{sB}, s{sDec}, s{sB}")
        a(f"s_lshr_b32 s{sTmp}, s{sB}, 1")
        a(f"s_xor_b32 s{sA}, s{sA}, s{sTmp}")
        a(f"s_xor_b32 s{sTmp}, s{sNeu}, {m & 1}")
        a(f"s_bitcmp1_b32 s{sB}, 0")
        a(f"s_cselect_b32 s{sA}, s{sA}, s{sTmp}")
        a(f"s_cselect_b32 s{sMS+m}, s{sTQ}, s{sTA}")
        a(f"s_bitcmp1_b32 s{sA}, 0")
        a(f"s_cselect_b32 s{sA}, 0x88888888, 0")
        a(f"s_xor_b32 s{sMS+m}, s{sMS+m}, s{sA}")
    def tile(k):
        m, n = divmod(k, 8)
        a(f"s_bfe_u32 s{sT}, s{sMS+m}, 0x{(4 << 16) | (4 * n):x}")
        a(f"s_mul_i32 s{sT}, s{sT}, s{s3k}")
        a(f"s_add_u32 s{sT}, s{sT}, s{sMB+m}")
    def start(m): tile(8 * m)
    def step(k):
        if k + 1 < NT: tile(k + 1)
    a(f"s_mov_b32 s{sTA}, 0x{TA:x}")
    addr(0)
    start(0)
    for (s, n) in ((sX, NB), (sWS, (2 << 20) if stamps else 256 * slot), (sDB, 256), (sWD, 4608), (sWU, 4608), (sO, NB)):
        a(f"s_mov_b32 s{s+2}, {n}")
        a(f"s_mov_b32 s{s+3}, 0x00020000")
    a.c("hand-off slots in d_ws: one line per workgroup; lane l covers slot (l>>2), bytes (l&3)*16")
    a(f"v_lshrrev_b32 v{vX0}, 2, v{vL}")
    a(f"v_and_b32 v{vX1}, 3, v{vL}")
    a(f"v_lshlrev_b32 v{vX0}, {LS}, v{vX0}")
    a(f"v_lshl_add_u32 v{vSl}, v{vX1}, 4, v{vX0}")
    a(f"v_mov_b32 v{vTk}, 0")
    a(f"ds_write_b32 v{vTk}, v{vTk} offset:4352")
    a(f"ds_write_b32 v{vTk}, v{vTk} offset:4356")
    a.c("placement probe (wave 0 of the first workgroups): two loads 8 KiB apart; a late second return shows it lives on the other die")
    a(f"s_cmp_ge_u32 s{sPr}, 6")
    a(f"s_cselect_b32 s{sTk}, 1, 0")
    a(f"s_cselect_b32 s{sTmp}, 6, 0")
    a(f"s_sub_u32 s{sLead}, s{sPr}, s{sTmp}")
    a(f"s_lshr_b32 s{sA}, s{sLead}, 1")
    a(f"s_lshl_b32 s{sA}, s{sA}, 25")
    a(f"s_lshl_b32 s{sTmp}, s{sTk}, 24")
    a(f"s_add_u32 s{sA}, s{sA}, s{sTmp}")
    a(f"s_add_u32 s{sA}, s{sA}, {8 * M + 0x4000}")
    a(f"s_mul_i32 s{sB}, s2, {0x4000 + 0x500}")
    a(f"s_and_b32 s{sB}, s{sB}, 0xfdf00")
    a(f"s_cmp_ge_u32 s2, {ncontr}")
    a("s_waitcnt lgkmcnt(0)")
    stamp("karg")
    a("s_cbranch_scc1 L_noprobe")
    a(f"s_cmp_lg_u32 s{sW}, 0")
    a("s_cbranch_scc1 L_probe_done")
    a(f"s_add_u32 s{sA}, s{sA}, s{sO}")
    a(f"s_andn2_b32 s{sA}, s{sA}, 0x3fff")
    a(f"s_add_u32 s{sA}, s{sA}, s{sB}")
    a(f"s_lshr_b32 s{sB}, s{sA}, 21")
    a(f"s_xor_b32 s{sB}, s{sB}, s{sTk}")
    a(f"s_and_b32 s{sB}, s{sB}, 1")
    a(f"s_lshl_b32 s{sB}, s{sB}, 13")
    a(f"s_or_b32 s{sA}, s{sA}, s{sB}")
    a(f"s_xor_b32 s{sB}, s{sA}, 0x2000")
    a(f"s_sub_u32 s{sA}, s{sA}, s{sO}")
    a(f"s_sub_u32 s{sB}, s{sB}, s{sO}")
    a(f"s_sub_u32 s{sTmp}, s{sO}, s{sX}")
    a(f"s_add_u32 s{sTmp}, s{sTmp}, 0x800")
    a(f"s_lshr_b32 s{sTmp}, s{sTmp}, 12")
    a(f"s_or_b32 s{sTmp}, s{sTmp}, s{sLead}")
    a("s_mov_b64 exec, 1")
    a(f"s_bitcmp1_b32 s{sTmp}, 0")
    a("s_cbranch_scc1 L_probe_out")
    a(f"buffer_load_dword v{vX0}, v{vTk}, {srd(sX)}, s{sA} offen nt")
    a(f"buffer_load_dword v{vX1}, v{vTk}, {srd(sX)}, s{sB} offen nt")
    a("s_branch L_probe_wait")
    a.lab("L_probe_out")
    a(f"buffer_load_dword v{vX0}, v{vTk}, {srd(sO)}, s{sA} offen nt")
    a(f"buffer_load_dword v{vX1}, v{vTk}, {srd(sO)}, s{sB} offen nt")
    a.lab("L_probe_wait")
    a("s_barrier")
    a("s_waitcnt vmcnt(1)")
    a(f"s_memtime s[{sA}:{sA+1}]")
    a("s_waitcnt vmcnt(0)")
    a(f"s_memtime s[{sPo}:{sPo+1}]")
    if cst: stamp("c_probe")
    a.c("word 4*statistic + 2*copy + role of d_debug <- valid | ((die id - workgroup id) & 7) << 16 | (signed delay + 1024)")
    a(f"s_getreg_b32 s{sDec}, hwreg(HW_REG_XCC_ID, 0, 3)")
    a(f"s_sub_u32 s{sLead+1}, s{sDec}, s2")
    a(f"s_and_b32 s{sLead+1}, s{sLead+1}, 7")
    a(f"s_lshl_b32 s{sLead+1}, s{sLead+1}, 16")
    a(f"s_or_b32 s{sLead+1}, s{sLead+1}, 0x80000400")
    a(f"s_lshr_b32 s{sDec}, s{sDec}, 2")
    a(f"s_lshl_b32 s{sLead}, s{sLead}, 1")
    a(f"s_add_u32 s{sLead}, s{sLead}, s{sTk}")
    a(f"s_lshl_b32 s{sLead}, s{sLead}, 1")
    a(f"s_add_u32 s{sLead}, s{sLead}, s{sRole}")
    a(f"s_lshl_b32 s{sLead}, s{sLead}, 2")
    a(f"s_xor_b32 s{sTmp}, s{sTk}, s{sDec}")
    a(f"v_mov_b32 v{vT+1}, 0")
    a("s_waitcnt lgkmcnt(0)")
    a(f"s_sub_u32 s{sA}, s{sPo}, s{sA}")
    a(f"s_min_u32 s{sA}, s{sA}, 600")
    a(f"s_sub_u32 s{sB}, 0, s{sA}")
    a(f"s_cmp_lg_u32 s{sTmp}, 0")
    a(f"s_cselect_b32 s{sA}, s{sB}, s{sA}")
    a(f"s_add_u32 s{sA}, s{sA}, s{sLead+1}")
    a(f"v_mov_b32 v{vT}, s{sA}")
    if pubk == "cas":
        a(f"buffer_atomic_cmpswap v[{vT}:{vT+1}], v{vTk}, {srd(sDB)}, s{sLead} offen")
    else:
        a(f"buffer_store_dword v{vT}, v{vTk}, {srd(sDB)}, s{sLead} offen sc1")
    a.lab("L_probe_end")
    a("s_mov_b64 exec, -1")
    a("s_branch L_noprobe")
    a.lab("L_probe_done")
    a("s_barrier")
    a.lab("L_noprobe")
    a.c("one workgroup, wave 0: set every slot to the 'empty' marker; the flag in d_debug follows once these landed")
    a(f"s_xor_b32 s{sTmp}, s2, {clr}")
    a(f"s_or_b32 s{sTmp}, s{sTmp}, s{sW}")
    a("s_cbranch_scc1 L_noclear")
    for i in range(4):
        a(f"v_mov_b32 v{vT+i}, -1")
    for i in range(16):
        a(f"s_mov_b32 s{sTmp}, {16*slot*i}")
        a(f"buffer_store_dwordx4 v[{vT}:{vT+3}], v{vSl}, {srd(sWS)}, s{sTmp} offen sc1")
    a.lab("L_noclear")

    order = []
    def load(k):
        a(f"buffer_load_dwordx4 v[{D+4*k}:{D+4*k+3}], v{vOff}, {srd(sX)}, s{sT} offen{ldf}")
        if k != 7: step(k)
        order.append(k)
    for k in range(pre):
        load(k)
    a.c("the LDS ticket is zero before any wave can take one")
    a(f"s_xor_b32 s{sTmp}, s2, {clr}")
    a(f"s_or_b32 s{sTmp}, s{sTmp}, s{sW}")
    a("s_barrier")
    a("s_cbranch_scc1 L_noflagset")
    a(f"v_mov_b32 v{vX1}, 1")
    a("s_waitcnt vmcnt(0)")
    a("s_mov_b64 exec, 1")
    a(f"buffer_store_dword v{vX1}, v{vTk}, {srd(sDB)}, 0 offen offset:192 sc1")
    a("s_mov_b64 exec, -1")
    a.lab("L_noflagset")
    for k in range(pre, 8):
        load(k)
    a.c("weights: w_down row of channel 64*wp + 8*(l&7) + (l>>3); w_up dwords (row 2m + (l>>5), channels 64*wp + 2*(l&31), +1)")
    a(f"v_lshrrev_b32 v{vX0}, 3, v{vL}")
    a(f"v_and_b32 v{vX1}, 7, v{vL}")
    a(f"v_lshl_add_u32 v{vX0}, v{vX1}, 3, v{vX0}")
    a(f"v_mul_u32_u24 v{vX0}, 24, v{vX0}")
    a(f"s_mul_i32 s{sTmp}, s{sWp}, 1536")
    a(f"buffer_load_dwordx4 v[{vWD+6}:{vWD+9}], v{vX0}, {srd(sWD)}, s{sTmp} offen")
    a(f"buffer_load_dwordx2 v[{vWD+10}:{vWD+11}], v{vX0}, {srd(sWD)}, s{sTmp} offen offset:16")
    a(f"v_lshrrev_b32 v{vX0}, 5, v{vL}")
    a(f"v_and_b32 v{vX1}, 31, v{vL}")
    a(f"v_mul_u32_u24 v{vX0}, 384, v{vX0}")
    a(f"v_lshl_add_u32 v{vX0}, v{vX1}, 2, v{vX0}")
    a(f"s_lshl_b32 s{sTmp}, s{sWp}, 7")
    for m in range(6):
        a(f"buffer_load_dword v{vWU+m}, v{vX0}, {srd(sWU)}, s{sTmp} offen offset:{768*m}")
    a(f"s_mov_b32 s{sSpin}, {spin}")
    if not cst: stamp("static")
    a.c("the placement word decides which units of the remaining spans this workgroup takes")
    def lpoll(tag):
        a.lab(f"L_dec{tag}")
        a(f"ds_read_b32 v{vChk}, v{vTk} offset:4356")
        a("s_waitcnt lgkmcnt(0)")
        a(f"v_readfirstlane_b32 s{sDec}, v{vChk}")
        a("s_nop 3")
        a(f"s_cmp_lt_i32 s{sDec}, 0")
        a(f"s_cbranch_scc1 L_dec_ok{tag}")
        a(f"s_sleep {psleep}")
        a(f"s_sub_u32 s{sSpin}, s{sSpin}, 1")
        a(f"s_cbranch_scc0 L_dec{tag}")
    order.extend(["w"] * 8)
    a(f"s_add_u32 s{sTmp}, s{sO}, 0x800")
    a(f"s_sub_u32 s{sOdd}, s{sTmp}, s{sX}")
    a(f"s_bitcmp1_b32 s{sTmp}, 12")
    a(f"s_cselect_b32 s{sTQ}, 0x{TB:x}, s{sTA}")
    a(f"s_mov_b32 s{sDec}, 0")
    a(f"s_cmp_lt_u32 s{sWq}, {nst2}")
    a("s_cbranch_scc1 L_dec_okA")
    lpoll("A")
    a.lab("L_dec_okA")
    addr(1)
    start(1)
    for k in range(8, 16):
        a(f"buffer_load_dwordx4 v[{D+4*k}:{D+4*k+3}], v{vOff}, {srd(sX)}, s{sT} offen{ldf}")
        if k != 15: step(k)
        order.append(k)
    a(f"s_cmp_ge_u32 s{sWq}, {nst2}")
    a("s_cbranch_scc1 L_dec_okB")
    a(f"s_cmp_lg_u32 s{sW}, 0")
    a("s_cbranch_scc1 L_decB")
    a.c("wave 0 reads the probe words at several moments (the returns queue behind the data) and decides for the workgroup")
    a(f"v_lshlrev_b32 v{vX0}, 2, v{vL}")
    a("s_mov_b64 exec, 0xffffff")
    pws = [int(x) for x in str(pw).split(",")] if pw != "" else []
    NP = len(pws) + 1
    def rd(i): a(f"buffer_load_dword v{vT+i}, v{vX0}, {srd(sDB)}, 0 offen sc1")
    rd(0)
    for i, t in enumerate(pws):
        a(f"s_waitcnt vmcnt({len(order) - 1 - order.index(t) + i + 1})")
        rd(i + 1)
    for i in range(NP):
        a(f"s_waitcnt vmcnt({NP - 1 - i})")
        a(f"v_cmp_le_i32 vcc, 0, v{vT+i}")
        if i: a(f"v_mov_b32 v{vT}, v{vT+i}")
        a("s_cbranch_vccz L_have")
    a.lab("L_again")
    rd(0)
    a("s_waitcnt vmcnt(0)")
    a(f"v_cmp_le_i32 vcc, 0, v{vT}")
    a("s_cbranch_vccz L_have")
    a(f"s_sub_u32 s{sSpin}, s{sSpin}, 1")
    a("s_cbranch_scc0 L_again")
    a.lab("L_have")
    stamp("have") if cst else None
    a(f"v_and_b32 v{vX1}, 0xfff, v{vT}")
    a(f"v_lshrrev_b32 v{vX0}, 16, v{vT}")
    a("s_nop 0")
    a(f"v_add_u32_dpp v{vX1}, v{vX1}, v{vX1} quad_perm:[1,0,3,2] row_mask:0xf bank_mask:0xf")
    a(f"v_readfirstlane_b32 s{sB}, v{vX0}")
    a("s_nop 0")
    a(f"v_add_u32_dpp v{vX1}, v{vX1}, v{vX1} quad_perm:[2,3,0,1] row_mask:0xf bank_mask:0xf")
    a(f"v_cmp_lt_u32 vcc, {4096 + theta}, v{vX1}")
    a(f"s_mov_b32 s{sTmp}, vcc_lo")
    a(f"v_cmp_gt_u32 vcc, {4096 - theta}, v{vX1}")
    a.c("bit 8r: region placed, bit 8r+1: side.  Buffers 4 KiB out of step: all probes were on the output, one clear answer is enough;")
    a.c("otherwise input and output must agree")
    a(f"s_mov_b32 s{sPo}, vcc_lo")
    a(f"s_lshr_b32 s{sA}, s{sTmp}, 4")
    a(f"s_lshr_b32 s{sPo+1}, s{sPo}, 4")
    a(f"s_or_b32 s{sLead}, s{sTmp}, s{sA}")
    a(f"s_or_b32 s{sLead+1}, s{sPo}, s{sPo+1}")
    a(f"s_and_b32 s{sTmp}, s{sTmp}, s{sA}")
    a(f"s_and_b32 s{sA}, s{sPo}, s{sPo+1}")
    a(f"s_andn2_b32 s{sPo}, s{sLead}, s{sLead+1}")
    a(f"s_andn2_b32 s{sPo+1}, s{sLead+1}, s{sLead}")
    a(f"s_bitcmp1_b32 s{sOdd}, 12")
    a(f"s_cselect_b32 s{sTmp}, s{sPo}, s{sTmp}")
    a(f"s_cselect_b32 s{sA}, s{sPo+1}, s{sA}")
    a(f"v_cmp_ne_u32 vcc, s{sB}, v{vX0}")
    a(f"s_and_b32 s{sTmp}, s{sTmp}, 0x010101")
    a(f"s_and_b32 s{sA}, s{sA}, 0x030303")
    a(f"s_or_b32 s{sDec}, s{sTmp}, s{sA}")
    a.c("only if every probing workgroup sits where round-robin placement puts it; bit 2 of (id + offset) tells the die of a workgroup")
    a("s_cmp_eq_u32 vcc_lo, 0")
    a(f"s_cselect_b32 s{sDec}, s{sDec}, 0")
    if diag == "dec":
        a(f"s_cselect_b32 s{sSpin+0*1}, s{sSpin}, 0x100001")
    a(f"s_add_u32 s{sB}, s{sB}, s2")
    a(f"s_lshr_b32 s{sB}, s{sB}, 1")
    a(f"s_add_u32 s{sA}, s{sO}, 0x800")
    a(f"s_lshr_b32 s{sA}, s{sA}, 12")
    a(f"s_xor_b32 s{sB}, s{sB}, s{sA}")
    a(f"s_and_b32 s{sB}, s{sB}, 2")
    a(f"s_mul_i32 s{sB}, s{sB}, 0x010101")
    a(f"s_xor_b32 s{sDec}, s{sDec}, s{sB}")
    if force is not None: a(f"s_mov_b32 s{sDec}, {force}")
    a(f"s_bitset1_b32 s{sDec}, 31")
    a(f"v_mov_b32 v{vX0}, s{sDec}")
    a(f"ds_write_b32 v{vTk}, v{vX0} offset:4356")
    if dbgdec:
        a(f"buffer_store_dword v{vX0}, v{vTk}, {srd(sDB)}, 0 offen offset:128")
    a("s_mov_b64 exec, -1")
    a("s_branch L_dec_okB")
    lpoll("B")
    a.lab("L_dec_okB")
    stamp("dec")
    for m in range(2, 4): addr(m)
    start(2)
    for k in range(16, NT):
        load(k)
    a.c("wave 0: read the reset flag (it returns behind the data)")
    a(f"s_cmp_lg_u32 s{sW}, 0")
    a("s_cbranch_scc1 L_noflag")
    a(f"buffer_load_dword v{vChk}, v{vTk}, {srd(sDB)}, 0 offen offset:192 sc1")
    a.lab("L_noflag")
    stamp("issued")
    a.c("LDS: P[12][16] per-wave partials at 0, G[12][8] at 768, gates at 1280, ticket at 4352")
    a(f"s_mov_b32 s{sMask}, 0xffff0000")
    a(f"v_lshrrev_b32 v{vX0}, 4, v{vL}")
    a(f"s_lshl_b32 s{sTmp}, s{sW}, 6")
    a(f"v_lshl_add_u32 v{vPW}, v{vX0}, 4, s{sTmp}")
    a(f"v_and_b32 v{vX1}, 15, v{vL}")
    a(f"v_lshlrev_b32 v{vX1}, 2, v{vX1}")
    a(f"v_lshl_add_u32 v{vPR}, v{vX0}, 6, v{vX1}")
    a(f"s_mov_b32 s{sLead}, 0x00010001")
    a(f"s_mov_b32 s{sLead+1}, 0x00010001")
    a.c("publish address: lanes 0..15 -> this workgroup's slot, word l; the other lanes are out of range")
    a(f"s_lshl_b32 s{sTmp}, s2, {LS}")
    a(f"v_lshl_add_u32 v{vPub}, v{vL}, 2, s{sTmp}")
    a(f"v_cmp_gt_u32 vcc, 16, v{vL}")
    a(f"v_mov_b32 v{vX0}, 0x40000000")
    a(f"v_mov_b32 v{vX1}, 1")
    a(f"v_cndmask_b32 v{vPub}, v{vX0}, v{vPub}, vcc")

    a.c("phase 1: f32 channel sums of this lane's 8 channels; the data stay in v40..v167")
    for k in range(NT):
        if k == 0: a("s_waitcnt vmcnt(16)")
        if k >= 16: a(f"s_waitcnt vmcnt({len(order) - 1 - order.index(k)})")
        if k == 8:
            for i in range(6):
                a(f"v_lshlrev_b32 v{vWD+2*i}, 16, v{vWD+6+i}")
                a(f"v_and_b32 v{vWD+2*i+1}, s{sMask}, v{vWD+6+i}")
        for h in range(2):
            d0, d1 = D + 4 * k + 2 * h, D + 4 * k + 2 * h + 1
            t = vAcc + 4 * h if k == 0 else vT
            a(f"v_lshlrev_b32 v{t}, 16, v{d0}")
            a(f"v_and_b32 v{t+1}, s{sMask}, v{d0}")
            a(f"v_lshlrev_b32 v{t+2}, 16, v{d1}")
            a(f"v_and_b32 v{t+3}, s{sMask}, v{d1}")
            if k:
                a(f"v_pk_add_f32 {v2(vAcc+4*h)}, {v2(vAcc+4*h)}, {v2(vT)}")
                a(f"v_pk_add_f32 {v2(vAcc+4*h+2)}, {v2(vAcc+4*h+2)}, {v2(vT+2)}")
    stamp("loaded")
    a.c("wave 0: the slots must have been reset before this workgroup publishes or trusts a slot")
    a(f"s_cmp_lg_u32 s{sW}, 0")
    a("s_cbranch_scc1 L_chk_ok")
    a.lab("L_chk")
    a(f"v_cmp_eq_u32 vcc, 0, v{vChk}")
    a("s_cbranch_vccz L_chk_ok")
    a("s_sleep 4")
    a(f"buffer_load_dword v{vChk}, v{vTk}, {srd(sDB)}, 0 offen offset:192 sc1")
    a("s_waitcnt vmcnt(0)")
    a(f"s_sub_u32 s{sSpin}, s{sSpin}, 1")
    a("s_cbranch_scc0 L_chk")
    a.lab("L_chk_ok")

    A_ = vAcc
    a.c("8 sums x 8 lane rows -> one channel sum per lane (channel 8*(l&7) + (l>>3))")
    for i in range(4):
        a(f"v_permlane32_swap_b32 v{A_+i}, v{A_+i+4}")
    a(f"v_pk_add_f32 {v2(A_)}, {v2(A_)}, {v2(A_+4)}")
    a(f"v_pk_add_f32 {v2(A_+2)}, {v2(A_+2)}, {v2(A_+6)}")
    a("s_nop 1")
    for i in range(2):
        a(f"v_permlane16_swap_b32 v{A_+i}, v{A_+i+2}")
    a(f"v_pk_add_f32 {v2(A_)}, {v2(A_)}, {v2(A_+2)}")
    a("s_nop 1")
    a(f"v_add_f32_dpp v{A_+2}, v{A_}, v{A_} row_ror:8 row_mask:0xf bank_mask:0x3")
    a("s_nop 1")
    a(f"v_add_f32_dpp v{A_+2}, v{A_+1}, v{A_+1} row_ror:8 row_mask:0xf bank_mask:0xc")
    a.c("times the w_down row, summed over the wave: row r of 16 lanes keeps outputs 3r..3r+2")
    for j in (0, 6, 2, 8, 4, 10):
        a(f"v_pk_mul_f32 {v2(vWD+j)}, {v2(A_+2)}, {v2(vWD+j)} op_sel_hi:[0,1]")
    for i in range(6):
        a(f"v_permlane32_swap_b32 v{vWD+i}, v{vWD+i+6}")
    for i in range(0, 6, 2):
        a(f"v_pk_add_f32 {v2(vWD+i)}, {v2(vWD+i)}, {v2(vWD+i+6)}")
    a("s_nop 1")
    for i in range(3):
        a(f"v_permlane16_swap_b32 v{vWD+i}, v{vWD+i+3}")
    for i in range(3):
        a(f"v_add_f32 v{vWD+i}, v{vWD+i}, v{vWD+i+3}")
    for sh in (8, 4, 2, 1):
        for i in range(3):
            a(f"v_add_f32_dpp v{vWD+i}, v{vWD+i}, v{vWD+i} row_ror:{sh} row_mask:0xf bank_mask:0xf")
    a.c("partials -> LDS, take a ticket, read all partials back (complete for the wave whose ticket is last)")
    a(f"s_mov_b64 exec, {p64(sLead)}")
    a(f"ds_write_b128 v{vPW}, v[{vWD}:{vWD+3}]")
    a("s_mov_b64 exec, 1")
    a(f"ds_add_rtn_u32 v{vX0}, v{vTk}, v{vX1} offset:4352")
    a("s_mov_b64 exec, -1")
    a(f"ds_read_b32 v{vT}, v{vPR}")
    a(f"ds_read_b32 v{vT+1}, v{vPR} offset:256")
    a(f"ds_read_b32 v{vT+2}, v{vPR} offset:512")
    a("s_waitcnt lgkmcnt(0)")
    a(f"v_readfirstlane_b32 s{sTk}, v{vX0}")
    a(f"v_add_f32 v{vT}, v{vT}, v{vT+1}")
    a(f"v_add_f32 v{vT}, v{vT}, v{vT+2}")
    a(f"v_mov_b32 v{vT+1}, v{vT}")
    a(f"s_cmp_lg_u32 s{sTk}, 11")
    a("s_cbranch_scc1 L_nopub")
    a(f"v_permlane32_swap_b32 v{vT}, v{vT+1}")
    a(f"v_add_f32 v{vT}, v{vT}, v{vT+1}")
    a(f"v_mov_b32 v{vT+1}, v{vT}")
    a("s_nop 1")
    a(f"v_permlane16_swap_b32 v{vT}, v{vT+1}")
    a(f"v_add_f32 v{vT}, v{vT}, v{vT+1}")
    a(f"v_min_u32 v{vT}, -2, v{vT}")
    a(f"buffer_store_dword v{vT}, v{vPub}, {srd(sWS)}, 0 offen sc1")
    a.lab("L_nopub")
    stamp("pub")
    vGW, vGR, vEW, vER = vPR, vPub, vTk, vChk
    P = vAcc
    a.c("addresses for the rest, w_up to f32")
    a(f"s_lshl_b32 s{sPo}, s{sW}, {LS+5}")
    a(f"s_add_u32 s{sPo+1}, s{sPo}, {16*slot}")
    a(f"v_lshrrev_b32 v{vX0}, 4, v{vL}")
    a(f"v_and_b32 v{vX1}, 3, v{vL}")
    a(f"v_mad_u32_u24 v{vX0}, v{vX1}, 3, v{vX0}")
    a(f"s_lshl_b32 s{sTmp}, s{sW}, 2")
    a(f"s_add_u32 s{sTmp}, s{sTmp}, 768")
    a(f"v_lshl_add_u32 v{vGW}, v{vX0}, 5, s{sTmp}")
    a(f"v_and_b32 v{vX0}, 15, v{vL}")
    a(f"v_min_u32 v{vX0}, 5, v{vX0}")
    a(f"v_lshrrev_b32 v{vX1}, 5, v{vL}")
    a(f"v_lshl_add_u32 v{vX0}, v{vX0}, 1, v{vX1}")
    a(f"v_lshlrev_b32 v{vGR}, 5, v{vX0}")
    a(f"v_and_b32 v{vX0}, 31, v{vL}")
    a(f"v_lshl_add_u32 v{vX0}, v{vX0}, 1, v{vX1}")
    a(f"s_lshl_b32 s{sTmp}, s{sW}, 8")
    a(f"s_add_u32 s{sTmp}, s{sTmp}, 1280")
    a(f"v_lshl_add_u32 v{vEW}, v{vX0}, 2, s{sTmp}")
    a(f"v_and_b32 v{vX0}, 7, v{vL}")
    a(f"v_lshl_add_u32 v{vER}, v{vX0}, 5, s{sTmp}")
    for m in range(6):
        a(f"v_lshlrev_b32 v{vWD+2*m}, 16, v{vWU+m}")
        a(f"v_and_b32 v{vWD+2*m+1}, s{sMask}, v{vWU+m}")
    a(f"s_mov_b32 s{sLead}, 0x000f000f")
    a(f"s_mov_b32 s{sLead+1}, 0x0000000f")
    start(0)
    a(f"s_cmp_ge_u32 s{sW}, 8")
    a("s_barrier")
    stamp("bar1")
    a("s_cbranch_scc1 L_nopoll")
    a.c("waves 0..7: gather 32 slots each; only the lanes whose words are still 'empty' read again")
    a.lab("L_poll")
    a(f"buffer_load_dwordx3 v[{P}:{P+2}], v{vSl}, {srd(sWS)}, s{sPo} offen sc1")
    a(f"buffer_load_dwordx3 v[{P+4}:{P+6}], v{vSl}, {srd(sWS)}, s{sPo+1} offen sc1")
    a("s_waitcnt vmcnt(0)")
    a(f"v_max3_u32 v{vT}, v{P}, v{P+1}, v{P+2}")
    a(f"v_max3_u32 v{vT+1}, v{P+4}, v{P+5}, v{P+6}")
    a(f"v_max_u32 v{vT}, v{vT}, v{vT+1}")
    a(f"v_cmp_eq_u32 vcc, -1, v{vT}")
    a("s_and_b64 exec, vcc, vcc")
    a("s_cbranch_scc0 L_got")
    a(f"s_sub_u32 s{sSpin}, s{sSpin}, 1")
    a("s_cbranch_scc0 L_poll")
    a.lab("L_got")
    a("s_mov_b64 exec, -1")
    a(f"v_pk_add_f32 {v2(P)}, {v2(P)}, {v2(P+4)}")
    a(f"v_add_f32 v{P+2}, v{P+2}, v{P+6}")
    a("s_nop 1")
    a(f"v_permlane32_swap_b32 v{P}, v{P+2}")
    a(f"v_permlane32_swap_b32 v{P+1}, v{P+3}")
    a(f"v_pk_add_f32 {v2(P)}, {v2(P)}, {v2(P+2)}")
    a("s_nop 1")
    a(f"v_permlane16_swap_b32 v{P}, v{P+1}")
    a(f"v_add_f32 v{P}, v{P}, v{P+1}")
    for sh in (8, 4):
        a("s_nop 1")
        a(f"v_add_f32_dpp v{P}, v{P}, v{P} row_ror:{sh} row_mask:0xf bank_mask:0xf")
    a(f"s_mov_b64 exec, {p64(sLead)}")
    a(f"ds_write_b32 v{vGW}, v{P}")
    a("s_mov_b64 exec, -1")
    a("s_waitcnt lgkmcnt(0)")
    a.lab("L_nopoll")
    stamp("got")
    a("s_barrier")
    stamp("bar2")
    a(f"ds_read_b128 v[{P}:{P+3}], v{vGR} offset:768")
    a(f"ds_read_b128 v[{P+4}:{P+7}], v{vGR} offset:784")
    a("s_waitcnt lgkmcnt(0)")
    a(f"v_pk_add_f32 {v2(P)}, {v2(P)}, {v2(P+4)}")
    a(f"v_pk_add_f32 {v2(P+2)}, {v2(P+2)}, {v2(P+6)}")
    a(f"v_pk_add_f32 {v2(P)}, {v2(P)}, {v2(P+2)}")
    a(f"v_add_f32 v{P}, v{P}, v{P+1}")
    a.c("h = sum / 2^18; silu(h) = h / (1 + 2^(-h*log2 e))")
    c1 = struct.unpack("<I", struct.pack("<f", -1.4426950408889634 / 262144.0))[0]
    a(f"v_mul_f32 v{P+1}, 0x{c1:08x}, v{P}")
    a(f"v_exp_f32 v{P+1}, v{P+1}")
    a(f"v_mul_f32 v{P}, 0x36800000, v{P}")
    a(f"v_add_f32 v{P+1}, 1.0, v{P+1}")
    a(f"v_rcp_f32 v{P+1}, v{P+1}")
    a("s_nop 0")
    a(f"v_mul_f32 v{P}, v{P}, v{P+1}")
    a("s_nop 1")
    a.c("z = silu(h) @ w_up for channel 2*(l&31) + (l>>5); gate = bf16(1 / (1 + 2^(-z*log2 e)))")
    Z = vT
    for m in range(6):
        op = "v_mul_f32_dpp" if m < 2 else "v_fmac_f32_dpp"
        z = Z + 2 * (m & 1)
        a(f"{op} v{z}, v{P}, v{vWD+2*m} row_newbcast:{m} row_mask:0xf bank_mask:0xf")
        a(f"{op} v{z+1}, v{P}, v{vWD+2*m+1} row_newbcast:{m} row_mask:0xf bank_mask:0xf")
    a(f"v_pk_add_f32 {v2(Z)}, {v2(Z)}, {v2(Z+2)}")
    a("s_nop 1")
    a(f"v_permlane32_swap_b32 v{Z}, v{Z+1}")
    a(f"v_add_f32 v{Z}, v{Z}, v{Z+1}")
    a(f"v_mul_f32 v{Z}, 0xbfb8aa3b, v{Z}")
    a(f"v_exp_f32 v{Z}, v{Z}")
    a("s_nop 0")
    a(f"v_add_f32 v{Z}, 1.0, v{Z}")
    a(f"v_rcp_f32 v{Z}, v{Z}")
    a("s_nop 0")
    a(f"v_cvt_pk_bf16_f32 v{Z}, v{Z}, v{Z}")
    a(f"v_lshlrev_b32 v{Z}, 16, v{Z}")
    a(f"ds_write_b32 v{vEW}, v{Z}")
    a(f"ds_read_b128 v[{vAcc}:{vAcc+3}], v{vER}")
    a(f"ds_read_b128 v[{vAcc+4}:{vAcc+7}], v{vER} offset:16")
    a.c("phase 2: out = bf16(x * gate); most stores write through, a few stay in L2 for the end-of-kernel write-back")
    U = vWD
    for i in range(4):
        a(f"v_lshlrev_b32 v{U+2*i}, 16, v{D+i}")
        a(f"v_and_b32 v{U+2*i+1}, s{sMask}, v{D+i}")
    a(f"s_and_b32 s{sTmp}, s{sDec}, 0x010101")
    a(f"s_bcnt1_i32_b32 s{sTmp}, s{sTmp}")
    a(f"s_cmp_ge_u32 s{sTmp}, {nsw}")
    a("s_waitcnt lgkmcnt(0)")
    stamp("gates")
    def phase2(plain):
        for k in range(NT):
            if k == 0:
                pass
            else:
                for h in range(2):
                    d0, d1 = D + 4 * k + 2 * h, D + 4 * k + 2 * h + 1
                    t = vT if h == 0 else U
                    a(f"v_lshlrev_b32 v{t}, 16, v{d0}")
                    a(f"v_and_b32 v{t+1}, s{sMask}, v{d0}")
                    a(f"v_lshlrev_b32 v{t+2}, 16, v{d1}")
                    a(f"v_and_b32 v{t+3}, s{sMask}, v{d1}")
                    a(f"v_pk_mul_f32 {v2(t)}, {v2(t)}, {v2(vAcc+4*h)}")
                    a(f"v_pk_mul_f32 {v2(t+2)}, {v2(t+2)}, {v2(vAcc+4*h+2)}")
                    a(f"v_cvt_pk_bf16_f32 v{d0}, v{t}, v{t+1}")
                    a(f"v_cvt_pk_bf16_f32 v{d1}, v{t+2}, v{t+3}")
            f = "" if k in plain else " sc1"
            a(f"buffer_store_dwordx4 v[{D+4*k}:{D+4*k+3}], v{vOff}, {srd(sO)}, s{sT} offen{f}")
            step(k)
    for i in range(4):
        a(f"v_pk_mul_f32 {v2(U+2*i)}, {v2(U+2*i)}, {v2(vAcc+2*i)}")
    for i in range(4):
        a(f"v_cvt_pk_bf16_f32 v{D+i}, v{U+2*i}, v{U+2*i+1}")
    a("s_cbranch_scc1 L_through")
    phase2(plain)
    a("s_branch L_stored" if (stamps or addn) else "s_endpgm")
    a.lab("L_through")
    phase2(set())
    a.lab("L_stored")
    stamp("stissued")
    if addn:
        a("s_waitcnt vmcnt(0)")
        a("s_memrealtime s[60:61]")
        a(f"s_and_b32 s{sTmp}, s{sDec}, 0x010101")
        a(f"s_bcnt1_i32_b32 s{sTmp}, s{sTmp}")
        a(f"s_mul_i32 s{sTmp}, s{sTmp}, 10000")
        if addn == 2:
            a(f"s_bfe_u32 s{sTmp}, s{sX}, 0x2000c")
            a(f"s_mul_i32 s{sTmp}, s{sTmp}, 5000")
            a(f"s_bfe_u32 s{sA}, s{sO}, 0x2000c")
            a(f"s_mul_i32 s{sA}, s{sA}, 20000")
            a(f"s_add_u32 s{sTmp}, s{sTmp}, s{sA}")
            a(f"s_or_b32 s{sA}, s{sX}, s{sO}")
            a(f"s_and_b32 s{sA}, s{sA}, 0xfff")
            a(f"s_cselect_b32 s{sA}, 100000, 0")
            a(f"s_add_u32 s{sTmp}, s{sTmp}, s{sA}")
        if addn == 3:
            a(f"s_bfe_u32 s{sTmp}, s{sX}, 0x7000e")
            a(f"s_mul_i32 s{sTmp}, s{sTmp}, 1000")
        if addn == 4:
            a(f"s_bfe_u32 s{sTmp}, s{sO}, 0x7000e")
            a(f"s_mul_i32 s{sTmp}, s{sTmp}, 1000")
        if addn == 5:
            a(f"s_getreg_b32 s{sTmp}, hwreg(HW_REG_XCC_ID, 0, 3)")
            a(f"s_sub_u32 s{sTmp}, s{sTmp}, s2")
            a(f"s_and_b32 s{sTmp}, s{sTmp}, 7")
            a(f"s_mul_i32 s{sTmp}, s{sTmp}, 10000")
        a.lab("L_addn")
        a("s_memrealtime s[62:63]")
        a("s_waitcnt lgkmcnt(0)")
        a("s_sub_u32 s62, s62, s60")
        a(f"s_cmp_lt_u32 s62, s{sTmp}")
        a("s_cbranch_scc1 L_addn")
    if stamps:
        a("s_waitcnt vmcnt(0)")
        stamp("done")
        a("s_waitcnt lgkmcnt(0)")
    if diag is not None:
        if diag == "dec":
            a(f"s_and_b32 s{sTmp}, s{sDec}, 0x010101")
            a(f"s_bcnt1_i32_b32 s{sTmp}, s{sTmp}")
            a(f"s_mul_i32 s{sTmp}, s{sTmp}, 2000")
            a(f"s_add_u32 s{sTmp}, s{sTmp}, 5000")
            a(f"s_cmp_eq_u32 s{sSpin}, 0x100001")
            a(f"s_cselect_b32 s{sA}, 10000, 0")
            a(f"s_add_u32 s{sTmp}, s{sTmp}, s{sA}")
        else:
            i = names.index(diag)
            a(f"s_sub_u32 s{sTmp}, s{sSt+2*i}, s{sSt}")
            a(f"s_mul_i32 s{sTmp}, s{sTmp}, {amp}")
            if diag in ("have", "c_probe"):
                a(f"s_cmp_eq_u32 s{sW}, 0")
                a(f"s_cselect_b32 s{sTmp}, s{sTmp}, 0")
            if diag == "c_probe":
                a(f"s_cmp_lt_u32 s2, {ncontr}")
                a(f"s_cselect_b32 s{sTmp}, s{sTmp}, 0")
        a(f"s_min_u32 s{sTmp}, s{sTmp}, 200000")
        a.lab("L_diag")
        a(f"s_memrealtime s[{sSt+2}:{sSt+3}]")
        a("s_waitcnt lgkmcnt(0)")
        a(f"s_sub_u32 s{sSt+2}, s{sSt+2}, s{sSt}")
        a(f"s_cmp_lt_u32 s{sSt+2}, s{sTmp}")
        a("s_cbranch_scc1 L_diag")
    elif stamps:
        a(f"v_mov_b32 v{vT}, 0")
        a(f"v_mov_b32 v{vT+1}, 0")
        for i in range(len(names)):
            a(f"v_writelane_b32 v{vT}, s{sSt+2*i}, {i}")
            a(f"v_writelane_b32 v{vT+1}, s{sSt+2*i+1}, {i}")
        a(f"s_mul_i32 s{sTmp}, s2, 12")
        a(f"s_add_u32 s{sTmp}, s{sTmp}, s{sW}")
        a(f"s_lshl_b32 s{sTmp}, s{sTmp}, 7")
        a(f"s_add_u32 s{sTmp}, s{sTmp}, {STAMP_OFF}")
        a(f"v_lshlrev_b32 v{vX0}, 3, v{vL}")
        a("s_mov_b64 exec, 0xffff")
        a(f"buffer_store_dwordx2 v[{vT}:{vT+1}], v{vX0}, {srd(sWS)}, s{sTmp} offen")
    a.lab("L_end")
    a("s_endpgm")

    out = HEADER
    out += f"; @launch grid=({NWG},1,1) block=(768,1,1) lds=4368\n"
    if stamps: out += "; stamps: " + " ".join(names) + "\n"
    out += """.amdgcn_target "amdgcn-amd-amdhsa--gfx950"
.text
.globl standalone__se_block__vision_kernel
.p2align 8
.type standalone__se_block__vision_kernel,@function
standalone__se_block__vision_kernel:
"""
    out += a.text()
    out += f""".section .rodata,"a"
.p2align 6
.amdhsa_kernel standalone__se_block__vision_kernel
  .amdhsa_next_free_vgpr 168
  .amdhsa_next_free_sgpr {96 if stamps else 64}
  .amdhsa_accum_offset 168
  .amdhsa_group_segment_fixed_size 0
  .amdhsa_kernarg_size 48
  .amdhsa_user_sgpr_count 2
  .amdhsa_user_sgpr_kernarg_segment_ptr 1
  .amdhsa_system_sgpr_workgroup_id_x 1
  .amdhsa_float_denorm_mode_32 3
.end_amdhsa_kernel
"""
    return out

if __name__ == "__main__":
    from build import build
    name = sys.argv[1]
    kw = {}
    for x in sys.argv[2:]:
        k, v = x.split("=")
        try: v = int(v)
        except ValueError: pass
        kw[k] = v
    open(name, "w").write(gen(**kw))
    print(build(name))
```

```python
import sys, struct
from gen import A, HEADER, NB, NWG, STAMP_OFF

NT = 32
K = 1024
M = 1 << 20
SU = 48 * K
L0 = [0, 1, 2, 5, 6, 7, 11, 12]

def gen(ld="nt", stamps=False, spin=1 << 20, slot=128, plmod=6, vmap="b", theta=120, pre=4, clr=48, clrw=1, nsw=2,
        force=None, dbgdec=0, psleep=1, nst="2111", pw="3,7,11", rot=1, addn=0, nowait=0, ncontr=24, plmod2=0, wk=16, nohold=0, decw=2, cst=0, evn=1, spread=1, sord='seq', win2=0):
    a = A()
    D = 40
    sX, sO, sWS, sDB, sWD, sWU = 4, 8, 12, 16, 20, 24
    sW, sWp, sWq, sT, sBase, sMask, sSpin, sDec = 28, 29, 30, 31, 32, 33, 34, 35
    sTmp, sOdd, sPo, sTk, sRot, sLead = 38, 39, 40, 42, 43, 44
    sPr, sRole, sNeu, s3k = 46, 47, 48, 49
    sMB, sMS = 50, 54
    sTP = 36
    sA, sB = 58, 59
    sNs = 3
    sSt = 60
    vSl, vL, vOff, vPW, vPR, vPub, vChk, vTk = 0, 1, 2, 3, 4, 5, 6, 7
    vAcc, vT, vWD, vWU, vX0, vX1 = 8, 16, 20, 32, 38, 39
    def srd(s): return f"s[{s}:{s+3}]"
    def p64(s): return f"s[{s}:{s+1}]"
    def v2(r): return f"v[{r}:{r+1}]"
    names = []
    def stamp(n):
        if stamps:
            i = len(names)
            a(f"s_memrealtime s[{sSt+2*i}:{sSt+2*i+1}]")
            names.append(n)
    ldf = (" " + ld) if ld else ""
    P_, Q_, R_ = {"a": (4, 1, 512), "b": (1, 512, 128), "d": (1, 128, 512)}[vmap]
    assert sorted(pr * P_ + wq * Q_ + m * R_ for pr in range(128) for wq in range(4) for m in range(4)) == list(range(2048))
    def tab(t):
        T = sorted((u + t) & 15 for u in L0)
        return sum(u << (4 * n) for n, u in enumerate(T))
    for t in (0, 4): assert sorted([(u + t) & 15 for u in L0] + [(u + t + 8) & 15 for u in L0]) == list(range(16))
    LS = slot.bit_length() - 1
    nst = [int(c) for c in str(nst)]
    assert nst[0] == 2 and all(1 <= c <= 2 for c in nst) and nst == sorted(nst, reverse=True)
    n2 = nst.count(2)

    def rotate(m):
        if rot:
            a(f"s_mov_b32 s{sA}, s{sMS+m}")
            a(f"s_mov_b32 s{sB}, s{sMS+m}")
            a(f"s_lshr_b64 {p64(sA)}, {p64(sA)}, s{sRot}")
            a(f"s_mov_b32 s{sMS+m}, s{sA}")
    def addr(m):
        a(f"s_add_u32 s{sMB+m}, s{sBase}, {m * R_ * SU}")
        a(f"s_add_u32 s{sA}, s{sMB+m}, {24 * K}")
        a(f"s_lshr_b32 s{sB}, s{sA}, 25")
        a(f"s_add_u32 s{sA}, s{sA}, s{sO}")
        a(f"s_lshr_b32 s{sA}, s{sA}, 21")
        a(f"s_lshl_b32 s{sB}, s{sB}, 3")
        a(f"s_lshr_b32 s{sB}, s{sDec}, s{sB}")
        a(f"s_lshr_b32 s{sTmp}, s{sB}, 1")
        a(f"s_xor_b32 s{sA}, s{sA}, s{sTmp}")
        a(f"s_bitcmp1_b32 s{sA}, 0")
        a(f"s_cselect_b32 s{sA}, s{sTP+1}, s{sTP}")
        a(f"s_mov_b32 s{sTmp}, 0x{tab(0):x}")
        a(f"s_bitcmp{0 if m & 1 else 1}_b32 s{sNeu}, 0")
        a(f"s_cselect_b32 s{sTmp}, 0x{tab(8):x}, s{sTmp}")
        a(f"s_bitcmp1_b32 s{sB}, 0")
        a(f"s_cselect_b32 s{sMS+m}, s{sA}, s{sTmp}")
        rotate(m)
    def tile(k):
        m, n = divmod(k, 8)
        a(f"s_bfe_u32 s{sT}, s{sMS+m}, 0x{(4 << 16) | (4 * n):x}")
        a(f"s_mul_i32 s{sT}, s{sT}, s{s3k}")
        a(f"s_add_u32 s{sT}, s{sT}, s{sMB+m}")

    def slots():
        a.c("hand-off slots in d_ws: one line per workgroup; lane l covers slot (l>>2), bytes (l&3)*16")
        a(f"v_lshrrev_b32 v{vX0}, 2, v{vL}")
        a(f"v_and_b32 v{vX1}, 3, v{vL}")
        a(f"v_lshlrev_b32 v{vX0}, {LS}, v{vX0}")
        a(f"v_lshl_add_u32 v{vSl}, v{vX1}, 4, v{vX0}")
    def ldsinit():
        a.c("LDS ticket and placement word are zero before any wave uses them")
        a(f"ds_write_b32 v{vTk}, v{vTk} offset:4352")
        a(f"ds_write_b32 v{vTk}, v{vTk} offset:4356")
    a.c("workgroups past the 256 that carry data leave at once")
    a(f"s_cmp_ge_u32 s2, {NWG}")
    a("s_cbranch_scc1 L_end")
    for (s, off) in ((sX, 0), (sO, 24), (sDB, 32), (sWS, 40), (sWD, 8), (sWU, 16)):
        a(f"s_load_dwordx2 {p64(s)}, s[0:1], {off}")
    stamp("entry")
    a.c("wave w = 3*wq + wp; lane l reads 16 bytes: row (l>>3) of an 8-row unit, bytes wp*128 + (l&7)*16")
    a(f"v_lshrrev_b32 v{vX0}, 6, v0")
    a(f"v_and_b32 v{vL}, 63, v0")
    a(f"v_readfirstlane_b32 s{sW}, v{vX0}")
    a(f"v_lshrrev_b32 v{vX0}, 3, v{vL}")
    a(f"v_and_b32 v{vX1}, 7, v{vL}")
    a(f"v_mul_u32_u24 v{vOff}, 384, v{vX0}")
    a(f"v_lshl_add_u32 v{vOff}, v{vX1}, 4, v{vOff}")
    a.c("workgroups id and id^4 form a pair that shares 48 KiB spans (16 units of 8 rows; 8 units each)")
    a(f"s_bfe_u32 s{sRole}, s2, 0x10002")
    a(f"s_lshr_b32 s{sRot}, s2, 3")
    a(f"s_and_b32 s{sPr}, s2, 3")
    a(f"s_lshl2_add_u32 s{sPr}, s{sRot}, s{sPr}")
    a(f"s_mul_i32 s{sMB}, s{sPr}, {P_ * SU}")
    a(f"s_mul_i32 s{sWq}, s{sW}, 43")
    a(f"s_lshr_b32 s{sWq}, s{sWq}, 7")
    a(f"s_mul_i32 s{sTmp}, s{sWq}, {Q_ * SU - 384}")
    a(f"s_add_u32 s{sMB}, s{sMB}, s{sTmp}")
    a(f"s_lshl_b32 s{sTmp}, s{sW}, 7")
    a(f"s_add_u32 s{sMB}, s{sMB}, s{sTmp}")
    a(f"s_xor_b32 s{sNeu}, s{sRot}, s{sWq}")
    a(f"s_xor_b32 s{sNeu}, s{sNeu}, s{sRole}")
    a(f"s_mov_b32 s{sA}, 0x{tab(0):x}")
    a(f"s_bitcmp1_b32 s{sNeu}, 0")
    a(f"s_cselect_b32 s{sA}, 0x{tab(8):x}, s{sA}")
    a(f"s_and_b32 s{sRot}, s{sRot}, 7")
    a(f"s_lshl_b32 s{sRot}, s{sRot}, 2")
    if rot:
        a(f"s_mov_b32 s{sB}, s{sA}")
        a(f"s_lshr_b64 {p64(sA)}, {p64(sA)}, s{sRot}")
    a(f"s_mov_b32 s{sMS}, s{sA}")
    a(f"s_movk_i32 s{s3k}, 3072")
    tile(0)
    a(f"s_mov_b32 s{sX+2}, {NB}")
    a(f"s_mov_b32 s{sX+3}, 0x00020000")
    a(f"v_mov_b32 v{vTk}, 0")
    if evn:
        a(f"s_mul_i32 s{sTk}, s2, 0x80000001")
        a(f"s_cmp_ge_u32 s{sTk}, {2 * ncontr}")
    else:
        a(f"s_cmp_ge_u32 s2, {ncontr}")
    a("s_waitcnt lgkmcnt(0)")
    stamp("karg")
    a("s_cbranch_scc1 L_go")
    a.c("placement probe (wave 0 of the 24 even workgroups below 48, ahead of their other loads): two loads 8 KiB apart;")
    a.c("a late second return shows that its line lives on the other die.  The loaded values are not used.")
    if nohold:
        ldsinit()
        a("s_waitcnt lgkmcnt(0)")
    a(f"s_cmp_lg_u32 s{sW}, 0")
    a("s_cbranch_scc1 L_probe_other")
    a(f"s_lshr_b32 s{sLead}, s{sPr}, {1 if evn else 0}")
    a(f"s_cmp_ge_u32 s{sLead}, 6")
    a(f"s_cselect_b32 s{sTk}, 1, 0")
    a(f"s_cselect_b32 s{sTmp}, 6, 0")
    a(f"s_sub_u32 s{sLead}, s{sLead}, s{sTmp}")
    a(f"s_lshr_b32 s{sA}, s{sLead}, 1")
    a(f"s_lshl_b32 s{sA}, s{sA}, 25")
    a(f"s_lshl_b32 s{sTmp}, s{sTk}, 24")
    a(f"s_add_u32 s{sA}, s{sA}, s{sTmp}")
    if spread:
        a(f"s_add_u32 s{sA}, s{sA}, 0x4000")
        a(f"s_mul_i32 s{sB}, s2, {0x300000 + 0x4000 + 0x280}")
        a(f"s_and_b32 s{sB}, s{sB}, 0xefdf00")
    else:
        a(f"s_add_u32 s{sA}, s{sA}, {8 * M + 0x4000}")
        a(f"s_mul_i32 s{sB}, s2, {0x4000 + 0x500}")
        a(f"s_and_b32 s{sB}, s{sB}, 0xfdf00")
    a(f"s_add_u32 s{sA}, s{sA}, s{sO}")
    a(f"s_andn2_b32 s{sA}, s{sA}, 0x3fff")
    a(f"s_add_u32 s{sA}, s{sA}, s{sB}")
    a(f"s_lshr_b32 s{sB}, s{sA}, 21")
    a(f"s_xor_b32 s{sB}, s{sB}, s{sTk}")
    a(f"s_and_b32 s{sB}, s{sB}, 1")
    a(f"s_lshl_b32 s{sB}, s{sB}, 13")
    a(f"s_or_b32 s{sA}, s{sA}, s{sB}")
    a(f"s_xor_b32 s{sB}, s{sA}, 0x2000")
    a(f"s_sub_u32 s{sA}, s{sA}, s{sO}")
    a(f"s_sub_u32 s{sB}, s{sB}, s{sO}")
    a(f"s_mov_b32 s{sO+2}, {NB}")
    a(f"s_mov_b32 s{sO+3}, 0x00020000")
    a(f"s_sub_u32 s{sTmp}, s{sO}, s{sX}")
    a(f"s_add_u32 s{sTmp}, s{sTmp}, 0x800")
    a(f"s_lshr_b32 s{sTmp}, s{sTmp}, 12")
    a(f"s_or_b32 s{sTmp}, s{sTmp}, s{sLead}")
    a("s_mov_b64 exec, 1")
    a(f"s_bitcmp1_b32 s{sTmp}, 0")
    a("s_cbranch_scc1 L_probe_out")
    a(f"buffer_load_dword v{vX0}, v{vTk}, {srd(sX)}, s{sA} offen nt")
    a(f"buffer_load_dword v{vX1}, v{vTk}, {srd(sX)}, s{sB} offen nt")
    a("s_branch L_probe_wait")
    a.lab("L_probe_out")
    a(f"buffer_load_dword v{vX0}, v{vTk}, {srd(sO)}, s{sA} offen nt")
    a(f"buffer_load_dword v{vX1}, v{vTk}, {srd(sO)}, s{sB} offen nt")
    a.lab("L_probe_wait")
    a("s_barrier")
    a.c("word 4*statistic + 2*copy + role of d_debug <- valid | ((die id - workgroup id) & 7) << 16 | (signed delay + 1024)")
    a(f"s_mov_b32 s{sDB+2}, 256")
    a(f"s_mov_b32 s{sDB+3}, 0x00020000")
    a(f"s_getreg_b32 s{sDec}, hwreg(HW_REG_XCC_ID, 0, 3)")
    a(f"s_sub_u32 s{sLead+1}, s{sDec}, s2")
    a(f"s_and_b32 s{sLead+1}, s{sLead+1}, 7")
    a(f"s_lshl_b32 s{sLead+1}, s{sLead+1}, 16")
    a(f"s_or_b32 s{sLead+1}, s{sLead+1}, 0x80000400")
    a(f"s_lshr_b32 s{sDec}, s{sDec}, 2")
    a(f"s_lshl1_add_u32 s{sLead}, s{sLead}, s{sTk}")
    a(f"s_lshl1_add_u32 s{sLead}, s{sLead}, s{sRole}")
    a(f"s_lshl_b32 s{sLead}, s{sLead}, 2")
    a(f"s_xor_b32 s{sTmp}, s{sTk}, s{sDec}")
    a(f"v_mov_b32 v{vT+1}, 0")
    a("s_waitcnt vmcnt(1)")
    a(f"s_memtime {p64(sA)}")
    a("s_waitcnt vmcnt(0)")
    a(f"s_memtime {p64(sPo)}")
    a("s_waitcnt lgkmcnt(0)")
    a(f"s_sub_u32 s{sA}, s{sPo}, s{sA}")
    a(f"s_min_u32 s{sA}, s{sA}, 600")
    a(f"s_sub_u32 s{sB}, 0, s{sA}")
    a(f"s_cmp_lg_u32 s{sTmp}, 0")
    a(f"s_cselect_b32 s{sA}, s{sB}, s{sA}")
    a(f"s_add_u32 s{sA}, s{sA}, s{sLead+1}")
    a(f"v_mov_b32 v{vT}, s{sA}")
    if nohold: a("s_setprio 3")
    a(f"buffer_atomic_cmpswap v[{vT}:{vT+1}], v{vTk}, {srd(sDB)}, s{sLead} offen")
    if nohold: a("s_setprio 0")
    a("s_mov_b64 exec, -1")
    a("s_branch L_go")
    a.lab("L_probe_other")
    a("s_barrier")

    a.lab("L_go")
    order = []
    def load(k, nxt=True):
        a(f"buffer_load_dwordx4 v[{D+4*k}:{D+4*k+3}], v{vOff}, {srd(sX)}, s{sT} offen{ldf}")
        if nxt and (k + 1) % 8: tile(k + 1)
        order.append(k)
    a(f"s_cmp_eq_u32 s2, {clr}")
    a("s_cbranch_scc1 L_clear")
    a.lab("L_first")
    if cst: stamp("go")
    for k in range(pre):
        load(k)
    for (s, n) in ((sO, NB), (sDB, 256), (sWS, (2 << 20) if stamps else 256 * slot), (sWD, 4608), (sWU, 4608)):
        a(f"s_mov_b32 s{s+2}, {n}")
        a(f"s_mov_b32 s{s+3}, 0x00020000")
    a(f"s_mov_b32 s{sBase}, s{sMB}")
    a(f"s_mul_i32 s{sTmp}, s{sWq}, 3")
    a(f"s_sub_u32 s{sWp}, s{sW}, s{sTmp}")
    slots()
    if nohold:
        assert not evn
        a(f"s_cmp_lt_u32 s2, {ncontr}")
        a("s_cbranch_scc1 L_noflagset")
    ldsinit()
    a(f"s_xor_b32 s{sTmp}, s2, {clr}")
    a(f"s_xor_b32 s{sA}, s{sW}, {clrw}")
    a(f"s_or_b32 s{sTmp}, s{sTmp}, s{sA}")
    a("s_waitcnt lgkmcnt(0)")
    a("s_barrier")
    a("s_cbranch_scc1 L_noflagset")
    a.c("the markers have landed: raise the flag in d_debug")
    a(f"v_mov_b32 v{vX1}, 1")
    a("s_waitcnt vmcnt(0)")
    a("s_mov_b64 exec, 1")
    a(f"buffer_store_dword v{vX1}, v{vTk}, {srd(sDB)}, 0 offen offset:192 sc1")
    a("s_mov_b64 exec, -1")
    a.lab("L_noflagset")
    if cst: stamp("bar0")
    def weights():
        a.c("weights: w_down row of channel 64*wp + 8*(l&7) + (l>>3); w_up dwords (row 2m + (l>>5), channels 64*wp + 2*(l&31), +1)")
        a(f"v_lshrrev_b32 v{vX0}, 3, v{vL}")
        a(f"v_and_b32 v{vX1}, 7, v{vL}")
        a(f"v_lshl_add_u32 v{vX0}, v{vX1}, 3, v{vX0}")
        a(f"v_mul_u32_u24 v{vX0}, 24, v{vX0}")
        a(f"s_mul_i32 s{sTmp}, s{sWp}, 1536")
        a(f"buffer_load_dwordx4 v[{vWD+6}:{vWD+9}], v{vX0}, {srd(sWD)}, s{sTmp} offen")
        a(f"buffer_load_dwordx2 v[{vWD+10}:{vWD+11}], v{vX0}, {srd(sWD)}, s{sTmp} offen offset:16")
        a(f"v_lshrrev_b32 v{vX0}, 5, v{vL}")
        a(f"v_and_b32 v{vX1}, 31, v{vL}")
        a(f"v_mul_u32_u24 v{vX0}, 384, v{vX0}")
        a(f"v_lshl_add_u32 v{vX0}, v{vX1}, 2, v{vX0}")
        a(f"s_lshl_b32 s{sTmp}, s{sWp}, 7")
        for m in range(6):
            a(f"buffer_load_dword v{vWU+m}, v{vX0}, {srd(sWU)}, s{sTmp} offen offset:{768*m}")
        order.extend(["w"] * 8)
    for k in range(pre, 8):
        load(k)
    if wk == 8: weights()
    a(f"s_mov_b32 s{sSpin}, {spin}")
    a.c("unit tables of a placed span: units whose output lines (mostly) have address bit 13 clear / set")
    a(f"s_add_u32 s{sTmp}, s{sO}, 0x800")
    a(f"s_sub_u32 s{sOdd}, s{sTmp}, s{sX}")
    a(f"s_mov_b32 s{sTP}, 0x{tab(0):x}")
    a(f"s_mov_b32 s{sTP+1}, 0x{tab(8):x}")
    a(f"s_bitcmp1_b32 s{sTmp}, 12")
    a(f"s_cselect_b32 s{sTP}, 0x{tab(4):x}, s{sTP}")
    a(f"s_cselect_b32 s{sTP+1}, 0x{tab(12):x}, s{sTP+1}")
    a(f"s_mov_b32 s{sDec}, 0")
    stamp("static")
    def lpoll(tag):
        a.lab(f"L_dec{tag}")
        a(f"ds_read_b32 v{vChk}, v{vTk} offset:4356")
        a("s_waitcnt lgkmcnt(0)")
        a(f"v_readfirstlane_b32 s{sDec}, v{vChk}")
        a("s_nop 3")
        a(f"s_cmp_lt_i32 s{sDec}, 0")
        a(f"s_cbranch_scc1 L_dec_ok{tag}")
        a(f"s_sleep {psleep}")
        a(f"s_sub_u32 s{sSpin}, s{sSpin}, 1")
        a(f"s_cbranch_scc0 L_dec{tag}")
    a.c("the placement word decides which units of the remaining spans this workgroup takes")
    a(f"s_cmp_lt_u32 s{sWq}, {n2 if not nowait else 9}")
    a("s_cbranch_scc1 L_dec_okA")
    lpoll("A")
    a.lab("L_dec_okA")
    addr(1)
    tile(8)
    for k in range(8, 16):
        load(k)
    if wk == 16: weights()
    a(f"s_cmp_ge_u32 s{sWq}, {n2 if not nowait else 0}")
    a("s_cbranch_scc1 L_dec_okB")
    a(f"s_cmp_lg_u32 s{sW}, {decw}")
    a("s_cbranch_scc1 L_decB")
    a.c("one wave reads the probe words at several moments (the returns queue behind the data) and decides for the workgroup")
    a(f"v_lshlrev_b32 v{vX0}, 2, v{vL}")
    a("s_mov_b64 exec, 0xffffff")
    pws = [int(x) for x in str(pw).split(",")] if pw != "" else []
    NP = len(pws) + 1
    def rd(i): a(f"buffer_load_dword v{vT+i}, v{vX0}, {srd(sDB)}, 0 offen sc1")
    rd(0)
    for i, t in enumerate(pws):
        a(f"s_waitcnt vmcnt({len(order) - 1 - order.index(t) + i + 1})")
        rd(i + 1)
    for i in range(NP):
        a(f"s_waitcnt vmcnt({NP - 1 - i})")
        a(f"v_cmp_le_i32 vcc, 0, v{vT+i}")
        if i: a(f"v_mov_b32 v{vT}, v{vT+i}")
        a("s_cbranch_vccz L_have")
    a.lab("L_again")
    rd(0)
    a("s_waitcnt vmcnt(0)")
    a(f"v_cmp_le_i32 vcc, 0, v{vT}")
    a("s_cbranch_vccz L_have")
    a(f"s_sub_u32 s{sSpin}, s{sSpin}, 1")
    a("s_cbranch_scc0 L_again")
    a.lab("L_have")
    a(f"v_and_b32 v{vX1}, 0xfff, v{vT}")
    a(f"v_lshrrev_b32 v{vX0}, 16, v{vT}")
    a("s_nop 0")
    a(f"v_add_u32_dpp v{vX1}, v{vX1}, v{vX1} quad_perm:[1,0,3,2] row_mask:0xf bank_mask:0xf")
    a(f"v_readfirstlane_b32 s{sB}, v{vX0}")
    a("s_nop 0")
    a(f"v_add_u32_dpp v{vX1}, v{vX1}, v{vX1} quad_perm:[2,3,0,1] row_mask:0xf bank_mask:0xf")
    a(f"v_cmp_lt_u32 vcc, {4096 + theta}, v{vX1}")
    a(f"s_mov_b32 s{sTmp}, vcc_lo")
    a(f"v_cmp_gt_u32 vcc, {4096 - theta}, v{vX1}")
    a.c("bit 8r: region placed, bit 8r+1: side.  Buffers 4 KiB out of step: all probes were on the output, one clear answer is enough;")
    a.c("otherwise input and output must agree")
    a(f"s_mov_b32 s{sPo}, vcc_lo")
    a(f"s_lshr_b32 s{sA}, s{sTmp}, 4")
    a(f"s_lshr_b32 s{sPo+1}, s{sPo}, 4")
    a(f"s_or_b32 s{sLead}, s{sTmp}, s{sA}")
    a(f"s_or_b32 s{sLead+1}, s{sPo}, s{sPo+1}")
    a(f"s_and_b32 s{sTmp}, s{sTmp}, s{sA}")
    a(f"s_and_b32 s{sA}, s{sPo}, s{sPo+1}")
    a(f"s_andn2_b32 s{sPo}, s{sLead}, s{sLead+1}")
    a(f"s_andn2_b32 s{sPo+1}, s{sLead+1}, s{sLead}")
    a(f"s_bitcmp1_b32 s{sOdd}, 12")
    a(f"s_cselect_b32 s{sTmp}, s{sPo}, s{sTmp}")
    a(f"s_cselect_b32 s{sA}, s{sPo+1}, s{sA}")
    a(f"v_cmp_ne_u32 vcc, s{sB}, v{vX0}")
    a(f"s_and_b32 s{sTmp}, s{sTmp}, 0x010101")
    a(f"s_and_b32 s{sA}, s{sA}, 0x030303")
    a(f"s_or_b32 s{sDec}, s{sTmp}, s{sA}")
    a.c("only if every probing workgroup sits where round-robin placement puts it; bit 2 of (id + offset) then tells the die")
    a("s_cmp_eq_u32 vcc_lo, 0")
    a(f"s_cselect_b32 s{sDec}, s{sDec}, 0")
    a(f"s_add_u32 s{sB}, s{sB}, s2")
    a(f"s_lshr_b32 s{sB}, s{sB}, 1")
    a(f"s_add_u32 s{sA}, s{sO}, 0x800")
    a(f"s_lshr_b32 s{sA}, s{sA}, 12")
    a(f"s_xor_b32 s{sB}, s{sB}, s{sA}")
    a(f"s_and_b32 s{sB}, s{sB}, 2")
    a(f"s_mul_i32 s{sB}, s{sB}, 0x010101")
    a(f"s_xor_b32 s{sDec}, s{sDec}, s{sB}")
    if force is not None: a(f"s_mov_b32 s{sDec}, {force}")
    a(f"s_bitset1_b32 s{sDec}, 31")
    a(f"v_mov_b32 v{vX0}, s{sDec}")
    a(f"ds_write_b32 v{vTk}, v{vX0} offset:4356")
    if dbgdec:
        a(f"buffer_store_dword v{vX0}, v{vTk}, {srd(sDB)}, 0 offen offset:128")
    a("s_mov_b64 exec, -1")
    a("s_branch L_dec_okB")
    lpoll("B")
    a.lab("L_dec_okB")
    stamp("dec")
    addr(2)
    tile(16)
    for k in range(16, 24):
        load(k)
    addr(3)
    tile(24)
    for k in range(24, NT):
        load(k)
    a.c("wave 0: read the reset flag (it returns behind the data)")
    a(f"s_cmp_lg_u32 s{sW}, 0")
    a("s_cbranch_scc1 L_noflag")
    a(f"buffer_load_dword v{vChk}, v{vTk}, {srd(sDB)}, 0 offen offset:192 sc1")
    a.lab("L_noflag")
    stamp("issued")
    a.c("LDS: P[12][16] per-wave partials at 0, G[12][8] at 768, gates at 1280, ticket at 4352, placement word at 4356")
    a(f"s_mov_b32 s{sMask}, 0xffff0000")
    a(f"v_lshrrev_b32 v{vX0}, 4, v{vL}")
    a(f"s_lshl_b32 s{sTmp}, s{sW}, 6")
    a(f"v_lshl_add_u32 v{vPW}, v{vX0}, 4, s{sTmp}")
    a(f"v_and_b32 v{vX1}, 15, v{vL}")
    a(f"v_lshlrev_b32 v{vX1}, 2, v{vX1}")
    a(f"v_lshl_add_u32 v{vPR}, v{vX0}, 6, v{vX1}")
    a(f"s_mov_b32 s{sLead}, 0x00010001")
    a(f"s_mov_b32 s{sLead+1}, 0x00010001")
    a.c("publish address: lanes 0..15 -> this workgroup's slot, word l; the other lanes are out of range")
    a(f"s_lshl_b32 s{sTmp}, s2, {LS}")
    a(f"v_lshl_add_u32 v{vPub}, v{vL}, 2, s{sTmp}")
    a(f"v_cmp_gt_u32 vcc, 16, v{vL}")
    a(f"v_mov_b32 v{vX0}, 0x40000000")
    a(f"v_mov_b32 v{vX1}, 1")
    a(f"v_cndmask_b32 v{vPub}, v{vX0}, v{vPub}, vcc")

    a.c("phase 1: f32 channel sums of this lane's 8 channels; the data stay in v40..v167")
    for k in range(NT):
        if k == 0: a("s_waitcnt vmcnt(16)")
        if k >= 16: a(f"s_waitcnt vmcnt({len(order) - 1 - order.index(k)})")
        if k == 8:
            for i in range(6):
                a(f"v_lshlrev_b32 v{vWD+2*i}, 16, v{vWD+6+i}")
                a(f"v_and_b32 v{vWD+2*i+1}, s{sMask}, v{vWD+6+i}")
        for h in range(2):
            d0, d1 = D + 4 * k + 2 * h, D + 4 * k + 2 * h + 1
            t = vAcc + 4 * h if k == 0 else vT
            a(f"v_lshlrev_b32 v{t}, 16, v{d0}")
            a(f"v_and_b32 v{t+1}, s{sMask}, v{d0}")
            a(f"v_lshlrev_b32 v{t+2}, 16, v{d1}")
            a(f"v_and_b32 v{t+3}, s{sMask}, v{d1}")
            if k:
                a(f"v_pk_add_f32 {v2(vAcc+4*h)}, {v2(vAcc+4*h)}, {v2(vT)}")
                a(f"v_pk_add_f32 {v2(vAcc+4*h+2)}, {v2(vAcc+4*h+2)}, {v2(vT+2)}")
    stamp("loaded")
    a.c("wave 0: the slots must have been reset before this workgroup publishes or trusts a slot")
    a(f"s_cmp_lg_u32 s{sW}, 0")
    a("s_cbranch_scc1 L_chk_ok")
    a.lab("L_chk")
    a(f"v_cmp_eq_u32 vcc, 0, v{vChk}")
    a("s_cbranch_vccz L_chk_ok")
    a("s_sleep 4")
    a(f"buffer_load_dword v{vChk}, v{vTk}, {srd(sDB)}, 0 offen offset:192 sc1")
    a("s_waitcnt vmcnt(0)")
    a(f"s_sub_u32 s{sSpin}, s{sSpin}, 1")
    a("s_cbranch_scc0 L_chk")
    a.lab("L_chk_ok")
    A_ = vAcc
    a.c("8 sums x 8 lane rows -> one channel sum per lane (channel 8*(l&7) + (l>>3))")
    for i in range(4):
        a(f"v_permlane32_swap_b32 v{A_+i}, v{A_+i+4}")
    a(f"v_pk_add_f32 {v2(A_)}, {v2(A_)}, {v2(A_+4)}")
    a(f"v_pk_add_f32 {v2(A_+2)}, {v2(A_+2)}, {v2(A_+6)}")
    a("s_nop 1")
    for i in range(2):
        a(f"v_permlane16_swap_b32 v{A_+i}, v{A_+i+2}")
    a(f"v_pk_add_f32 {v2(A_)}, {v2(A_)}, {v2(A_+2)}")
    a("s_nop 1")
    a(f"v_add_f32_dpp v{A_+2}, v{A_}, v{A_} row_ror:8 row_mask:0xf bank_mask:0x3")
    a("s_nop 1")
    a(f"v_add_f32_dpp v{A_+2}, v{A_+1}, v{A_+1} row_ror:8 row_mask:0xf bank_mask:0xc")
    a.c("times the w_down row, summed over the wave: row r of 16 lanes keeps outputs 3r..3r+2")
    for j in (0, 6, 2, 8, 4, 10):
        a(f"v_pk_mul_f32 {v2(vWD+j)}, {v2(A_+2)}, {v2(vWD+j)} op_sel_hi:[0,1]")
    for i in range(6):
        a(f"v_permlane32_swap_b32 v{vWD+i}, v{vWD+i+6}")
    for i in range(0, 6, 2):
        a(f"v_pk_add_f32 {v2(vWD+i)}, {v2(vWD+i)}, {v2(vWD+i+6)}")
    a("s_nop 1")
    for i in range(3):
        a(f"v_permlane16_swap_b32 v{vWD+i}, v{vWD+i+3}")
    for i in range(3):
        a(f"v_add_f32 v{vWD+i}, v{vWD+i}, v{vWD+i+3}")
    for sh in (8, 4, 2, 1):
        for i in range(3):
            a(f"v_add_f32_dpp v{vWD+i}, v{vWD+i}, v{vWD+i} row_ror:{sh} row_mask:0xf bank_mask:0xf")
    a.c("partials -> LDS, take a ticket, read all partials back (complete for the wave whose ticket is last)")
    a(f"s_mov_b64 exec, {p64(sLead)}")
    a(f"ds_write_b128 v{vPW}, v[{vWD}:{vWD+3}]")
    a("s_mov_b64 exec, 1")
    a(f"ds_add_rtn_u32 v{vX0}, v{vTk}, v{vX1} offset:4352")
    a("s_mov_b64 exec, -1")
    a(f"ds_read_b32 v{vT}, v{vPR}")
    a(f"ds_read_b32 v{vT+1}, v{vPR} offset:256")
    a(f"ds_read_b32 v{vT+2}, v{vPR} offset:512")
    a("s_waitcnt lgkmcnt(0)")
    a(f"v_readfirstlane_b32 s{sTk}, v{vX0}")
    a(f"v_add_f32 v{vT}, v{vT}, v{vT+1}")
    a(f"v_add_f32 v{vT}, v{vT}, v{vT+2}")
    a(f"v_mov_b32 v{vT+1}, v{vT}")
    a(f"s_cmp_lg_u32 s{sTk}, 11")
    a("s_cbranch_scc1 L_nopub")
    a(f"v_permlane32_swap_b32 v{vT}, v{vT+1}")
    a(f"v_add_f32 v{vT}, v{vT}, v{vT+1}")
    a(f"v_mov_b32 v{vT+1}, v{vT}")
    a("s_nop 1")
    a(f"v_permlane16_swap_b32 v{vT}, v{vT+1}")
    a(f"v_add_f32 v{vT}, v{vT}, v{vT+1}")
    a(f"v_min_u32 v{vT}, -2, v{vT}")
    a(f"buffer_store_dword v{vT}, v{vPub}, {srd(sWS)}, 0 offen sc1")
    a.lab("L_nopub")
    stamp("pub")
    vGW, vGR, vEW, vER = vPR, vPub, vTk, vChk
    P = vAcc
    a.c("addresses for the rest, w_up to f32")
    a(f"s_lshl_b32 s{sPo}, s{sW}, {LS+5}")
    a(f"s_add_u32 s{sPo+1}, s{sPo}, {16*slot}")
    a(f"v_lshrrev_b32 v{vX0}, 4, v{vL}")
    a(f"v_and_b32 v{vX1}, 3, v{vL}")
    a(f"v_mad_u32_u24 v{vX0}, v{vX1}, 3, v{vX0}")
    a(f"s_lshl_b32 s{sTmp}, s{sW}, 2")
    a(f"s_add_u32 s{sTmp}, s{sTmp}, 768")
    a(f"v_lshl_add_u32 v{vGW}, v{vX0}, 5, s{sTmp}")
    a(f"v_and_b32 v{vX0}, 15, v{vL}")
    a(f"v_min_u32 v{vX0}, 5, v{vX0}")
    a(f"v_lshrrev_b32 v{vX1}, 5, v{vL}")
    a(f"v_lshl_add_u32 v{vX0}, v{vX0}, 1, v{vX1}")
    a(f"v_lshlrev_b32 v{vGR}, 5, v{vX0}")
    a(f"v_and_b32 v{vX0}, 31, v{vL}")
    a(f"v_lshl_add_u32 v{vX0}, v{vX0}, 1, v{vX1}")
    a(f"s_lshl_b32 s{sTmp}, s{sW}, 8")
    a(f"s_add_u32 s{sTmp}, s{sTmp}, 1280")
    a(f"v_lshl_add_u32 v{vEW}, v{vX0}, 2, s{sTmp}")
    a(f"v_and_b32 v{vX0}, 7, v{vL}")
    a(f"v_lshl_add_u32 v{vER}, v{vX0}, 5, s{sTmp}")
    for m in range(6):
        a(f"v_lshlrev_b32 v{vWD+2*m}, 16, v{vWU+m}")
        a(f"v_and_b32 v{vWD+2*m+1}, s{sMask}, v{vWU+m}")
    a(f"s_mov_b32 s{sLead}, 0x000f000f")
    a(f"s_mov_b32 s{sLead+1}, 0x0000000f")
    SO = {"seq": list(range(NT)),
          "rr": [8 * m + n for n in range(8) for m in (2, 0, 3, 1)],
          "rr2": [8 * m + n + j for n in range(0, 8, 2) for m in (2, 0, 3, 1) for j in range(2)],
          "rev": list(range(16, 32)) + list(range(8, 16)) + list(range(8)),
          "mid": list(range(16, 24)) + list(range(8)) + list(range(24, 32)) + list(range(8, 16))}[sord]
    tile(SO[0])
    a(f"s_cmp_ge_u32 s{sW}, 8")
    a("s_barrier")
    stamp("bar1")
    a("s_cbranch_scc1 L_nopoll")
    a.c("waves 0..7: gather 32 slots each; only the lanes whose words are still 'empty' read again")
    a.lab("L_poll")
    a(f"buffer_load_dwordx3 v[{P}:{P+2}], v{vSl}, {srd(sWS)}, s{sPo} offen sc1")
    a(f"buffer_load_dwordx3 v[{P+4}:{P+6}], v{vSl}, {srd(sWS)}, s{sPo+1} offen sc1")
    a("s_waitcnt vmcnt(0)")
    a(f"v_max3_u32 v{vT}, v{P}, v{P+1}, v{P+2}")
    a(f"v_max3_u32 v{vT+1}, v{P+4}, v{P+5}, v{P+6}")
    a(f"v_max_u32 v{vT}, v{vT}, v{vT+1}")
    a(f"v_cmp_eq_u32 vcc, -1, v{vT}")
    a("s_and_b64 exec, vcc, vcc")
    a("s_cbranch_scc0 L_got")
    a(f"s_sub_u32 s{sSpin}, s{sSpin}, 1")
    a("s_cbranch_scc0 L_poll")
    a.lab("L_got")
    a("s_mov_b64 exec, -1")
    a(f"v_pk_add_f32 {v2(P)}, {v2(P)}, {v2(P+4)}")
    a(f"v_add_f32 v{P+2}, v{P+2}, v{P+6}")
    a("s_nop 1")
    a(f"v_permlane32_swap_b32 v{P}, v{P+2}")
    a(f"v_permlane32_swap_b32 v{P+1}, v{P+3}")
    a(f"v_pk_add_f32 {v2(P)}, {v2(P)}, {v2(P+2)}")
    a("s_nop 1")
    a(f"v_permlane16_swap_b32 v{P}, v{P+1}")
    a(f"v_add_f32 v{P}, v{P}, v{P+1}")
    for sh in (8, 4):
        a("s_nop 1")
        a(f"v_add_f32_dpp v{P}, v{P}, v{P} row_ror:{sh} row_mask:0xf bank_mask:0xf")
    a(f"s_mov_b64 exec, {p64(sLead)}")
    a(f"ds_write_b32 v{vGW}, v{P}")
    a("s_mov_b64 exec, -1")
    a("s_waitcnt lgkmcnt(0)")
    a.lab("L_nopoll")
    if not cst: stamp("got")
    a("s_barrier")
    stamp("bar2")
    a(f"ds_read_b128 v[{P}:{P+3}], v{vGR} offset:768")
    a(f"ds_read_b128 v[{P+4}:{P+7}], v{vGR} offset:784")
    a(f"s_and_b32 s{sTmp}, s{sDec}, 0x010101")
    a(f"s_bcnt1_i32_b32 s{sTmp}, s{sTmp}")
    a(f"s_cmp_ge_u32 s{sTmp}, {nsw}")
    a("s_waitcnt lgkmcnt(0)")
    a(f"v_pk_add_f32 {v2(P)}, {v2(P)}, {v2(P+4)}")
    a(f"v_pk_add_f32 {v2(P+2)}, {v2(P+2)}, {v2(P+6)}")
    a(f"v_pk_add_f32 {v2(P)}, {v2(P)}, {v2(P+2)}")
    a(f"v_add_f32 v{P}, v{P}, v{P+1}")
    a.c("h = sum / 2^18; silu(h) = h / (1 + 2^(-h*log2 e))")
    c1 = struct.unpack("<I", struct.pack("<f", -1.4426950408889634 / 262144.0))[0]
    a(f"v_mul_f32 v{P+1}, 0x{c1:08x}, v{P}")
    a(f"v_exp_f32 v{P+1}, v{P+1}")
    a(f"v_mul_f32 v{P}, 0x36800000, v{P}")
    a(f"v_add_f32 v{P+1}, 1.0, v{P+1}")
    a(f"v_rcp_f32 v{P+1}, v{P+1}")
    a("s_nop 0")
    a(f"v_mul_f32 v{P}, v{P}, v{P+1}")
    a("s_nop 1")
    a.c("z = silu(h) @ w_up for channel 2*(l&31) + (l>>5); gate = bf16(1 / (1 + 2^(-z*log2 e)))")
    Z = vT
    for m in range(6):
        op = "v_mul_f32_dpp" if m < 2 else "v_fmac_f32_dpp"
        z = Z + 2 * (m & 1)
        a(f"{op} v{z}, v{P}, v{vWD+2*m} row_newbcast:{m} row_mask:0xf bank_mask:0xf")
        a(f"{op} v{z+1}, v{P}, v{vWD+2*m+1} row_newbcast:{m} row_mask:0xf bank_mask:0xf")
    a(f"v_pk_add_f32 {v2(Z)}, {v2(Z)}, {v2(Z+2)}")
    a("s_nop 1")
    a(f"v_permlane32_swap_b32 v{Z}, v{Z+1}")
    a(f"v_add_f32 v{Z}, v{Z}, v{Z+1}")
    a(f"v_mul_f32 v{Z}, 0xbfb8aa3b, v{Z}")
    a(f"v_exp_f32 v{Z}, v{Z}")
    a("s_nop 0")
    a(f"v_add_f32 v{Z}, 1.0, v{Z}")
    a(f"v_rcp_f32 v{Z}, v{Z}")
    a("s_nop 0")
    a(f"v_cvt_pk_bf16_f32 v{Z}, v{Z}, v{Z}")
    a(f"v_lshlrev_b32 v{Z}, 16, v{Z}")
    a(f"ds_write_b32 v{vEW}, v{Z}")
    a(f"ds_read_b128 v[{vAcc}:{vAcc+3}], v{vER}")
    a(f"ds_read_b128 v[{vAcc+4}:{vAcc+7}], v{vER} offset:16")
    a.c("phase 2: out = bf16(x * gate)")
    U = vWD
    for i in range(4):
        a(f"v_lshlrev_b32 v{U+2*i}, 16, v{D+4*SO[0]+i}")
        a(f"v_and_b32 v{U+2*i+1}, s{sMask}, v{D+4*SO[0]+i}")
    a("s_waitcnt lgkmcnt(0)")
    stamp("gates")
    def phase2(pm, win=0):
        for j, k in enumerate(SO):
            if j:
                for h in range(2):
                    d0, d1 = D + 4 * k + 2 * h, D + 4 * k + 2 * h + 1
                    t = vT if h == 0 else U
                    a(f"v_lshlrev_b32 v{t}, 16, v{d0}")
                    a(f"v_and_b32 v{t+1}, s{sMask}, v{d0}")
                    a(f"v_lshlrev_b32 v{t+2}, 16, v{d1}")
                    a(f"v_and_b32 v{t+3}, s{sMask}, v{d1}")
                    a(f"v_pk_mul_f32 {v2(t)}, {v2(t)}, {v2(vAcc+4*h)}")
                    a(f"v_pk_mul_f32 {v2(t+2)}, {v2(t+2)}, {v2(vAcc+4*h+2)}")
                    a(f"v_cvt_pk_bf16_f32 v{d0}, v{t}, v{t+1}")
                    a(f"v_cvt_pk_bf16_f32 v{d1}, v{t+2}, v{t+3}")
            plain = (k in pm) if isinstance(pm, (set, list)) else (pm and j % pm == 0)
            if win and j >= win: a(f"s_waitcnt vmcnt({win - 1})")
            a(f"buffer_store_dwordx4 v[{D+4*k}:{D+4*k+3}], v{vOff}, {srd(sO)}, s{sT} offen{'' if plain else ' sc1'}")
            if j + 1 < NT: tile(SO[j + 1])
    for i in range(4):
        a(f"v_pk_mul_f32 {v2(U+2*i)}, {v2(U+2*i)}, {v2(vAcc+2*i)}")
    for i in range(4):
        a(f"v_cvt_pk_bf16_f32 v{D+4*SO[0]+i}, v{U+2*i}, v{U+2*i+1}")
    a("s_cbranch_scc1 L_through")
    a.c("output spread over both dies: most stores write through, every 6th stays in L2 for the end-of-kernel write-back")
    phase2(plmod)
    a("s_branch L_stored" if (stamps or addn) else "s_endpgm")
    a.lab("L_through")
    a.c("output mostly on this workgroup's own die: all stores write through")
    phase2([int(x) for x in str(plmod2).split(",")] if "," in str(plmod2) else plmod2, win2)
    a.lab("L_stored")
    if not cst: stamp("stissued")
    if addn:
        a("s_waitcnt vmcnt(0)")
        a("s_memrealtime s[60:61]")
        a(f"s_and_b32 s{sTmp}, s{sDec}, 0x010101")
        a(f"s_bcnt1_i32_b32 s{sTmp}, s{sTmp}")
        a(f"s_mul_i32 s{sTmp}, s{sTmp}, 10000")
        a.lab("L_addn")
        a("s_memrealtime s[62:63]")
        a("s_waitcnt lgkmcnt(0)")
        a("s_sub_u32 s62, s62, s60")
        a(f"s_cmp_lt_u32 s62, s{sTmp}")
        a("s_cbranch_scc1 L_addn")
    if stamps:
        a("s_waitcnt vmcnt(0)")
        stamp("done")
        a("s_waitcnt lgkmcnt(0)")
        a(f"v_mov_b32 v{vT}, 0")
        a(f"v_mov_b32 v{vT+1}, 0")
        for i in range(len(names)):
            a(f"v_writelane_b32 v{vT}, s{sSt+2*i}, {i}")
            a(f"v_writelane_b32 v{vT+1}, s{sSt+2*i+1}, {i}")
        a(f"s_mul_i32 s{sTmp}, s2, 12")
        a(f"s_add_u32 s{sTmp}, s{sTmp}, s{sW}")
        a(f"s_lshl_b32 s{sTmp}, s{sTmp}, 7")
        a(f"s_add_u32 s{sTmp}, s{sTmp}, {STAMP_OFF}")
        a(f"v_lshlrev_b32 v{vX0}, 3, v{vL}")
        a("s_mov_b64 exec, 0xffff")
        a(f"buffer_store_dwordx2 v[{vT}:{vT+1}], v{vX0}, {srd(sWS)}, s{sTmp} offen")
    a.lab("L_end")
    a("s_endpgm")

    a.lab("L_clear")
    a.c("one wave of the grid: set every slot to the 'empty' marker")
    a(f"s_cmp_lg_u32 s{sW}, {clrw}")
    a("s_cbranch_scc1 L_first")
    a(f"s_mov_b32 s{sWS+2}, {256 * slot}")
    a(f"s_mov_b32 s{sWS+3}, 0x00020000")
    slots()
    for i in range(4):
        a(f"v_mov_b32 v{vT+i}, -1")
    for i in range(16):
        a(f"s_mov_b32 s{sTmp}, {16*slot*i}")
        a(f"buffer_store_dwordx4 v[{vT}:{vT+3}], v{vSl}, {srd(sWS)}, s{sTmp} offen sc1")
    a("s_branch L_first")
    out = HEADER
    out += f"; @launch grid=({NWG},1,1) block=(768,1,1) lds=4368\n"
    if stamps: out += "; stamps: " + " ".join(names) + "\n"
    out += """.amdgcn_target "amdgcn-amd-amdhsa--gfx950"
.text
.globl standalone__se_block__vision_kernel
.p2align 8
.type standalone__se_block__vision_kernel,@function
standalone__se_block__vision_kernel:
"""
    out += a.text()
    out += f""".section .rodata,"a"
.p2align 6
.amdhsa_kernel standalone__se_block__vision_kernel
  .amdhsa_next_free_vgpr 168
  .amdhsa_next_free_sgpr {96 if stamps else 64}
  .amdhsa_accum_offset 168
  .amdhsa_group_segment_fixed_size 0
  .amdhsa_kernarg_size 48
  .amdhsa_user_sgpr_count 2
  .amdhsa_user_sgpr_kernarg_segment_ptr 1
  .amdhsa_system_sgpr_workgroup_id_x 1
  .amdhsa_float_denorm_mode_32 3
.end_amdhsa_kernel
"""
    return out

if __name__ == "__main__":
    from build import build
    name = sys.argv[1]
    kw = {}
    for x in sys.argv[2:]:
        k, v = x.split("=")
        try: v = int(v)
        except ValueError: pass
        kw[k] = v
    open(name, "w").write(gen(**kw))
    print(build(name))
```

```python
import sys, struct
from gen import A, HEADER, NB, NWG, STAMP_OFF

NT = 32
K = 1024
M = 1 << 20
SU = 48 * K
L0 = [0, 1, 2, 5, 6, 7, 11, 12]

def gen(ld="nt", stamps=False, spin=1 << 20, slot=128, plmod=6, vmap="b", theta=120, pre=4, clr=48, clrw=1, nsw=2,
        force=None, dbgdec=0, psleep=1, nst="2111", pw="3,7,11", rot=1, addn=0, nowait=0, ncontr=24, plmod2=0, wk=16, nohold=0, decw=2, cst=0, evn=1, spread=1, sord='seq', win2=0, stprobe=4, theta2=250, clk=0, p2=0, p1=0):
    a = A()
    D = 40
    sX, sO, sWS, sDB, sWD, sWU = 4, 8, 12, 16, 20, 24
    sW, sWp, sWq, sT, sBase, sMask, sSpin, sDec = 28, 29, 30, 31, 32, 33, 34, 35
    sTmp, sOdd, sPo, sTk, sRot, sLead = 38, 39, 40, 42, 43, 44
    sPr, sRole, sNeu, s3k = 46, 47, 48, 49
    sMB, sMS = 50, 54
    sTP = 36
    sA, sB = 58, 59
    sNs = 3
    sSt = 60
    vSl, vL, vOff, vPW, vPR, vPub, vChk, vTk = 0, 1, 2, 3, 4, 5, 6, 7
    vAcc, vT, vWD, vWU, vX0, vX1 = 8, 16, 20, 32, 38, 39
    def srd(s): return f"s[{s}:{s+3}]"
    def p64(s): return f"s[{s}:{s+1}]"
    def v2(r): return f"v[{r}:{r+1}]"
    names = []
    def stamp(n):
        if stamps and clk and n not in ("entry", "loaded", "pub", "bar2", "gates", "done", "issued", "got"): return
        if stamps and clk and n in ("entry", "loaded", "gates", "done"):
            i = len(names)
            a(f"s_memrealtime s[{sSt+2*i}:{sSt+2*i+1}]")
            a(f"s_memtime s[{sSt+2*i+2}:{sSt+2*i+3}]")
            names.extend([n, "c_" + n])
            return
        if stamps:
            i = len(names)
            a(f"s_memrealtime s[{sSt+2*i}:{sSt+2*i+1}]")
            names.append(n)
    ldf = (" " + ld) if ld else ""
    P_, Q_, R_ = {"a": (4, 1, 512), "b": (1, 512, 128), "d": (1, 128, 512)}[vmap]
    assert sorted(pr * P_ + wq * Q_ + m * R_ for pr in range(128) for wq in range(4) for m in range(4)) == list(range(2048))
    def tab(t):
        T = sorted((u + t) & 15 for u in L0)
        return sum(u << (4 * n) for n, u in enumerate(T))
    for t in (0, 4): assert sorted([(u + t) & 15 for u in L0] + [(u + t + 8) & 15 for u in L0]) == list(range(16))
    LS = slot.bit_length() - 1
    nst = [int(c) for c in str(nst)]
    assert nst[0] == 2 and all(1 <= c <= 2 for c in nst) and nst == sorted(nst, reverse=True)
    n2 = nst.count(2)

    def rotate(m):
        if rot:
            a(f"s_mov_b32 s{sA}, s{sMS+m}")
            a(f"s_mov_b32 s{sB}, s{sMS+m}")
            a(f"s_lshr_b64 {p64(sA)}, {p64(sA)}, s{sRot}")
            a(f"s_mov_b32 s{sMS+m}, s{sA}")
    def addr(m):
        a(f"s_add_u32 s{sMB+m}, s{sBase}, {m * R_ * SU}")
        a(f"s_add_u32 s{sA}, s{sMB+m}, {24 * K}")
        a(f"s_lshr_b32 s{sB}, s{sA}, 25")
        a(f"s_add_u32 s{sA}, s{sA}, s{sO}")
        a(f"s_lshr_b32 s{sA}, s{sA}, 21")
        a(f"s_lshl_b32 s{sB}, s{sB}, 3")
        a(f"s_lshr_b32 s{sB}, s{sDec}, s{sB}")
        a(f"s_lshr_b32 s{sTmp}, s{sB}, 1")
        a(f"s_xor_b32 s{sA}, s{sA}, s{sTmp}")
        a(f"s_bitcmp1_b32 s{sA}, 0")
        a(f"s_cselect_b32 s{sA}, s{sTP+1}, s{sTP}")
        a(f"s_mov_b32 s{sTmp}, 0x{tab(0):x}")
        a(f"s_bitcmp{0 if m & 1 else 1}_b32 s{sNeu}, 0")
        a(f"s_cselect_b32 s{sTmp}, 0x{tab(8):x}, s{sTmp}")
        a(f"s_bitcmp1_b32 s{sB}, 0")
        a(f"s_cselect_b32 s{sMS+m}, s{sA}, s{sTmp}")
        rotate(m)
    def tile(k):
        m, n = divmod(k, 8)
        a(f"s_bfe_u32 s{sT}, s{sMS+m}, 0x{(4 << 16) | (4 * n):x}")
        a(f"s_mul_i32 s{sT}, s{sT}, s{s3k}")
        a(f"s_add_u32 s{sT}, s{sT}, s{sMB+m}")

    def slots():
        a.c("hand-off slots in d_ws: one line per workgroup; lane l covers slot (l>>2), bytes (l&3)*16")
        a(f"v_lshrrev_b32 v{vX0}, 2, v{vL}")
        a(f"v_and_b32 v{vX1}, 3, v{vL}")
        a(f"v_lshlrev_b32 v{vX0}, {LS}, v{vX0}")
        a(f"v_lshl_add_u32 v{vSl}, v{vX1}, 4, v{vX0}")
    def ldsinit():
        a.c("LDS ticket and placement word are zero before any wave uses them")
        a(f"ds_write_b32 v{vTk}, v{vTk} offset:4352")
        a(f"ds_write_b32 v{vTk}, v{vTk} offset:4356")
    a.c("workgroups past the 256 that carry data leave at once")
    a(f"s_cmp_ge_u32 s2, {NWG}")
    a("s_cbranch_scc1 L_end")
    for (s, off) in ((sX, 0), (sO, 24), (sDB, 32), (sWS, 40), (sWD, 8), (sWU, 16)):
        a(f"s_load_dwordx2 {p64(s)}, s[0:1], {off}")
    stamp("entry")
    a.c("wave w = 3*wq + wp; lane l reads 16 bytes: row (l>>3) of an 8-row unit, bytes wp*128 + (l&7)*16")
    a(f"v_lshrrev_b32 v{vX0}, 6, v0")
    a(f"v_and_b32 v{vL}, 63, v0")
    a(f"v_readfirstlane_b32 s{sW}, v{vX0}")
    a(f"v_lshrrev_b32 v{vX0}, 3, v{vL}")
    a(f"v_and_b32 v{vX1}, 7, v{vL}")
    a(f"v_mul_u32_u24 v{vOff}, 384, v{vX0}")
    a(f"v_lshl_add_u32 v{vOff}, v{vX1}, 4, v{vOff}")
    a.c("workgroups id and id^4 form a pair that shares 48 KiB spans (16 units of 8 rows; 8 units each)")
    a(f"s_bfe_u32 s{sRole}, s2, 0x10002")
    a(f"s_lshr_b32 s{sRot}, s2, 3")
    a(f"s_and_b32 s{sPr}, s2, 3")
    a(f"s_lshl2_add_u32 s{sPr}, s{sRot}, s{sPr}")
    a(f"s_mul_i32 s{sMB}, s{sPr}, {P_ * SU}")
    a(f"s_mul_i32 s{sWq}, s{sW}, 43")
    a(f"s_lshr_b32 s{sWq}, s{sWq}, 7")
    a(f"s_mul_i32 s{sTmp}, s{sWq}, {Q_ * SU - 384}")
    a(f"s_add_u32 s{sMB}, s{sMB}, s{sTmp}")
    a(f"s_lshl_b32 s{sTmp}, s{sW}, 7")
    a(f"s_add_u32 s{sMB}, s{sMB}, s{sTmp}")
    a(f"s_xor_b32 s{sNeu}, s{sRot}, s{sWq}")
    a(f"s_xor_b32 s{sNeu}, s{sNeu}, s{sRole}")
    a(f"s_mov_b32 s{sA}, 0x{tab(0):x}")
    a(f"s_bitcmp1_b32 s{sNeu}, 0")
    a(f"s_cselect_b32 s{sA}, 0x{tab(8):x}, s{sA}")
    a(f"s_and_b32 s{sRot}, s{sRot}, 7")
    a(f"s_lshl_b32 s{sRot}, s{sRot}, 2")
    if rot:
        a(f"s_mov_b32 s{sB}, s{sA}")
        a(f"s_lshr_b64 {p64(sA)}, {p64(sA)}, s{sRot}")
    a(f"s_mov_b32 s{sMS}, s{sA}")
    a(f"s_movk_i32 s{s3k}, 3072")
    tile(0)
    a(f"s_mov_b32 s{sX+2}, {NB}")
    a(f"s_mov_b32 s{sX+3}, 0x00020000")
    a(f"v_mov_b32 v{vTk}, 0")
    if evn:
        a(f"s_mul_i32 s{sTk}, s2, 0x80000001")
        a(f"s_cmp_ge_u32 s{sTk}, {2 * ncontr}")
    else:
        a(f"s_cmp_ge_u32 s2, {ncontr}")
    a("s_waitcnt lgkmcnt(0)")
    stamp("karg")
    a("s_cbranch_scc1 L_go")
    a.c("placement probe (wave 0 of the 24 even workgroups below 48, ahead of their other loads): two accesses 8 KiB apart;")
    a.c("a late second completion shows that its line lives on the other die.  Output: two stores (their lines are written again")
    a.c("with the result after the grid-wide hand-off); input: two loads whose values are not used.")
    if nohold:
        ldsinit()
        a("s_waitcnt lgkmcnt(0)")
    a(f"s_cmp_lg_u32 s{sW}, 0")
    a("s_cbranch_scc1 L_probe_other")
    a(f"s_lshr_b32 s{sLead}, s{sPr}, {1 if evn else 0}")
    a(f"s_cmp_ge_u32 s{sLead}, 6")
    a(f"s_cselect_b32 s{sTk}, 1, 0")
    a(f"s_cselect_b32 s{sTmp}, 6, 0")
    a(f"s_sub_u32 s{sLead}, s{sLead}, s{sTmp}")
    a(f"s_lshr_b32 s{sA}, s{sLead}, 1")
    a(f"s_lshl_b32 s{sA}, s{sA}, 25")
    a(f"s_lshl_b32 s{sTmp}, s{sTk}, 24")
    a(f"s_add_u32 s{sA}, s{sA}, s{sTmp}")
    if spread:
        a(f"s_add_u32 s{sA}, s{sA}, 0x4000")
        a(f"s_mul_i32 s{sB}, s2, {0x300000 + 0x4000 + 0x280}")
        a(f"s_and_b32 s{sB}, s{sB}, 0xefdf00")
    else:
        a(f"s_add_u32 s{sA}, s{sA}, {8 * M + 0x4000}")
        a(f"s_mul_i32 s{sB}, s2, {0x4000 + 0x500}")
        a(f"s_and_b32 s{sB}, s{sB}, 0xfdf00")
    a(f"s_add_u32 s{sA}, s{sA}, s{sO}")
    a(f"s_andn2_b32 s{sA}, s{sA}, 0x3fff")
    a(f"s_add_u32 s{sA}, s{sA}, s{sB}")
    a(f"s_lshr_b32 s{sB}, s{sA}, 21")
    a(f"s_xor_b32 s{sB}, s{sB}, s{sTk}")
    a(f"s_and_b32 s{sB}, s{sB}, 1")
    a(f"s_lshl_b32 s{sB}, s{sB}, 13")
    a(f"s_or_b32 s{sA}, s{sA}, s{sB}")
    a(f"s_xor_b32 s{sB}, s{sA}, 0x2000")
    a(f"s_sub_u32 s{sA}, s{sA}, s{sO}")
    a(f"s_sub_u32 s{sB}, s{sB}, s{sO}")
    a(f"s_mov_b32 s{sO+2}, {NB}")
    a(f"s_mov_b32 s{sO+3}, 0x00020000")
    a(f"s_sub_u32 s{sTmp}, s{sO}, s{sX}")
    a(f"s_add_u32 s{sTmp}, s{sTmp}, 0x800")
    a(f"s_lshr_b32 s{sTmp}, s{sTmp}, 12")
    a(f"s_or_b32 s{sTmp}, s{sTmp}, s{sLead}")
    a("s_mov_b64 exec, 1")
    a(f"s_bitcmp1_b32 s{sTmp}, 0")
    a("s_cbranch_scc1 L_probe_out")
    a(f"buffer_load_dword v{vX0}, v{vTk}, {srd(sX)}, s{sA} offen nt")
    a(f"buffer_load_dword v{vX1}, v{vTk}, {srd(sX)}, s{sB} offen nt")
    a("s_branch L_probe_wait")
    a.lab("L_probe_out")
    if stprobe:
        a(f"s_mov_b64 exec, {(1 << stprobe) - 1}")
        a(f"v_lshlrev_b32 v{vX0}, 4, v{vL}")
        a(f"buffer_store_dwordx4 v[{vOff-2}:{vOff+1}], v{vX0}, {srd(sO)}, s{sA} offen sc1")
        a(f"buffer_store_dwordx4 v[{vOff-2}:{vOff+1}], v{vX0}, {srd(sO)}, s{sB} offen sc1")
        a("s_mov_b64 exec, 1")
    else:
        a(f"buffer_load_dword v{vX0}, v{vTk}, {srd(sO)}, s{sA} offen nt")
        a(f"buffer_load_dword v{vX1}, v{vTk}, {srd(sO)}, s{sB} offen nt")
    a.lab("L_probe_wait")
    a("s_barrier")
    a.c("word 4*statistic + 2*copy + role of d_debug <- valid | ((die id - workgroup id) & 7) << 16 | (signed delay + 1024)")
    a(f"s_mov_b32 s{sDB+2}, 256")
    a(f"s_mov_b32 s{sDB+3}, 0x00020000")
    a(f"s_getreg_b32 s{sDec}, hwreg(HW_REG_XCC_ID, 0, 3)")
    a(f"s_sub_u32 s{sLead+1}, s{sDec}, s2")
    a(f"s_and_b32 s{sLead+1}, s{sLead+1}, 7")
    a(f"s_lshl_b32 s{sLead+1}, s{sLead+1}, 16")
    a(f"s_or_b32 s{sLead+1}, s{sLead+1}, 0x80000400")
    a(f"s_lshr_b32 s{sDec}, s{sDec}, 2")
    a(f"s_lshl1_add_u32 s{sLead}, s{sLead}, s{sTk}")
    a(f"s_lshl1_add_u32 s{sLead}, s{sLead}, s{sRole}")
    a(f"s_lshl_b32 s{sLead}, s{sLead}, 2")
    a(f"s_xor_b32 s{sTmp}, s{sTk}, s{sDec}")
    a(f"v_mov_b32 v{vT+1}, 0")
    a("s_waitcnt vmcnt(1)")
    a(f"s_memtime {p64(sA)}")
    a("s_waitcnt vmcnt(0)")
    a(f"s_memtime {p64(sPo)}")
    a("s_waitcnt lgkmcnt(0)")
    a(f"s_sub_u32 s{sA}, s{sPo}, s{sA}")
    a(f"s_min_u32 s{sA}, s{sA}, 600")
    a(f"s_sub_u32 s{sB}, 0, s{sA}")
    a(f"s_cmp_lg_u32 s{sTmp}, 0")
    a(f"s_cselect_b32 s{sA}, s{sB}, s{sA}")
    a(f"s_add_u32 s{sA}, s{sA}, s{sLead+1}")
    a(f"v_mov_b32 v{vT}, s{sA}")
    if nohold: a("s_setprio 3")
    a(f"buffer_atomic_cmpswap v[{vT}:{vT+1}], v{vTk}, {srd(sDB)}, s{sLead} offen")
    if nohold: a("s_setprio 0")
    a("s_mov_b64 exec, -1")
    a("s_branch L_go")
    a.lab("L_probe_other")
    a("s_barrier")

    a.lab("L_go")
    order = []
    def load(k, nxt=True):
        a(f"buffer_load_dwordx4 v[{D+4*k}:{D+4*k+3}], v{vOff}, {srd(sX)}, s{sT} offen{ldf}")
        if nxt and (k + 1) % 8: tile(k + 1)
        order.append(k)
    a(f"s_cmp_eq_u32 s2, {clr}")
    a("s_cbranch_scc1 L_clear")
    a.lab("L_first")
    if cst: stamp("go")
    for k in range(pre):
        load(k)
    for (s, n) in ((sO, NB), (sDB, 256), (sWS, (2 << 20) if stamps else 256 * slot), (sWD, 4608), (sWU, 4608)):
        a(f"s_mov_b32 s{s+2}, {n}")
        a(f"s_mov_b32 s{s+3}, 0x00020000")
    a(f"s_mov_b32 s{sBase}, s{sMB}")
    a(f"s_mul_i32 s{sTmp}, s{sWq}, 3")
    a(f"s_sub_u32 s{sWp}, s{sW}, s{sTmp}")
    slots()
    if nohold:
        assert not evn
        a(f"s_cmp_lt_u32 s2, {ncontr}")
        a("s_cbranch_scc1 L_noflagset")
    ldsinit()
    a(f"s_xor_b32 s{sTmp}, s2, {clr}")
    a(f"s_xor_b32 s{sA}, s{sW}, {clrw}")
    a(f"s_or_b32 s{sTmp}, s{sTmp}, s{sA}")
    a("s_waitcnt lgkmcnt(0)")
    a("s_barrier")
    a("s_cbranch_scc1 L_noflagset")
    a.c("the markers have landed: raise the flag in d_debug")
    a(f"v_mov_b32 v{vX1}, 1")
    a("s_waitcnt vmcnt(0)")
    a("s_mov_b64 exec, 1")
    a(f"buffer_store_dword v{vX1}, v{vTk}, {srd(sDB)}, 0 offen offset:192 sc1")
    a("s_mov_b64 exec, -1")
    a.lab("L_noflagset")
    if cst: stamp("bar0")
    def weights():
        a.c("weights: w_down row of channel 64*wp + 8*(l&7) + (l>>3); w_up dwords (row 2m + (l>>5), channels 64*wp + 2*(l&31), +1)")
        a(f"v_lshrrev_b32 v{vX0}, 3, v{vL}")
        a(f"v_and_b32 v{vX1}, 7, v{vL}")
        a(f"v_lshl_add_u32 v{vX0}, v{vX1}, 3, v{vX0}")
        a(f"v_mul_u32_u24 v{vX0}, 24, v{vX0}")
        a(f"s_mul_i32 s{sTmp}, s{sWp}, 1536")
        a(f"buffer_load_dwordx4 v[{vWD+6}:{vWD+9}], v{vX0}, {srd(sWD)}, s{sTmp} offen")
        a(f"buffer_load_dwordx2 v[{vWD+10}:{vWD+11}], v{vX0}, {srd(sWD)}, s{sTmp} offen offset:16")
        a(f"v_lshrrev_b32 v{vX0}, 5, v{vL}")
        a(f"v_and_b32 v{vX1}, 31, v{vL}")
        a(f"v_mul_u32_u24 v{vX0}, 384, v{vX0}")
        a(f"v_lshl_add_u32 v{vX0}, v{vX1}, 2, v{vX0}")
        a(f"s_lshl_b32 s{sTmp}, s{sWp}, 7")
        for m in range(6):
            a(f"buffer_load_dword v{vWU+m}, v{vX0}, {srd(sWU)}, s{sTmp} offen offset:{768*m}")
        order.extend(["w"] * 8)
    for k in range(pre, 8):
        load(k)
    if wk == 8: weights()
    a(f"s_mov_b32 s{sSpin}, {spin}")
    a.c("unit tables of a placed span: units whose output lines (mostly) have address bit 13 clear / set")
    a(f"s_add_u32 s{sTmp}, s{sO}, 0x800")
    a(f"s_sub_u32 s{sOdd}, s{sTmp}, s{sX}")
    a(f"s_mov_b32 s{sTP}, 0x{tab(0):x}")
    a(f"s_mov_b32 s{sTP+1}, 0x{tab(8):x}")
    a(f"s_bitcmp1_b32 s{sTmp}, 12")
    a(f"s_cselect_b32 s{sTP}, 0x{tab(4):x}, s{sTP}")
    a(f"s_cselect_b32 s{sTP+1}, 0x{tab(12):x}, s{sTP+1}")
    a(f"s_mov_b32 s{sDec}, 0")
    stamp("static")
    def lpoll(tag):
        a.lab(f"L_dec{tag}")
        a(f"ds_read_b32 v{vChk}, v{vTk} offset:4356")
        a("s_waitcnt lgkmcnt(0)")
        a(f"v_readfirstlane_b32 s{sDec}, v{vChk}")
        a("s_nop 3")
        a(f"s_cmp_lt_i32 s{sDec}, 0")
        a(f"s_cbranch_scc1 L_dec_ok{tag}")
        a(f"s_sleep {psleep}")
        a(f"s_sub_u32 s{sSpin}, s{sSpin}, 1")
        a(f"s_cbranch_scc0 L_dec{tag}")
    a.c("the placement word decides which units of the remaining spans this workgroup takes")
    a(f"s_cmp_lt_u32 s{sWq}, {n2 if not nowait else 9}")
    a("s_cbranch_scc1 L_dec_okA")
    lpoll("A")
    a.lab("L_dec_okA")
    addr(1)
    tile(8)
    for k in range(8, 16):
        load(k)
    if wk == 16: weights()
    a(f"s_cmp_ge_u32 s{sWq}, {n2 if not nowait else 0}")
    a("s_cbranch_scc1 L_dec_okB")
    a(f"s_cmp_lg_u32 s{sW}, {decw}")
    a("s_cbranch_scc1 L_decB")
    a.c("one wave reads the probe words at several moments (the returns queue behind the data) and decides for the workgroup")
    a.c("thresholds: timed stores on the output are sharp, timed loads on the input (buffers not 4 KiB out of step) are not")
    a(f"s_movk_i32 s{sA}, {theta2}")
    a(f"s_bitcmp1_b32 s{sOdd}, 12")
    a(f"s_cselect_b32 s{sB}, s{sA}, {theta}") if theta <= 64 else (a(f"s_movk_i32 s{sB}, {theta}"), a(f"s_cselect_b32 s{sB}, s{sA}, s{sB}"))
    a(f"v_mov_b32 v{vChk}, s{sB}")
    a("s_mov_b64 exec, 0xf0f0f0")
    a(f"v_mov_b32 v{vChk}, s{sA}")
    a("s_mov_b64 exec, 0xffffff")
    a(f"v_lshlrev_b32 v{vX0}, 2, v{vL}")
    pws = [int(x) for x in str(pw).split(",")] if pw != "" else []
    NP = len(pws) + 1
    def rd(i): a(f"buffer_load_dword v{vT+i}, v{vX0}, {srd(sDB)}, 0 offen sc1")
    rd(0)
    for i, t in enumerate(pws):
        a(f"s_waitcnt vmcnt({len(order) - 1 - order.index(t) + i + 1})")
        rd(i + 1)
    for i in range(NP):
        a(f"s_waitcnt vmcnt({NP - 1 - i})")
        a(f"v_cmp_le_i32 vcc, 0, v{vT+i}")
        if i: a(f"v_mov_b32 v{vT}, v{vT+i}")
        a("s_cbranch_vccz L_have")
    a.lab("L_again")
    rd(0)
    a("s_waitcnt vmcnt(0)")
    a(f"v_cmp_le_i32 vcc, 0, v{vT}")
    a("s_cbranch_vccz L_have")
    a(f"s_sub_u32 s{sSpin}, s{sSpin}, 1")
    a("s_cbranch_scc0 L_again")
    a.lab("L_have")
    a(f"v_and_b32 v{vX1}, 0xfff, v{vT}")
    a(f"v_lshrrev_b32 v{vX0}, 16, v{vT}")
    a("s_nop 0")
    a(f"v_add_u32_dpp v{vX1}, v{vX1}, v{vX1} quad_perm:[1,0,3,2] row_mask:0xf bank_mask:0xf")
    a(f"v_readfirstlane_b32 s{sB}, v{vX0}")
    a("s_nop 0")
    a(f"v_add_u32_dpp v{vX1}, v{vX1}, v{vX1} quad_perm:[2,3,0,1] row_mask:0xf bank_mask:0xf")
    a.c("bit 8r: region placed (both of its sums are clear and agree), bit 8r+1: side")
    a(f"v_subrev_u32 v{vX1}, 4096, v{vX1}")
    a(f"v_cmp_gt_i32 vcc, v{vX1}, v{vChk}")
    a(f"v_sub_u32 v{vChk}, 0, v{vChk}")
    a(f"s_lshr_b32 s{sA}, vcc_lo, 4")
    a(f"s_and_b32 s{sTmp}, s{sA}, vcc_lo")
    a(f"v_cmp_lt_i32 vcc, v{vX1}, v{vChk}")
    a(f"s_lshr_b32 s{sA}, vcc_lo, 4")
    a(f"s_and_b32 s{sA}, s{sA}, vcc_lo")
    a(f"v_cmp_ne_u32 vcc, s{sB}, v{vX0}")
    a(f"s_and_b32 s{sTmp}, s{sTmp}, 0x010101")
    a(f"s_and_b32 s{sA}, s{sA}, 0x030303")
    a(f"s_or_b32 s{sDec}, s{sTmp}, s{sA}")
    a.c("only if every probing workgroup sits where round-robin placement puts it; bit 2 of (id + offset) then tells the die")
    a("s_cmp_eq_u32 vcc_lo, 0")
    a(f"s_cselect_b32 s{sDec}, s{sDec}, 0")
    a(f"s_add_u32 s{sB}, s{sB}, s2")
    a(f"s_lshr_b32 s{sB}, s{sB}, 1")
    a(f"s_add_u32 s{sA}, s{sO}, 0x800")
    a(f"s_lshr_b32 s{sA}, s{sA}, 12")
    a(f"s_xor_b32 s{sB}, s{sB}, s{sA}")
    a(f"s_and_b32 s{sB}, s{sB}, 2")
    a(f"s_mul_i32 s{sB}, s{sB}, 0x010101")
    a(f"s_xor_b32 s{sDec}, s{sDec}, s{sB}")
    if force is not None: a(f"s_mov_b32 s{sDec}, {force}")
    a(f"s_bitset1_b32 s{sDec}, 31")
    a(f"v_mov_b32 v{vX0}, s{sDec}")
    a(f"ds_write_b32 v{vTk}, v{vX0} offset:4356")
    if dbgdec:
        a(f"buffer_store_dword v{vX0}, v{vTk}, {srd(sDB)}, 0 offen offset:128")
    a("s_mov_b64 exec, -1")
    a("s_branch L_dec_okB")
    lpoll("B")
    a.lab("L_dec_okB")
    stamp("dec")
    addr(2)
    tile(16)
    for k in range(16, 24):
        load(k)
    addr(3)
    tile(24)
    for k in range(24, NT):
        load(k)
    a.c("wave 0: read the reset flag (it returns behind the data)")
    a(f"s_cmp_lg_u32 s{sW}, 0")
    a("s_cbranch_scc1 L_noflag")
    a(f"buffer_load_dword v{vChk}, v{vTk}, {srd(sDB)}, 0 offen offset:192 sc1")
    a.lab("L_noflag")
    stamp("issued")
    a.c("LDS: P[12][16] per-wave partials at 0, G[12][8] at 768, gates at 1280, ticket at 4352, placement word at 4356")
    a(f"s_mov_b32 s{sMask}, 0xffff0000")
    a(f"v_lshrrev_b32 v{vX0}, 4, v{vL}")
    a(f"s_lshl_b32 s{sTmp}, s{sW}, 6")
    a(f"v_lshl_add_u32 v{vPW}, v{vX0}, 4, s{sTmp}")
    a(f"v_and_b32 v{vX1}, 15, v{vL}")
    a(f"v_lshlrev_b32 v{vX1}, 2, v{vX1}")
    a(f"v_lshl_add_u32 v{vPR}, v{vX0}, 6, v{vX1}")
    a(f"s_mov_b32 s{sLead}, 0x00010001")
    a(f"s_mov_b32 s{sLead+1}, 0x00010001")
    a.c("publish address: lanes 0..15 -> this workgroup's slot, word l; the other lanes are out of range")
    a(f"s_lshl_b32 s{sTmp}, s2, {LS}")
    a(f"v_lshl_add_u32 v{vPub}, v{vL}, 2, s{sTmp}")
    a(f"v_cmp_gt_u32 vcc, 16, v{vL}")
    a(f"v_mov_b32 v{vX0}, 0x40000000")
    a(f"v_mov_b32 v{vX1}, 1")
    a(f"v_cndmask_b32 v{vPub}, v{vX0}, v{vPub}, vcc")

    if p1 == 1:
        a(f"s_mov_b32 s{sPo}, 0x00003f80")
        a(f"s_mov_b32 s{sPo+1}, 0x3f800000")
    a.c("phase 1: f32 channel sums of this lane's 8 channels; the data stay in v40..v167")
    for k in range(NT):
        if k == 0: a("s_waitcnt vmcnt(16)")
        if k >= 16: a(f"s_waitcnt vmcnt({len(order) - 1 - order.index(k)})")
        if k == 8:
            for i in range(6):
                a(f"v_lshlrev_b32 v{vWD+2*i}, 16, v{vWD+6+i}")
                a(f"v_and_b32 v{vWD+2*i+1}, s{sMask}, v{vWD+6+i}")
        for h in range(2):
            d0, d1 = D + 4 * k + 2 * h, D + 4 * k + 2 * h + 1
            t = vAcc + 4 * h if k == 0 else vT
            if p1 == 1 and k:
                a(f"v_dot2_f32_bf16 v{vAcc+4*h}, v{d0}, s{sPo}, v{vAcc+4*h}")
                a(f"v_dot2_f32_bf16 v{vAcc+4*h+1}, v{d0}, s{sPo+1}, v{vAcc+4*h+1}")
                a(f"v_dot2_f32_bf16 v{vAcc+4*h+2}, v{d1}, s{sPo}, v{vAcc+4*h+2}")
                a(f"v_dot2_f32_bf16 v{vAcc+4*h+3}, v{d1}, s{sPo+1}, v{vAcc+4*h+3}")
                continue
            a(f"v_lshlrev_b32 v{t}, 16, v{d0}")
            a(f"v_and_b32 v{t+1}, s{sMask}, v{d0}")
            a(f"v_lshlrev_b32 v{t+2}, 16, v{d1}")
            a(f"v_and_b32 v{t+3}, s{sMask}, v{d1}")
            if k:
                a(f"v_pk_add_f32 {v2(vAcc+4*h)}, {v2(vAcc+4*h)}, {v2(vT)}")
                a(f"v_pk_add_f32 {v2(vAcc+4*h+2)}, {v2(vAcc+4*h+2)}, {v2(vT+2)}")
    if p1 == 1: a("s_nop 2")
    stamp("loaded")
    a.c("wave 0: the slots must have been reset before this workgroup publishes or trusts a slot")
    a(f"s_cmp_lg_u32 s{sW}, 0")
    a("s_cbranch_scc1 L_chk_ok")
    a.lab("L_chk")
    a(f"v_cmp_eq_u32 vcc, 0, v{vChk}")
    a("s_cbranch_vccz L_chk_ok")
    a("s_sleep 4")
    a(f"buffer_load_dword v{vChk}, v{vTk}, {srd(sDB)}, 0 offen offset:192 sc1")
    a("s_waitcnt vmcnt(0)")
    a(f"s_sub_u32 s{sSpin}, s{sSpin}, 1")
    a("s_cbranch_scc0 L_chk")
    a.lab("L_chk_ok")
    A_ = vAcc
    a.c("8 sums x 8 lane rows -> one channel sum per lane (channel 8*(l&7) + (l>>3))")
    for i in range(4):
        a(f"v_permlane32_swap_b32 v{A_+i}, v{A_+i+4}")
    a(f"v_pk_add_f32 {v2(A_)}, {v2(A_)}, {v2(A_+4)}")
    a(f"v_pk_add_f32 {v2(A_+2)}, {v2(A_+2)}, {v2(A_+6)}")
    a("s_nop 1")
    for i in range(2):
        a(f"v_permlane16_swap_b32 v{A_+i}, v{A_+i+2}")
    a(f"v_pk_add_f32 {v2(A_)}, {v2(A_)}, {v2(A_+2)}")
    a("s_nop 1")
    a(f"v_add_f32_dpp v{A_+2}, v{A_}, v{A_} row_ror:8 row_mask:0xf bank_mask:0x3")
    a("s_nop 1")
    a(f"v_add_f32_dpp v{A_+2}, v{A_+1}, v{A_+1} row_ror:8 row_mask:0xf bank_mask:0xc")
    a.c("times the w_down row, summed over the wave: row r of 16 lanes keeps outputs 3r..3r+2")
    for j in (0, 6, 2, 8, 4, 10):
        a(f"v_pk_mul_f32 {v2(vWD+j)}, {v2(A_+2)}, {v2(vWD+j)} op_sel_hi:[0,1]")
    for i in range(6):
        a(f"v_permlane32_swap_b32 v{vWD+i}, v{vWD+i+6}")
    for i in range(0, 6, 2):
        a(f"v_pk_add_f32 {v2(vWD+i)}, {v2(vWD+i)}, {v2(vWD+i+6)}")
    a("s_nop 1")
    for i in range(3):
        a(f"v_permlane16_swap_b32 v{vWD+i}, v{vWD+i+3}")
    for i in range(3):
        a(f"v_add_f32 v{vWD+i}, v{vWD+i}, v{vWD+i+3}")
    for sh in (8, 4, 2, 1):
        for i in range(3):
            a(f"v_add_f32_dpp v{vWD+i}, v{vWD+i}, v{vWD+i} row_ror:{sh} row_mask:0xf bank_mask:0xf")
    a.c("partials -> LDS, take a ticket, read all partials back (complete for the wave whose ticket is last)")
    a(f"s_mov_b64 exec, {p64(sLead)}")
    a(f"ds_write_b128 v{vPW}, v[{vWD}:{vWD+3}]")
    a("s_mov_b64 exec, 1")
    a(f"ds_add_rtn_u32 v{vX0}, v{vTk}, v{vX1} offset:4352")
    a("s_mov_b64 exec, -1")
    a(f"ds_read_b32 v{vT}, v{vPR}")
    a(f"ds_read_b32 v{vT+1}, v{vPR} offset:256")
    a(f"ds_read_b32 v{vT+2}, v{vPR} offset:512")
    a("s_waitcnt lgkmcnt(0)")
    a(f"v_readfirstlane_b32 s{sTk}, v{vX0}")
    a(f"v_add_f32 v{vT}, v{vT}, v{vT+1}")
    a(f"v_add_f32 v{vT}, v{vT}, v{vT+2}")
    a(f"v_mov_b32 v{vT+1}, v{vT}")
    a(f"s_cmp_lg_u32 s{sTk}, 11")
    a("s_cbranch_scc1 L_nopub")
    a(f"v_permlane32_swap_b32 v{vT}, v{vT+1}")
    a(f"v_add_f32 v{vT}, v{vT}, v{vT+1}")
    a(f"v_mov_b32 v{vT+1}, v{vT}")
    a("s_nop 1")
    a(f"v_permlane16_swap_b32 v{vT}, v{vT+1}")
    a(f"v_add_f32 v{vT}, v{vT}, v{vT+1}")
    a(f"v_min_u32 v{vT}, -2, v{vT}")
    a(f"buffer_store_dword v{vT}, v{vPub}, {srd(sWS)}, 0 offen sc1")
    a.lab("L_nopub")
    stamp("pub")
    vGW, vGR, vEW, vER = vPR, vPub, vTk, vChk
    P = vAcc
    a.c("addresses for the rest, w_up to f32")
    a(f"s_lshl_b32 s{sPo}, s{sW}, {LS+5}")
    a(f"s_add_u32 s{sPo+1}, s{sPo}, {16*slot}")
    a(f"v_lshrrev_b32 v{vX0}, 4, v{vL}")
    a(f"v_and_b32 v{vX1}, 3, v{vL}")
    a(f"v_mad_u32_u24 v{vX0}, v{vX1}, 3, v{vX0}")
    a(f"s_lshl_b32 s{sTmp}, s{sW}, 2")
    a(f"s_add_u32 s{sTmp}, s{sTmp}, 768")
    a(f"v_lshl_add_u32 v{vGW}, v{vX0}, 5, s{sTmp}")
    a(f"v_and_b32 v{vX0}, 15, v{vL}")
    a(f"v_min_u32 v{vX0}, 5, v{vX0}")
    a(f"v_lshrrev_b32 v{vX1}, 5, v{vL}")
    a(f"v_lshl_add_u32 v{vX0}, v{vX0}, 1, v{vX1}")
    a(f"v_lshlrev_b32 v{vGR}, 5, v{vX0}")
    a(f"v_and_b32 v{vX0}, 31, v{vL}")
    a(f"v_lshl_add_u32 v{vX0}, v{vX0}, 1, v{vX1}")
    a(f"s_lshl_b32 s{sTmp}, s{sW}, 8")
    a(f"s_add_u32 s{sTmp}, s{sTmp}, 1280")
    a(f"v_lshl_add_u32 v{vEW}, v{vX0}, 2, s{sTmp}")
    a(f"v_and_b32 v{vX0}, 7, v{vL}")
    a(f"v_lshl_add_u32 v{vER}, v{vX0}, 5, s{sTmp}")
    for m in range(6):
        a(f"v_lshlrev_b32 v{vWD+2*m}, 16, v{vWU+m}")
        a(f"v_and_b32 v{vWD+2*m+1}, s{sMask}, v{vWU+m}")
    a(f"s_mov_b32 s{sLead}, 0x000f000f")
    a(f"s_mov_b32 s{sLead+1}, 0x0000000f")
    SO = {"seq": list(range(NT)),
          "rr": [8 * m + n for n in range(8) for m in (2, 0, 3, 1)],
          "rr2": [8 * m + n + j for n in range(0, 8, 2) for m in (2, 0, 3, 1) for j in range(2)],
          "rev": list(range(16, 32)) + list(range(8, 16)) + list(range(8)),
          "mid": list(range(16, 24)) + list(range(8)) + list(range(24, 32)) + list(range(8, 16))}[sord]
    tile(SO[0])
    a(f"s_cmp_ge_u32 s{sW}, 8")
    a("s_barrier")
    stamp("bar1")
    a("s_cbranch_scc1 L_nopoll")
    a.c("waves 0..7: gather 32 slots each; only the lanes whose words are still 'empty' read again")
    a.lab("L_poll")
    a(f"buffer_load_dwordx3 v[{P}:{P+2}], v{vSl}, {srd(sWS)}, s{sPo} offen sc1")
    a(f"buffer_load_dwordx3 v[{P+4}:{P+6}], v{vSl}, {srd(sWS)}, s{sPo+1} offen sc1")
    a("s_waitcnt vmcnt(0)")
    a(f"v_max3_u32 v{vT}, v{P}, v{P+1}, v{P+2}")
    a(f"v_max3_u32 v{vT+1}, v{P+4}, v{P+5}, v{P+6}")
    a(f"v_max_u32 v{vT}, v{vT}, v{vT+1}")
    a(f"v_cmp_eq_u32 vcc, -1, v{vT}")
    a("s_and_b64 exec, vcc, vcc")
    a("s_cbranch_scc0 L_got")
    a(f"s_sub_u32 s{sSpin}, s{sSpin}, 1")
    a("s_cbranch_scc0 L_poll")
    a.lab("L_got")
    a("s_mov_b64 exec, -1")
    a(f"v_pk_add_f32 {v2(P)}, {v2(P)}, {v2(P+4)}")
    a(f"v_add_f32 v{P+2}, v{P+2}, v{P+6}")
    a("s_nop 1")
    a(f"v_permlane32_swap_b32 v{P}, v{P+2}")
    a(f"v_permlane32_swap_b32 v{P+1}, v{P+3}")
    a(f"v_pk_add_f32 {v2(P)}, {v2(P)}, {v2(P+2)}")
    a("s_nop 1")
    a(f"v_permlane16_swap_b32 v{P}, v{P+1}")
    a(f"v_add_f32 v{P}, v{P}, v{P+1}")
    for sh in (8, 4):
        a("s_nop 1")
        a(f"v_add_f32_dpp v{P}, v{P}, v{P} row_ror:{sh} row_mask:0xf bank_mask:0xf")
    a(f"s_mov_b64 exec, {p64(sLead)}")
    a(f"ds_write_b32 v{vGW}, v{P}")
    a("s_mov_b64 exec, -1")
    a("s_waitcnt lgkmcnt(0)")
    a.lab("L_nopoll")
    if not cst: stamp("got")
    a("s_barrier")
    stamp("bar2")
    a(f"ds_read_b128 v[{P}:{P+3}], v{vGR} offset:768")
    a(f"ds_read_b128 v[{P+4}:{P+7}], v{vGR} offset:784")
    a(f"s_and_b32 s{sTmp}, s{sDec}, 0x010101")
    a(f"s_bcnt1_i32_b32 s{sTmp}, s{sTmp}")
    a(f"s_cmp_ge_u32 s{sTmp}, {nsw}")
    a("s_waitcnt lgkmcnt(0)")
    a(f"v_pk_add_f32 {v2(P)}, {v2(P)}, {v2(P+4)}")
    a(f"v_pk_add_f32 {v2(P+2)}, {v2(P+2)}, {v2(P+6)}")
    a(f"v_pk_add_f32 {v2(P)}, {v2(P)}, {v2(P+2)}")
    a(f"v_add_f32 v{P}, v{P}, v{P+1}")
    a.c("h = sum / 2^18; silu(h) = h / (1 + 2^(-h*log2 e))")
    c1 = struct.unpack("<I", struct.pack("<f", -1.4426950408889634 / 262144.0))[0]
    a(f"v_mul_f32 v{P+1}, 0x{c1:08x}, v{P}")
    a(f"v_exp_f32 v{P+1}, v{P+1}")
    a(f"v_mul_f32 v{P}, 0x36800000, v{P}")
    a(f"v_add_f32 v{P+1}, 1.0, v{P+1}")
    a(f"v_rcp_f32 v{P+1}, v{P+1}")
    a("s_nop 0")
    a(f"v_mul_f32 v{P}, v{P}, v{P+1}")
    a("s_nop 1")
    a.c("z = silu(h) @ w_up for channel 2*(l&31) + (l>>5); gate = bf16(1 / (1 + 2^(-z*log2 e)))")
    Z = vT
    for m in range(6):
        op = "v_mul_f32_dpp" if m < 2 else "v_fmac_f32_dpp"
        z = Z + 2 * (m & 1)
        a(f"{op} v{z}, v{P}, v{vWD+2*m} row_newbcast:{m} row_mask:0xf bank_mask:0xf")
        a(f"{op} v{z+1}, v{P}, v{vWD+2*m+1} row_newbcast:{m} row_mask:0xf bank_mask:0xf")
    a(f"v_pk_add_f32 {v2(Z)}, {v2(Z)}, {v2(Z+2)}")
    a("s_nop 1")
    a(f"v_permlane32_swap_b32 v{Z}, v{Z+1}")
    a(f"v_add_f32 v{Z}, v{Z}, v{Z+1}")
    a(f"v_mul_f32 v{Z}, 0xbfb8aa3b, v{Z}")
    a(f"v_exp_f32 v{Z}, v{Z}")
    a("s_nop 0")
    a(f"v_add_f32 v{Z}, 1.0, v{Z}")
    a(f"v_rcp_f32 v{Z}, v{Z}")
    a("s_nop 0")
    a(f"v_cvt_pk_bf16_f32 v{Z}, v{Z}, v{Z}")
    a(f"v_lshlrev_b32 v{Z}, 16, v{Z}")
    a(f"ds_write_b32 v{vEW}, v{Z}")
    a(f"ds_read_b128 v[{vAcc}:{vAcc+3}], v{vER}")
    a(f"ds_read_b128 v[{vAcc+4}:{vAcc+7}], v{vER} offset:16")
    a.c("phase 2: out = bf16(x * gate)")
    U = vWD
    for i in range(4):
        a(f"v_lshlrev_b32 v{U+2*i}, 16, v{D+4*SO[0]+i}")
        a(f"v_and_b32 v{U+2*i+1}, s{sMask}, v{D+4*SO[0]+i}")
    a("s_waitcnt lgkmcnt(0)")
    stamp("gates")
    def phase2(pm, win=0):
        for j, k in enumerate(SO):
            if j:
                for h in range(2):
                    d0, d1 = D + 4 * k + 2 * h, D + 4 * k + 2 * h + 1
                    t = vT if h == 0 else U
                    if p2 == 1:
                        continue
                    if p2 == 2:
                        a(f"v_dot2_f32_bf16 v{t}, v{d0}, v{vAcc+4*h}, 0")
                        a(f"v_dot2_f32_bf16 v{t+1}, v{d0}, v{vAcc+4*h+1}, 0")
                        a(f"v_dot2_f32_bf16 v{t+2}, v{d1}, v{vAcc+4*h+2}, 0")
                        a(f"v_dot2_f32_bf16 v{t+3}, v{d1}, v{vAcc+4*h+3}, 0")
                        if h == 1:
                            a(f"v_cvt_pk_bf16_f32 v{d0-2}, v{vT}, v{vT+1}")
                            a(f"v_cvt_pk_bf16_f32 v{d1-2}, v{vT+2}, v{vT+3}")
                            a("s_nop 0")
                            a(f"v_cvt_pk_bf16_f32 v{d0}, v{t}, v{t+1}")
                            a(f"v_cvt_pk_bf16_f32 v{d1}, v{t+2}, v{t+3}")
                        continue
                    a(f"v_lshlrev_b32 v{t}, 16, v{d0}")
                    a(f"v_and_b32 v{t+1}, s{sMask}, v{d0}")
                    a(f"v_lshlrev_b32 v{t+2}, 16, v{d1}")
                    a(f"v_and_b32 v{t+3}, s{sMask}, v{d1}")
                    a(f"v_pk_mul_f32 {v2(t)}, {v2(t)}, {v2(vAcc+4*h)}")
                    a(f"v_pk_mul_f32 {v2(t+2)}, {v2(t+2)}, {v2(vAcc+4*h+2)}")
                    a(f"v_cvt_pk_bf16_f32 v{d0}, v{t}, v{t+1}")
                    a(f"v_cvt_pk_bf16_f32 v{d1}, v{t+2}, v{t+3}")
            plain = (k in pm) if isinstance(pm, (set, list)) else (pm and j % pm == 0)
            if win and j >= win: a(f"s_waitcnt vmcnt({win - 1})")
            a(f"buffer_store_dwordx4 v[{D+4*k}:{D+4*k+3}], v{vOff}, {srd(sO)}, s{sT} offen{'' if plain else ' sc1'}")
            if j + 1 < NT: tile(SO[j + 1])
    for i in range(4):
        a(f"v_pk_mul_f32 {v2(U+2*i)}, {v2(U+2*i)}, {v2(vAcc+2*i)}")
    for i in range(4):
        a(f"v_cvt_pk_bf16_f32 v{D+4*SO[0]+i}, v{U+2*i}, v{U+2*i+1}")
    if p2 == 2:
        for i in range(0, 8, 2):
            a(f"v_lshrrev_b32 v{vAcc+i}, 16, v{vAcc+i}")
    a("s_cbranch_scc1 L_through")
    a.c("output spread over both dies: most stores write through, every 6th stays in L2 for the end-of-kernel write-back")
    phase2(plmod)
    a("s_branch L_stored" if (stamps or addn) else "s_endpgm")
    a.lab("L_through")
    a.c("output mostly on this workgroup's own die: all stores write through")
    phase2([int(x) for x in str(plmod2).split(",")] if "," in str(plmod2) else plmod2, win2)
    a.lab("L_stored")
    if not cst: stamp("stissued")
    if addn:
        a("s_waitcnt vmcnt(0)")
        a("s_memrealtime s[60:61]")
        a(f"s_and_b32 s{sTmp}, s{sDec}, 0x010101")
        a(f"s_bcnt1_i32_b32 s{sTmp}, s{sTmp}")
        a(f"s_mul_i32 s{sTmp}, s{sTmp}, 10000")
        a.lab("L_addn")
        a("s_memrealtime s[62:63]")
        a("s_waitcnt lgkmcnt(0)")
        a("s_sub_u32 s62, s62, s60")
        a(f"s_cmp_lt_u32 s62, s{sTmp}")
        a("s_cbranch_scc1 L_addn")
    if stamps:
        a("s_waitcnt vmcnt(0)")
        stamp("done")
        a("s_waitcnt lgkmcnt(0)")
        a(f"v_mov_b32 v{vT}, 0")
        a(f"v_mov_b32 v{vT+1}, 0")
        for i in range(len(names)):
            a(f"v_writelane_b32 v{vT}, s{sSt+2*i}, {i}")
            a(f"v_writelane_b32 v{vT+1}, s{sSt+2*i+1}, {i}")
        a(f"s_mul_i32 s{sTmp}, s2, 12")
        a(f"s_add_u32 s{sTmp}, s{sTmp}, s{sW}")
        a(f"s_lshl_b32 s{sTmp}, s{sTmp}, 7")
        a(f"s_add_u32 s{sTmp}, s{sTmp}, {STAMP_OFF}")
        a(f"v_lshlrev_b32 v{vX0}, 3, v{vL}")
        a("s_mov_b64 exec, 0xffff")
        a(f"buffer_store_dwordx2 v[{vT}:{vT+1}], v{vX0}, {srd(sWS)}, s{sTmp} offen")
    a.lab("L_end")
    a("s_endpgm")

    a.lab("L_clear")
    a.c("one wave of the grid: set every slot to the 'empty' marker")
    a(f"s_cmp_lg_u32 s{sW}, {clrw}")
    a("s_cbranch_scc1 L_first")
    a(f"s_mov_b32 s{sWS+2}, {256 * slot}")
    a(f"s_mov_b32 s{sWS+3}, 0x00020000")
    slots()
    for i in range(4):
        a(f"v_mov_b32 v{vT+i}, -1")
    for i in range(16):
        a(f"s_mov_b32 s{sTmp}, {16*slot*i}")
        a(f"buffer_store_dwordx4 v[{vT}:{vT+3}], v{vSl}, {srd(sWS)}, s{sTmp} offen sc1")
    a("s_branch L_first")
    out = HEADER
    out += f"; @launch grid=({NWG},1,1) block=(768,1,1) lds=4368\n"
    if stamps: out += "; stamps: " + " ".join(names) + "\n"
    out += """.amdgcn_target "amdgcn-amd-amdhsa--gfx950"
.text
.globl standalone__se_block__vision_kernel
.p2align 8
.type standalone__se_block__vision_kernel,@function
standalone__se_block__vision_kernel:
"""
    out += a.text()
    out += f""".section .rodata,"a"
.p2align 6
.amdhsa_kernel standalone__se_block__vision_kernel
  .amdhsa_next_free_vgpr 168
  .amdhsa_next_free_sgpr {96 if stamps else 64}
  .amdhsa_accum_offset 168
  .amdhsa_group_segment_fixed_size 0
  .amdhsa_kernarg_size 48
  .amdhsa_user_sgpr_count 2
  .amdhsa_user_sgpr_kernarg_segment_ptr 1
  .amdhsa_system_sgpr_workgroup_id_x 1
  .amdhsa_float_denorm_mode_32 3
.end_amdhsa_kernel
"""
    return out

if __name__ == "__main__":
    from build import build
    name = sys.argv[1]
    kw = {}
    for x in sys.argv[2:]:
        k, v = x.split("=")
        try: v = int(v)
        except ValueError: pass
        kw[k] = v
    open(name, "w").write(gen(**kw))
    print(build(name))
```

```python
import sys, struct
from gen import A, HEADER, NB, NWG, STAMP_OFF

NT = 32
K = 1024
M = 1 << 20
SU = 48 * K
L0 = [0, 1, 2, 5, 6, 7, 11, 12]

def gen(ld="nt", stamps=False, spin=1 << 20, slot=128, plmod=6, vmap="b", theta=120, pre=4, clr=48, clrw=1, nsw=2,
        force=None, dbgdec=0, psleep=1, nst="2111", pw="3,7,11", rot=1, addn=0, nowait=0, ncontr=24, plmod2=0, wk=16, nohold=0, decw=2, cst=0, evn=1, spread=1, sord='seq', win2=0, stprobe=4, theta2=180, clk=0, p2=0, p1=0):
    a = A()
    D = 40
    sX, sO, sWS, sDB, sWD, sWU = 4, 8, 12, 16, 20, 24
    sW, sWp, sWq, sT, sBase, sMask, sSpin, sDec = 28, 29, 30, 31, 32, 33, 34, 35
    sTmp, sOdd, sPo, sTk, sRot, sLead = 38, 39, 40, 42, 43, 44
    sPr, sRole, sNeu, s3k = 46, 47, 48, 49
    sMB, sMS = 50, 54
    sTP = 36
    sA, sB = 58, 59
    sNs = 3
    sSt = 60
    vSl, vL, vOff, vPW, vPR, vPub, vChk, vTk = 0, 1, 2, 3, 4, 5, 6, 7
    vAcc, vT, vWD, vWU, vX0, vX1 = 8, 16, 20, 32, 38, 39
    def srd(s): return f"s[{s}:{s+3}]"
    def p64(s): return f"s[{s}:{s+1}]"
    def v2(r): return f"v[{r}:{r+1}]"
    names = []
    def stamp(n):
        if stamps and clk and n not in ("entry", "loaded", "pub", "bar2", "gates", "done", "issued", "got"): return
        if stamps and clk and n in ("entry", "loaded", "gates", "done"):
            i = len(names)
            a(f"s_memrealtime s[{sSt+2*i}:{sSt+2*i+1}]")
            a(f"s_memtime s[{sSt+2*i+2}:{sSt+2*i+3}]")
            names.extend([n, "c_" + n])
            return
        if stamps:
            i = len(names)
            a(f"s_memrealtime s[{sSt+2*i}:{sSt+2*i+1}]")
            names.append(n)
    ldf = (" " + ld) if ld else ""
    P_, Q_, R_ = {"a": (4, 1, 512), "b": (1, 512, 128), "d": (1, 128, 512)}[vmap]
    assert sorted(pr * P_ + wq * Q_ + m * R_ for pr in range(128) for wq in range(4) for m in range(4)) == list(range(2048))
    def tab(t):
        T = sorted((u + t) & 15 for u in L0)
        return sum(u << (4 * n) for n, u in enumerate(T))
    for t in (0, 4): assert sorted([(u + t) & 15 for u in L0] + [(u + t + 8) & 15 for u in L0]) == list(range(16))
    LS = slot.bit_length() - 1
    nst = [int(c) for c in str(nst)]
    assert nst[0] == 2 and all(1 <= c <= 2 for c in nst) and nst == sorted(nst, reverse=True)
    n2 = nst.count(2)

    def rotate(m):
        if rot:
            a(f"s_mov_b32 s{sA}, s{sMS+m}")
            a(f"s_mov_b32 s{sB}, s{sMS+m}")
            a(f"s_lshr_b64 {p64(sA)}, {p64(sA)}, s{sRot}")
            a(f"s_mov_b32 s{sMS+m}, s{sA}")
    def addr(m):
        a(f"s_add_u32 s{sMB+m}, s{sBase}, {m * R_ * SU}")
        a(f"s_add_u32 s{sA}, s{sMB+m}, {24 * K}")
        a(f"s_lshr_b32 s{sB}, s{sA}, 25")
        a(f"s_add_u32 s{sA}, s{sA}, s{sO}")
        a(f"s_lshr_b32 s{sA}, s{sA}, 21")
        a(f"s_lshl_b32 s{sB}, s{sB}, 3")
        a(f"s_lshr_b32 s{sB}, s{sDec}, s{sB}")
        a(f"s_lshr_b32 s{sTmp}, s{sB}, 1")
        a(f"s_xor_b32 s{sA}, s{sA}, s{sTmp}")
        a(f"s_bitcmp1_b32 s{sA}, 0")
        a(f"s_cselect_b32 s{sA}, s{sTP+1}, s{sTP}")
        a(f"s_mov_b32 s{sTmp}, 0x{tab(0):x}")
        a(f"s_bitcmp{0 if m & 1 else 1}_b32 s{sNeu}, 0")
        a(f"s_cselect_b32 s{sTmp}, 0x{tab(8):x}, s{sTmp}")
        a(f"s_bitcmp1_b32 s{sB}, 0")
        a(f"s_cselect_b32 s{sMS+m}, s{sA}, s{sTmp}")
        rotate(m)
    def tile(k):
        m, n = divmod(k, 8)
        a(f"s_bfe_u32 s{sT}, s{sMS+m}, 0x{(4 << 16) | (4 * n):x}")
        a(f"s_mul_i32 s{sT}, s{sT}, s{s3k}")
        a(f"s_add_u32 s{sT}, s{sT}, s{sMB+m}")

    def slots():
        a.c("hand-off slots in d_ws: one line per workgroup; lane l covers slot (l>>2), bytes (l&3)*16")
        a(f"v_lshrrev_b32 v{vX0}, 2, v{vL}")
        a(f"v_and_b32 v{vX1}, 3, v{vL}")
        a(f"v_lshlrev_b32 v{vX0}, {LS}, v{vX0}")
        a(f"v_lshl_add_u32 v{vSl}, v{vX1}, 4, v{vX0}")
    def ldsinit():
        a.c("LDS ticket and placement word are zero before any wave uses them")
        a(f"ds_write_b32 v{vTk}, v{vTk} offset:4352")
        a(f"ds_write_b32 v{vTk}, v{vTk} offset:4356")
    a.c("workgroups past the 256 that carry data leave at once")
    a(f"s_cmp_ge_u32 s2, {NWG}")
    a("s_cbranch_scc1 L_end")
    for (s, off) in ((sX, 0), (sO, 24), (sDB, 32), (sWS, 40), (sWD, 8), (sWU, 16)):
        a(f"s_load_dwordx2 {p64(s)}, s[0:1], {off}")
    stamp("entry")
    a.c("wave w = 3*wq + wp; lane l reads 16 bytes: row (l>>3) of an 8-row unit, bytes wp*128 + (l&7)*16")
    a(f"v_lshrrev_b32 v{vX0}, 6, v0")
    a(f"v_and_b32 v{vL}, 63, v0")
    a(f"v_readfirstlane_b32 s{sW}, v{vX0}")
    a(f"v_lshrrev_b32 v{vX0}, 3, v{vL}")
    a(f"v_and_b32 v{vX1}, 7, v{vL}")
    a(f"v_mul_u32_u24 v{vOff}, 384, v{vX0}")
    a(f"v_lshl_add_u32 v{vOff}, v{vX1}, 4, v{vOff}")
    a.c("workgroups id and id^4 form a pair that shares 48 KiB spans (16 units of 8 rows; 8 units each)")
    a(f"s_bfe_u32 s{sRole}, s2, 0x10002")
    a(f"s_lshr_b32 s{sRot}, s2, 3")
    a(f"s_and_b32 s{sPr}, s2, 3")
    a(f"s_lshl2_add_u32 s{sPr}, s{sRot}, s{sPr}")
    a(f"s_mul_i32 s{sMB}, s{sPr}, {P_ * SU}")
    a(f"s_mul_i32 s{sWq}, s{sW}, 43")
    a(f"s_lshr_b32 s{sWq}, s{sWq}, 7")
    a(f"s_mul_i32 s{sTmp}, s{sWq}, {Q_ * SU - 384}")
    a(f"s_add_u32 s{sMB}, s{sMB}, s{sTmp}")
    a(f"s_lshl_b32 s{sTmp}, s{sW}, 7")
    a(f"s_add_u32 s{sMB}, s{sMB}, s{sTmp}")
    a(f"s_xor_b32 s{sNeu}, s{sRot}, s{sWq}")
    a(f"s_xor_b32 s{sNeu}, s{sNeu}, s{sRole}")
    a(f"s_mov_b32 s{sA}, 0x{tab(0):x}")
    a(f"s_bitcmp1_b32 s{sNeu}, 0")
    a(f"s_cselect_b32 s{sA}, 0x{tab(8):x}, s{sA}")
    a(f"s_and_b32 s{sRot}, s{sRot}, 7")
    a(f"s_lshl_b32 s{sRot}, s{sRot}, 2")
    if rot:
        a(f"s_mov_b32 s{sB}, s{sA}")
        a(f"s_lshr_b64 {p64(sA)}, {p64(sA)}, s{sRot}")
    a(f"s_mov_b32 s{sMS}, s{sA}")
    a(f"s_movk_i32 s{s3k}, 3072")
    tile(0)
    a(f"s_mov_b32 s{sX+2}, {NB}")
    a(f"s_mov_b32 s{sX+3}, 0x00020000")
    a(f"v_mov_b32 v{vTk}, 0")
    if evn:
        a(f"s_mul_i32 s{sTk}, s2, 0x80000001")
        a(f"s_cmp_ge_u32 s{sTk}, {2 * ncontr}")
    else:
        a(f"s_cmp_ge_u32 s2, {ncontr}")
    a("s_waitcnt lgkmcnt(0)")
    stamp("karg")
    a("s_cbranch_scc1 L_go")
    a.c("placement probe (wave 0 of the 24 even workgroups below 48, ahead of their other loads): two accesses 8 KiB apart;")
    a.c("a late second completion shows that its line lives on the other die.  Output: two stores (their lines are written again")
    a.c("with the result after the grid-wide hand-off); input: two loads whose values are not used.")
    if nohold:
        ldsinit()
        a("s_waitcnt lgkmcnt(0)")
    a(f"s_cmp_lg_u32 s{sW}, 0")
    a("s_cbranch_scc1 L_probe_other")
    a(f"s_lshr_b32 s{sLead}, s{sPr}, {1 if evn else 0}")
    a(f"s_cmp_ge_u32 s{sLead}, 6")
    a(f"s_cselect_b32 s{sTk}, 1, 0")
    a(f"s_cselect_b32 s{sTmp}, 6, 0")
    a(f"s_sub_u32 s{sLead}, s{sLead}, s{sTmp}")
    a(f"s_lshr_b32 s{sA}, s{sLead}, 1")
    a(f"s_lshl_b32 s{sA}, s{sA}, 25")
    a(f"s_lshl_b32 s{sTmp}, s{sTk}, 24")
    a(f"s_add_u32 s{sA}, s{sA}, s{sTmp}")
    if spread:
        a(f"s_add_u32 s{sA}, s{sA}, 0x4000")
        a(f"s_mul_i32 s{sB}, s2, {0x300000 + 0x4000 + 0x280}")
        a(f"s_and_b32 s{sB}, s{sB}, 0xefdf00")
    else:
        a(f"s_add_u32 s{sA}, s{sA}, {8 * M + 0x4000}")
        a(f"s_mul_i32 s{sB}, s2, {0x4000 + 0x500}")
        a(f"s_and_b32 s{sB}, s{sB}, 0xfdf00")
    a(f"s_add_u32 s{sA}, s{sA}, s{sO}")
    a(f"s_andn2_b32 s{sA}, s{sA}, 0x3fff")
    a(f"s_add_u32 s{sA}, s{sA}, s{sB}")
    a(f"s_lshr_b32 s{sB}, s{sA}, 21")
    a(f"s_xor_b32 s{sB}, s{sB}, s{sTk}")
    a(f"s_and_b32 s{sB}, s{sB}, 1")
    a(f"s_lshl_b32 s{sB}, s{sB}, 13")
    a(f"s_or_b32 s{sA}, s{sA}, s{sB}")
    a(f"s_xor_b32 s{sB}, s{sA}, 0x2000")
    a(f"s_sub_u32 s{sA}, s{sA}, s{sO}")
    a(f"s_sub_u32 s{sB}, s{sB}, s{sO}")
    a(f"s_mov_b32 s{sO+2}, {NB}")
    a(f"s_mov_b32 s{sO+3}, 0x00020000")
    a(f"s_sub_u32 s{sTmp}, s{sO}, s{sX}")
    a(f"s_add_u32 s{sTmp}, s{sTmp}, 0x800")
    a(f"s_lshr_b32 s{sTmp}, s{sTmp}, 12")
    a(f"s_or_b32 s{sTmp}, s{sTmp}, s{sLead}")
    a("s_mov_b64 exec, 1")
    a(f"s_bitcmp1_b32 s{sTmp}, 0")
    a("s_cbranch_scc1 L_probe_out")
    a(f"buffer_load_dword v{vX0}, v{vTk}, {srd(sX)}, s{sA} offen nt")
    a(f"buffer_load_dword v{vX1}, v{vTk}, {srd(sX)}, s{sB} offen nt")
    a("s_branch L_probe_wait")
    a.lab("L_probe_out")
    if stprobe:
        a(f"s_mov_b64 exec, {(1 << stprobe) - 1}")
        a(f"v_lshlrev_b32 v{vX0}, 4, v{vL}")
        a(f"buffer_store_dwordx4 v[{vOff-2}:{vOff+1}], v{vX0}, {srd(sO)}, s{sA} offen sc1")
        a(f"buffer_store_dwordx4 v[{vOff-2}:{vOff+1}], v{vX0}, {srd(sO)}, s{sB} offen sc1")
        a("s_mov_b64 exec, 1")
    else:
        a(f"buffer_load_dword v{vX0}, v{vTk}, {srd(sO)}, s{sA} offen nt")
        a(f"buffer_load_dword v{vX1}, v{vTk}, {srd(sO)}, s{sB} offen nt")
    a.lab("L_probe_wait")
    a("s_barrier")
    a.c("word 4*statistic + 2*copy + role of d_debug <- valid | ((die id - workgroup id) & 7) << 16 | (signed delay + 1024)")
    a(f"s_mov_b32 s{sDB+2}, 256")
    a(f"s_mov_b32 s{sDB+3}, 0x00020000")
    a(f"s_getreg_b32 s{sDec}, hwreg(HW_REG_XCC_ID, 0, 3)")
    a(f"s_sub_u32 s{sLead+1}, s{sDec}, s2")
    a(f"s_and_b32 s{sLead+1}, s{sLead+1}, 7")
    a(f"s_lshl_b32 s{sLead+1}, s{sLead+1}, 16")
    a(f"s_or_b32 s{sLead+1}, s{sLead+1}, 0x80000400")
    a(f"s_lshr_b32 s{sDec}, s{sDec}, 2")
    a(f"s_lshl1_add_u32 s{sLead}, s{sLead}, s{sTk}")
    a(f"s_lshl1_add_u32 s{sLead}, s{sLead}, s{sRole}")
    a(f"s_lshl_b32 s{sLead}, s{sLead}, 2")
    a(f"s_xor_b32 s{sTmp}, s{sTk}, s{sDec}")
    a(f"v_mov_b32 v{vT+1}, 0")
    a("s_waitcnt vmcnt(1)")
    a(f"s_memtime {p64(sA)}")
    a("s_waitcnt vmcnt(0)")
    a(f"s_memtime {p64(sPo)}")
    a("s_waitcnt lgkmcnt(0)")
    a(f"s_sub_u32 s{sA}, s{sPo}, s{sA}")
    a(f"s_min_u32 s{sA}, s{sA}, 600")
    a(f"s_sub_u32 s{sB}, 0, s{sA}")
    a(f"s_cmp_lg_u32 s{sTmp}, 0")
    a(f"s_cselect_b32 s{sA}, s{sB}, s{sA}")
    a(f"s_add_u32 s{sA}, s{sA}, s{sLead+1}")
    a(f"v_mov_b32 v{vT}, s{sA}")
    if nohold: a("s_setprio 3")
    a(f"buffer_atomic_cmpswap v[{vT}:{vT+1}], v{vTk}, {srd(sDB)}, s{sLead} offen")
    if nohold: a("s_setprio 0")
    a("s_mov_b64 exec, -1")
    a("s_branch L_go")
    a.lab("L_probe_other")
    a("s_barrier")

    a.lab("L_go")
    order = []
    def load(k, nxt=True):
        a(f"buffer_load_dwordx4 v[{D+4*k}:{D+4*k+3}], v{vOff}, {srd(sX)}, s{sT} offen{ldf}")
        if nxt and (k + 1) % 8: tile(k + 1)
        order.append(k)
    a(f"s_cmp_eq_u32 s2, {clr}")
    a("s_cbranch_scc1 L_clear")
    a.lab("L_first")
    if cst: stamp("go")
    for k in range(pre):
        load(k)
    for (s, n) in ((sO, NB), (sDB, 256), (sWS, (2 << 20) if stamps else 256 * slot), (sWD, 4608), (sWU, 4608)):
        a(f"s_mov_b32 s{s+2}, {n}")
        a(f"s_mov_b32 s{s+3}, 0x00020000")
    a(f"s_mov_b32 s{sBase}, s{sMB}")
    a(f"s_mul_i32 s{sTmp}, s{sWq}, 3")
    a(f"s_sub_u32 s{sWp}, s{sW}, s{sTmp}")
    slots()
    if nohold:
        assert not evn
        a(f"s_cmp_lt_u32 s2, {ncontr}")
        a("s_cbranch_scc1 L_noflagset")
    ldsinit()
    a(f"s_xor_b32 s{sTmp}, s2, {clr}")
    a(f"s_xor_b32 s{sA}, s{sW}, {clrw}")
    a(f"s_or_b32 s{sTmp}, s{sTmp}, s{sA}")
    a("s_waitcnt lgkmcnt(0)")
    a("s_barrier")
    a("s_cbranch_scc1 L_noflagset")
    a.c("the markers have landed: raise the flag in d_debug")
    a(f"v_mov_b32 v{vX1}, 1")
    a("s_waitcnt vmcnt(0)")
    a("s_mov_b64 exec, 1")
    a(f"buffer_store_dword v{vX1}, v{vTk}, {srd(sDB)}, 0 offen offset:192 sc1")
    a("s_mov_b64 exec, -1")
    a.lab("L_noflagset")
    if cst: stamp("bar0")
    def weights():
        a.c("weights: w_down row of channel 64*wp + 8*(l&7) + (l>>3); w_up dwords (row 2m + (l>>5), channels 64*wp + 2*(l&31), +1)")
        a(f"v_lshrrev_b32 v{vX0}, 3, v{vL}")
        a(f"v_and_b32 v{vX1}, 7, v{vL}")
        a(f"v_lshl_add_u32 v{vX0}, v{vX1}, 3, v{vX0}")
        a(f"v_mul_u32_u24 v{vX0}, 24, v{vX0}")
        a(f"s_mul_i32 s{sTmp}, s{sWp}, 1536")
        a(f"buffer_load_dwordx4 v[{vWD+6}:{vWD+9}], v{vX0}, {srd(sWD)}, s{sTmp} offen")
        a(f"buffer_load_dwordx2 v[{vWD+10}:{vWD+11}], v{vX0}, {srd(sWD)}, s{sTmp} offen offset:16")
        a(f"v_lshrrev_b32 v{vX0}, 5, v{vL}")
        a(f"v_and_b32 v{vX1}, 31, v{vL}")
        a(f"v_mul_u32_u24 v{vX0}, 384, v{vX0}")
        a(f"v_lshl_add_u32 v{vX0}, v{vX1}, 2, v{vX0}")
        a(f"s_lshl_b32 s{sTmp}, s{sWp}, 7")
        for m in range(6):
            a(f"buffer_load_dword v{vWU+m}, v{vX0}, {srd(sWU)}, s{sTmp} offen offset:{768*m}")
        order.extend(["w"] * 8)
    for k in range(pre, 8):
        load(k)
    if wk == 8: weights()
    a(f"s_mov_b32 s{sSpin}, {spin}")
    a.c("unit tables of a placed span: units whose output lines (mostly) have address bit 13 clear / set")
    a(f"s_add_u32 s{sTmp}, s{sO}, 0x800")
    a(f"s_sub_u32 s{sOdd}, s{sTmp}, s{sX}")
    a(f"s_mov_b32 s{sTP}, 0x{tab(0):x}")
    a(f"s_mov_b32 s{sTP+1}, 0x{tab(8):x}")
    a(f"s_bitcmp1_b32 s{sTmp}, 12")
    a(f"s_cselect_b32 s{sTP}, 0x{tab(4):x}, s{sTP}")
    a(f"s_cselect_b32 s{sTP+1}, 0x{tab(12):x}, s{sTP+1}")
    a(f"s_mov_b32 s{sDec}, 0")
    stamp("static")
    def lpoll(tag):
        a.lab(f"L_dec{tag}")
        a(f"ds_read_b32 v{vChk}, v{vTk} offset:4356")
        a("s_waitcnt lgkmcnt(0)")
        a(f"v_readfirstlane_b32 s{sDec}, v{vChk}")
        a("s_nop 3")
        a(f"s_cmp_lt_i32 s{sDec}, 0")
        a(f"s_cbranch_scc1 L_dec_ok{tag}")
        a(f"s_sleep {psleep}")
        a(f"s_sub_u32 s{sSpin}, s{sSpin}, 1")
        a(f"s_cbranch_scc0 L_dec{tag}")
    a.c("the placement word decides which units of the remaining spans this workgroup takes")
    a(f"s_cmp_lt_u32 s{sWq}, {n2 if not nowait else 9}")
    a("s_cbranch_scc1 L_dec_okA")
    lpoll("A")
    a.lab("L_dec_okA")
    addr(1)
    tile(8)
    for k in range(8, 16):
        load(k)
    if wk == 16: weights()
    a(f"s_cmp_ge_u32 s{sWq}, {n2 if not nowait else 0}")
    a("s_cbranch_scc1 L_dec_okB")
    a(f"s_cmp_lg_u32 s{sW}, {decw}")
    a("s_cbranch_scc1 L_decB")
    a.c("one wave reads the probe words at several moments (the returns queue behind the data) and decides for the workgroup")
    a.c("thresholds: timed stores on the output are sharp, timed loads on the input (buffers not 4 KiB out of step) are not")
    a(f"s_movk_i32 s{sA}, {theta2}")
    a(f"s_bitcmp1_b32 s{sOdd}, 12")
    a(f"s_cselect_b32 s{sB}, s{sA}, {theta}") if theta <= 64 else (a(f"s_movk_i32 s{sB}, {theta}"), a(f"s_cselect_b32 s{sB}, s{sA}, s{sB}"))
    a(f"v_mov_b32 v{vChk}, s{sB}")
    a("s_mov_b64 exec, 0xf0f0f0")
    a(f"v_mov_b32 v{vChk}, s{sA}")
    a("s_mov_b64 exec, 0xffffff")
    a(f"v_lshlrev_b32 v{vX0}, 2, v{vL}")
    pws = [int(x) for x in str(pw).split(",")] if pw != "" else []
    NP = len(pws) + 1
    def rd(i): a(f"buffer_load_dword v{vT+i}, v{vX0}, {srd(sDB)}, 0 offen sc1")
    rd(0)
    for i, t in enumerate(pws):
        a(f"s_waitcnt vmcnt({len(order) - 1 - order.index(t) + i + 1})")
        rd(i + 1)
    for i in range(NP):
        a(f"s_waitcnt vmcnt({NP - 1 - i})")
        a(f"v_cmp_le_i32 vcc, 0, v{vT+i}")
        if i: a(f"v_mov_b32 v{vT}, v{vT+i}")
        a("s_cbranch_vccz L_have")
    a.lab("L_again")
    rd(0)
    a("s_waitcnt vmcnt(0)")
    a(f"v_cmp_le_i32 vcc, 0, v{vT}")
    a("s_cbranch_vccz L_have")
    a(f"s_sub_u32 s{sSpin}, s{sSpin}, 1")
    a("s_cbranch_scc0 L_again")
    a.lab("L_have")
    a(f"v_and_b32 v{vX1}, 0xfff, v{vT}")
    a(f"v_lshrrev_b32 v{vX0}, 16, v{vT}")
    a("s_nop 0")
    a(f"v_add_u32_dpp v{vX1}, v{vX1}, v{vX1} quad_perm:[1,0,3,2] row_mask:0xf bank_mask:0xf")
    a(f"v_readfirstlane_b32 s{sB}, v{vX0}")
    a("s_nop 0")
    a(f"v_add_u32_dpp v{vX1}, v{vX1}, v{vX1} quad_perm:[2,3,0,1] row_mask:0xf bank_mask:0xf")
    a.c("bit 8r: region placed (both of its sums are clear and agree), bit 8r+1: side")
    a(f"v_subrev_u32 v{vX1}, 4096, v{vX1}")
    a(f"v_cmp_gt_i32 vcc, v{vX1}, v{vChk}")
    a(f"v_sub_u32 v{vChk}, 0, v{vChk}")
    a(f"s_lshr_b32 s{sA}, vcc_lo, 4")
    a(f"s_and_b32 s{sTmp}, s{sA}, vcc_lo")
    a(f"v_cmp_lt_i32 vcc, v{vX1}, v{vChk}")
    a(f"s_lshr_b32 s{sA}, vcc_lo, 4")
    a(f"s_and_b32 s{sA}, s{sA}, vcc_lo")
    a(f"v_cmp_ne_u32 vcc, s{sB}, v{vX0}")
    a(f"s_and_b32 s{sTmp}, s{sTmp}, 0x010101")
    a(f"s_and_b32 s{sA}, s{sA}, 0x030303")
    a(f"s_or_b32 s{sDec}, s{sTmp}, s{sA}")
    a.c("only if every probing workgroup sits where round-robin placement puts it; bit 2 of (id + offset) then tells the die")
    a("s_cmp_eq_u32 vcc_lo, 0")
    a(f"s_cselect_b32 s{sDec}, s{sDec}, 0")
    a(f"s_add_u32 s{sB}, s{sB}, s2")
    a(f"s_lshr_b32 s{sB}, s{sB}, 1")
    a(f"s_add_u32 s{sA}, s{sO}, 0x800")
    a(f"s_lshr_b32 s{sA}, s{sA}, 12")
    a(f"s_xor_b32 s{sB}, s{sB}, s{sA}")
    a(f"s_and_b32 s{sB}, s{sB}, 2")
    a(f"s_mul_i32 s{sB}, s{sB}, 0x010101")
    a(f"s_xor_b32 s{sDec}, s{sDec}, s{sB}")
    if force is not None: a(f"s_mov_b32 s{sDec}, {force}")
    a(f"s_bitset1_b32 s{sDec}, 31")
    a(f"v_mov_b32 v{vX0}, s{sDec}")
    a(f"ds_write_b32 v{vTk}, v{vX0} offset:4356")
    if dbgdec:
        a(f"buffer_store_dword v{vX0}, v{vTk}, {srd(sDB)}, 0 offen offset:128")
    a("s_mov_b64 exec, -1")
    a("s_branch L_dec_okB")
    lpoll("B")
    a.lab("L_dec_okB")
    stamp("dec")
    addr(2)
    tile(16)
    for k in range(16, 24):
        load(k)
    addr(3)
    tile(24)
    for k in range(24, NT):
        load(k)
    a.c("wave 0: read the reset flag (it returns behind the data)")
    a(f"s_cmp_lg_u32 s{sW}, 0")
    a("s_cbranch_scc1 L_noflag")
    a(f"buffer_load_dword v{vChk}, v{vTk}, {srd(sDB)}, 0 offen offset:192 sc1")
    a.lab("L_noflag")
    stamp("issued")
    a.c("LDS: P[12][16] per-wave partials at 0, G[12][8] at 768, gates at 1280, ticket at 4352, placement word at 4356")
    a(f"s_mov_b32 s{sMask}, 0xffff0000")
    a(f"v_lshrrev_b32 v{vX0}, 4, v{vL}")
    a(f"s_lshl_b32 s{sTmp}, s{sW}, 6")
    a(f"v_lshl_add_u32 v{vPW}, v{vX0}, 4, s{sTmp}")
    a(f"v_and_b32 v{vX1}, 15, v{vL}")
    a(f"v_lshlrev_b32 v{vX1}, 2, v{vX1}")
    a(f"v_lshl_add_u32 v{vPR}, v{vX0}, 6, v{vX1}")
    a(f"s_mov_b32 s{sLead}, 0x00010001")
    a(f"s_mov_b32 s{sLead+1}, 0x00010001")
    a.c("publish address: lanes 0..15 -> this workgroup's slot, word l; the other lanes are out of range")
    a(f"s_lshl_b32 s{sTmp}, s2, {LS}")
    a(f"v_lshl_add_u32 v{vPub}, v{vL}, 2, s{sTmp}")
    a(f"v_cmp_gt_u32 vcc, 16, v{vL}")
    a(f"v_mov_b32 v{vX0}, 0x40000000")
    a(f"v_mov_b32 v{vX1}, 1")
    a(f"v_cndmask_b32 v{vPub}, v{vX0}, v{vPub}, vcc")

    if p1 == 1:
        a(f"s_mov_b32 s{sPo}, 0x00003f80")
        a(f"s_mov_b32 s{sPo+1}, 0x3f800000")
    a.c("phase 1: f32 channel sums of this lane's 8 channels; the data stay in v40..v167")
    for k in range(NT):
        if k == 0: a("s_waitcnt vmcnt(16)")
        if k >= 16: a(f"s_waitcnt vmcnt({len(order) - 1 - order.index(k)})")
        if k == 8:
            for i in range(6):
                a(f"v_lshlrev_b32 v{vWD+2*i}, 16, v{vWD+6+i}")
                a(f"v_and_b32 v{vWD+2*i+1}, s{sMask}, v{vWD+6+i}")
        for h in range(2):
            d0, d1 = D + 4 * k + 2 * h, D + 4 * k + 2 * h + 1
            t = vAcc + 4 * h if k == 0 else vT
            if p1 == 1 and k:
                a(f"v_dot2_f32_bf16 v{vAcc+4*h}, v{d0}, s{sPo}, v{vAcc+4*h}")
                a(f"v_dot2_f32_bf16 v{vAcc+4*h+1}, v{d0}, s{sPo+1}, v{vAcc+4*h+1}")
                a(f"v_dot2_f32_bf16 v{vAcc+4*h+2}, v{d1}, s{sPo}, v{vAcc+4*h+2}")
                a(f"v_dot2_f32_bf16 v{vAcc+4*h+3}, v{d1}, s{sPo+1}, v{vAcc+4*h+3}")
                continue
            a(f"v_lshlrev_b32 v{t}, 16, v{d0}")
            a(f"v_and_b32 v{t+1}, s{sMask}, v{d0}")
            a(f"v_lshlrev_b32 v{t+2}, 16, v{d1}")
            a(f"v_and_b32 v{t+3}, s{sMask}, v{d1}")
            if k:
                a(f"v_pk_add_f32 {v2(vAcc+4*h)}, {v2(vAcc+4*h)}, {v2(vT)}")
                a(f"v_pk_add_f32 {v2(vAcc+4*h+2)}, {v2(vAcc+4*h+2)}, {v2(vT+2)}")
    if p1 == 1: a("s_nop 2")
    stamp("loaded")
    a.c("wave 0: the slots must have been reset before this workgroup publishes or trusts a slot")
    a(f"s_cmp_lg_u32 s{sW}, 0")
    a("s_cbranch_scc1 L_chk_ok")
    a.lab("L_chk")
    a(f"v_cmp_eq_u32 vcc, 0, v{vChk}")
    a("s_cbranch_vccz L_chk_ok")
    a("s_sleep 4")
    a(f"buffer_load_dword v{vChk}, v{vTk}, {srd(sDB)}, 0 offen offset:192 sc1")
    a("s_waitcnt vmcnt(0)")
    a(f"s_sub_u32 s{sSpin}, s{sSpin}, 1")
    a("s_cbranch_scc0 L_chk")
    a.lab("L_chk_ok")
    A_ = vAcc
    a.c("8 sums x 8 lane rows -> one channel sum per lane (channel 8*(l&7) + (l>>3))")
    for i in range(4):
        a(f"v_permlane32_swap_b32 v{A_+i}, v{A_+i+4}")
    a(f"v_pk_add_f32 {v2(A_)}, {v2(A_)}, {v2(A_+4)}")
    a(f"v_pk_add_f32 {v2(A_+2)}, {v2(A_+2)}, {v2(A_+6)}")
    a("s_nop 1")
    for i in range(2):
        a(f"v_permlane16_swap_b32 v{A_+i}, v{A_+i+2}")
    a(f"v_pk_add_f32 {v2(A_)}, {v2(A_)}, {v2(A_+2)}")
    a("s_nop 1")
    a(f"v_add_f32_dpp v{A_+2}, v{A_}, v{A_} row_ror:8 row_mask:0xf bank_mask:0x3")
    a("s_nop 1")
    a(f"v_add_f32_dpp v{A_+2}, v{A_+1}, v{A_+1} row_ror:8 row_mask:0xf bank_mask:0xc")
    a.c("times the w_down row, summed over the wave: row r of 16 lanes keeps outputs 3r..3r+2")
    for j in (0, 6, 2, 8, 4, 10):
        a(f"v_pk_mul_f32 {v2(vWD+j)}, {v2(A_+2)}, {v2(vWD+j)} op_sel_hi:[0,1]")
    for i in range(6):
        a(f"v_permlane32_swap_b32 v{vWD+i}, v{vWD+i+6}")
    for i in range(0, 6, 2):
        a(f"v_pk_add_f32 {v2(vWD+i)}, {v2(vWD+i)}, {v2(vWD+i+6)}")
    a("s_nop 1")
    for i in range(3):
        a(f"v_permlane16_swap_b32 v{vWD+i}, v{vWD+i+3}")
    for i in range(3):
        a(f"v_add_f32 v{vWD+i}, v{vWD+i}, v{vWD+i+3}")
    for sh in (8, 4, 2, 1):
        for i in range(3):
            a(f"v_add_f32_dpp v{vWD+i}, v{vWD+i}, v{vWD+i} row_ror:{sh} row_mask:0xf bank_mask:0xf")
    a.c("partials -> LDS, take a ticket, read all partials back (complete for the wave whose ticket is last)")
    a(f"s_mov_b64 exec, {p64(sLead)}")
    a(f"ds_write_b128 v{vPW}, v[{vWD}:{vWD+3}]")
    a("s_mov_b64 exec, 1")
    a(f"ds_add_rtn_u32 v{vX0}, v{vTk}, v{vX1} offset:4352")
    a("s_mov_b64 exec, -1")
    a(f"ds_read_b32 v{vT}, v{vPR}")
    a(f"ds_read_b32 v{vT+1}, v{vPR} offset:256")
    a(f"ds_read_b32 v{vT+2}, v{vPR} offset:512")
    a("s_waitcnt lgkmcnt(0)")
    a(f"v_readfirstlane_b32 s{sTk}, v{vX0}")
    a(f"v_add_f32 v{vT}, v{vT}, v{vT+1}")
    a(f"v_add_f32 v{vT}, v{vT}, v{vT+2}")
    a(f"v_mov_b32 v{vT+1}, v{vT}")
    a(f"s_cmp_lg_u32 s{sTk}, 11")
    a("s_cbranch_scc1 L_nopub")
    a(f"v_permlane32_swap_b32 v{vT}, v{vT+1}")
    a(f"v_add_f32 v{vT}, v{vT}, v{vT+1}")
    a(f"v_mov_b32 v{vT+1}, v{vT}")
    a("s_nop 1")
    a(f"v_permlane16_swap_b32 v{vT}, v{vT+1}")
    a(f"v_add_f32 v{vT}, v{vT}, v{vT+1}")
    a(f"v_min_u32 v{vT}, -2, v{vT}")
    a(f"buffer_store_dword v{vT}, v{vPub}, {srd(sWS)}, 0 offen sc1")
    a.lab("L_nopub")
    stamp("pub")
    vGW, vGR, vEW, vER = vPR, vPub, vTk, vChk
    P = vAcc
    a.c("addresses for the rest, w_up to f32")
    a(f"s_lshl_b32 s{sPo}, s{sW}, {LS+5}")
    a(f"s_add_u32 s{sPo+1}, s{sPo}, {16*slot}")
    a(f"v_lshrrev_b32 v{vX0}, 4, v{vL}")
    a(f"v_and_b32 v{vX1}, 3, v{vL}")
    a(f"v_mad_u32_u24 v{vX0}, v{vX1}, 3, v{vX0}")
    a(f"s_lshl_b32 s{sTmp}, s{sW}, 2")
    a(f"s_add_u32 s{sTmp}, s{sTmp}, 768")
    a(f"v_lshl_add_u32 v{vGW}, v{vX0}, 5, s{sTmp}")
    a(f"v_and_b32 v{vX0}, 15, v{vL}")
    a(f"v_min_u32 v{vX0}, 5, v{vX0}")
    a(f"v_lshrrev_b32 v{vX1}, 5, v{vL}")
    a(f"v_lshl_add_u32 v{vX0}, v{vX0}, 1, v{vX1}")
    a(f"v_lshlrev_b32 v{vGR}, 5, v{vX0}")
    a(f"v_and_b32 v{vX0}, 31, v{vL}")
    a(f"v_lshl_add_u32 v{vX0}, v{vX0}, 1, v{vX1}")
    a(f"s_lshl_b32 s{sTmp}, s{sW}, 8")
    a(f"s_add_u32 s{sTmp}, s{sTmp}, 1280")
    a(f"v_lshl_add_u32 v{vEW}, v{vX0}, 2, s{sTmp}")
    a(f"v_and_b32 v{vX0}, 7, v{vL}")
    a(f"v_lshl_add_u32 v{vER}, v{vX0}, 5, s{sTmp}")
    for m in range(6):
        a(f"v_lshlrev_b32 v{vWD+2*m}, 16, v{vWU+m}")
        a(f"v_and_b32 v{vWD+2*m+1}, s{sMask}, v{vWU+m}")
    a(f"s_mov_b32 s{sLead}, 0x000f000f")
    a(f"s_mov_b32 s{sLead+1}, 0x0000000f")
    SO = {"seq": list(range(NT)),
          "rr": [8 * m + n for n in range(8) for m in (2, 0, 3, 1)],
          "rr2": [8 * m + n + j for n in range(0, 8, 2) for m in (2, 0, 3, 1) for j in range(2)],
          "rev": list(range(16, 32)) + list(range(8, 16)) + list(range(8)),
          "mid": list(range(16, 24)) + list(range(8)) + list(range(24, 32)) + list(range(8, 16))}[sord]
    tile(SO[0])
    a(f"s_cmp_ge_u32 s{sW}, 8")
    a("s_barrier")
    stamp("bar1")
    a("s_cbranch_scc1 L_nopoll")
    a.c("waves 0..7: gather 32 slots each; only the lanes whose words are still 'empty' read again")
    a.lab("L_poll")
    a(f"buffer_load_dwordx3 v[{P}:{P+2}], v{vSl}, {srd(sWS)}, s{sPo} offen sc1")
    a(f"buffer_load_dwordx3 v[{P+4}:{P+6}], v{vSl}, {srd(sWS)}, s{sPo+1} offen sc1")
    a("s_waitcnt vmcnt(0)")
    a(f"v_max3_u32 v{vT}, v{P}, v{P+1}, v{P+2}")
    a(f"v_max3_u32 v{vT+1}, v{P+4}, v{P+5}, v{P+6}")
    a(f"v_max_u32 v{vT}, v{vT}, v{vT+1}")
    a(f"v_cmp_eq_u32 vcc, -1, v{vT}")
    a("s_and_b64 exec, vcc, vcc")
    a("s_cbranch_scc0 L_got")
    a(f"s_sub_u32 s{sSpin}, s{sSpin}, 1")
    a("s_cbranch_scc0 L_poll")
    a.lab("L_got")
    a("s_mov_b64 exec, -1")
    a(f"v_pk_add_f32 {v2(P)}, {v2(P)}, {v2(P+4)}")
    a(f"v_add_f32 v{P+2}, v{P+2}, v{P+6}")
    a("s_nop 1")
    a(f"v_permlane32_swap_b32 v{P}, v{P+2}")
    a(f"v_permlane32_swap_b32 v{P+1}, v{P+3}")
    a(f"v_pk_add_f32 {v2(P)}, {v2(P)}, {v2(P+2)}")
    a("s_nop 1")
    a(f"v_permlane16_swap_b32 v{P}, v{P+1}")
    a(f"v_add_f32 v{P}, v{P}, v{P+1}")
    for sh in (8, 4):
        a("s_nop 1")
        a(f"v_add_f32_dpp v{P}, v{P}, v{P} row_ror:{sh} row_mask:0xf bank_mask:0xf")
    a(f"s_mov_b64 exec, {p64(sLead)}")
    a(f"ds_write_b32 v{vGW}, v{P}")
    a("s_mov_b64 exec, -1")
    a("s_waitcnt lgkmcnt(0)")
    a.lab("L_nopoll")
    if not cst: stamp("got")
    a("s_barrier")
    stamp("bar2")
    a(f"ds_read_b128 v[{P}:{P+3}], v{vGR} offset:768")
    a(f"ds_read_b128 v[{P+4}:{P+7}], v{vGR} offset:784")
    a(f"s_and_b32 s{sTmp}, s{sDec}, 0x010101")
    a(f"s_bcnt1_i32_b32 s{sTmp}, s{sTmp}")
    a(f"s_cmp_ge_u32 s{sTmp}, {nsw}")
    a("s_waitcnt lgkmcnt(0)")
    a(f"v_pk_add_f32 {v2(P)}, {v2(P)}, {v2(P+4)}")
    a(f"v_pk_add_f32 {v2(P+2)}, {v2(P+2)}, {v2(P+6)}")
    a(f"v_pk_add_f32 {v2(P)}, {v2(P)}, {v2(P+2)}")
    a(f"v_add_f32 v{P}, v{P}, v{P+1}")
    a.c("h = sum / 2^18; silu(h) = h / (1 + 2^(-h*log2 e))")
    c1 = struct.unpack("<I", struct.pack("<f", -1.4426950408889634 / 262144.0))[0]
    a(f"v_mul_f32 v{P+1}, 0x{c1:08x}, v{P}")
    a(f"v_exp_f32 v{P+1}, v{P+1}")
    a(f"v_mul_f32 v{P}, 0x36800000, v{P}")
    a(f"v_add_f32 v{P+1}, 1.0, v{P+1}")
    a(f"v_rcp_f32 v{P+1}, v{P+1}")
    a("s_nop 0")
    a(f"v_mul_f32 v{P}, v{P}, v{P+1}")
    a("s_nop 1")
    a.c("z = silu(h) @ w_up for channel 2*(l&31) + (l>>5); gate = bf16(1 / (1 + 2^(-z*log2 e)))")
    Z = vT
    for m in range(6):
        op = "v_mul_f32_dpp" if m < 2 else "v_fmac_f32_dpp"
        z = Z + 2 * (m & 1)
        a(f"{op} v{z}, v{P}, v{vWD+2*m} row_newbcast:{m} row_mask:0xf bank_mask:0xf")
        a(f"{op} v{z+1}, v{P}, v{vWD+2*m+1} row_newbcast:{m} row_mask:0xf bank_mask:0xf")
    a(f"v_pk_add_f32 {v2(Z)}, {v2(Z)}, {v2(Z+2)}")
    a("s_nop 1")
    a(f"v_permlane32_swap_b32 v{Z}, v{Z+1}")
    a(f"v_add_f32 v{Z}, v{Z}, v{Z+1}")
    a(f"v_mul_f32 v{Z}, 0xbfb8aa3b, v{Z}")
    a(f"v_exp_f32 v{Z}, v{Z}")
    a("s_nop 0")
    a(f"v_add_f32 v{Z}, 1.0, v{Z}")
    a(f"v_rcp_f32 v{Z}, v{Z}")
    a("s_nop 0")
    a(f"v_cvt_pk_bf16_f32 v{Z}, v{Z}, v{Z}")
    a(f"v_lshlrev_b32 v{Z}, 16, v{Z}")
    a(f"ds_write_b32 v{vEW}, v{Z}")
    a(f"ds_read_b128 v[{vAcc}:{vAcc+3}], v{vER}")
    a(f"ds_read_b128 v[{vAcc+4}:{vAcc+7}], v{vER} offset:16")
    a.c("phase 2: out = bf16(x * gate)")
    U = vWD
    for i in range(4):
        a(f"v_lshlrev_b32 v{U+2*i}, 16, v{D+4*SO[0]+i}")
        a(f"v_and_b32 v{U+2*i+1}, s{sMask}, v{D+4*SO[0]+i}")
    a("s_waitcnt lgkmcnt(0)")
    stamp("gates")
    def phase2(pm, win=0):
        for j, k in enumerate(SO):
            if j:
                for h in range(2):
                    d0, d1 = D + 4 * k + 2 * h, D + 4 * k + 2 * h + 1
                    t = vT if h == 0 else U
                    if p2 == 1:
                        continue
                    if p2 == 2:
                        a(f"v_dot2_f32_bf16 v{t}, v{d0}, v{vAcc+4*h}, 0")
                        a(f"v_dot2_f32_bf16 v{t+1}, v{d0}, v{vAcc+4*h+1}, 0")
                        a(f"v_dot2_f32_bf16 v{t+2}, v{d1}, v{vAcc+4*h+2}, 0")
                        a(f"v_dot2_f32_bf16 v{t+3}, v{d1}, v{vAcc+4*h+3}, 0")
                        if h == 1:
                            a(f"v_cvt_pk_bf16_f32 v{d0-2}, v{vT}, v{vT+1}")
                            a(f"v_cvt_pk_bf16_f32 v{d1-2}, v{vT+2}, v{vT+3}")
                            a("s_nop 0")
                            a(f"v_cvt_pk_bf16_f32 v{d0}, v{t}, v{t+1}")
                            a(f"v_cvt_pk_bf16_f32 v{d1}, v{t+2}, v{t+3}")
                        continue
                    a(f"v_lshlrev_b32 v{t}, 16, v{d0}")
                    a(f"v_and_b32 v{t+1}, s{sMask}, v{d0}")
                    a(f"v_lshlrev_b32 v{t+2}, 16, v{d1}")
                    a(f"v_and_b32 v{t+3}, s{sMask}, v{d1}")
                    a(f"v_pk_mul_f32 {v2(t)}, {v2(t)}, {v2(vAcc+4*h)}")
                    a(f"v_pk_mul_f32 {v2(t+2)}, {v2(t+2)}, {v2(vAcc+4*h+2)}")
                    a(f"v_cvt_pk_bf16_f32 v{d0}, v{t}, v{t+1}")
                    a(f"v_cvt_pk_bf16_f32 v{d1}, v{t+2}, v{t+3}")
            plain = (k in pm) if isinstance(pm, (set, list)) else (pm and j % pm == 0)
            if win and j >= win: a(f"s_waitcnt vmcnt({win - 1})")
            a(f"buffer_store_dwordx4 v[{D+4*k}:{D+4*k+3}], v{vOff}, {srd(sO)}, s{sT} offen{'' if plain else ' sc1'}")
            if j + 1 < NT: tile(SO[j + 1])
    for i in range(4):
        a(f"v_pk_mul_f32 {v2(U+2*i)}, {v2(U+2*i)}, {v2(vAcc+2*i)}")
    for i in range(4):
        a(f"v_cvt_pk_bf16_f32 v{D+4*SO[0]+i}, v{U+2*i}, v{U+2*i+1}")
    if p2 == 2:
        for i in range(0, 8, 2):
            a(f"v_lshrrev_b32 v{vAcc+i}, 16, v{vAcc+i}")
    a("s_cbranch_scc1 L_through")
    a.c("output spread over both dies: most stores write through, every 6th stays in L2 for the end-of-kernel write-back")
    phase2(plmod)
    a("s_branch L_stored" if (stamps or addn) else "s_endpgm")
    a.lab("L_through")
    a.c("output mostly on this workgroup's own die: all stores write through")
    phase2([int(x) for x in str(plmod2).split(",")] if "," in str(plmod2) else plmod2, win2)
    a.lab("L_stored")
    if not cst: stamp("stissued")
    if addn:
        a("s_waitcnt vmcnt(0)")
        a("s_memrealtime s[60:61]")
        a(f"s_and_b32 s{sTmp}, s{sDec}, 0x010101")
        a(f"s_bcnt1_i32_b32 s{sTmp}, s{sTmp}")
        a(f"s_mul_i32 s{sTmp}, s{sTmp}, 10000")
        a.lab("L_addn")
        a("s_memrealtime s[62:63]")
        a("s_waitcnt lgkmcnt(0)")
        a("s_sub_u32 s62, s62, s60")
        a(f"s_cmp_lt_u32 s62, s{sTmp}")
        a("s_cbranch_scc1 L_addn")
    if stamps:
        a("s_waitcnt vmcnt(0)")
        stamp("done")
        a("s_waitcnt lgkmcnt(0)")
        a(f"v_mov_b32 v{vT}, 0")
        a(f"v_mov_b32 v{vT+1}, 0")
        for i in range(len(names)):
            a(f"v_writelane_b32 v{vT}, s{sSt+2*i}, {i}")
            a(f"v_writelane_b32 v{vT+1}, s{sSt+2*i+1}, {i}")
        a(f"s_mul_i32 s{sTmp}, s2, 12")
        a(f"s_add_u32 s{sTmp}, s{sTmp}, s{sW}")
        a(f"s_lshl_b32 s{sTmp}, s{sTmp}, 7")
        a(f"s_add_u32 s{sTmp}, s{sTmp}, {STAMP_OFF}")
        a(f"v_lshlrev_b32 v{vX0}, 3, v{vL}")
        a("s_mov_b64 exec, 0xffff")
        a(f"buffer_store_dwordx2 v[{vT}:{vT+1}], v{vX0}, {srd(sWS)}, s{sTmp} offen")
    a.lab("L_end")
    a("s_endpgm")

    a.lab("L_clear")
    a.c("one wave of the grid: set every slot to the 'empty' marker")
    a(f"s_cmp_lg_u32 s{sW}, {clrw}")
    a("s_cbranch_scc1 L_first")
    a(f"s_mov_b32 s{sWS+2}, {256 * slot}")
    a(f"s_mov_b32 s{sWS+3}, 0x00020000")
    slots()
    for i in range(4):
        a(f"v_mov_b32 v{vT+i}, -1")
    for i in range(16):
        a(f"s_mov_b32 s{sTmp}, {16*slot*i}")
        a(f"buffer_store_dwordx4 v[{vT}:{vT+3}], v{vSl}, {srd(sWS)}, s{sTmp} offen sc1")
    a("s_branch L_first")
    out = HEADER
    out += f"; @launch grid=({NWG},1,1) block=(768,1,1) lds=4368\n"
    if stamps: out += "; stamps: " + " ".join(names) + "\n"
    out += """;
;      flagged through d_debug); every workgroup gathers the 256 lines, silu, w_up, sigmoid -> 192 gates;
"""
    out += """.amdgcn_target "amdgcn-amd-amdhsa--gfx950"
.text
.globl standalone__se_block__vision_kernel
.p2align 8
.type standalone__se_block__vision_kernel,@function
standalone__se_block__vision_kernel:
"""
    out += a.text()
    out += f""".section .rodata,"a"
.p2align 6
.amdhsa_kernel standalone__se_block__vision_kernel
  .amdhsa_next_free_vgpr 168
  .amdhsa_next_free_sgpr {96 if stamps else 64}
  .amdhsa_accum_offset 168
  .amdhsa_group_segment_fixed_size 0
  .amdhsa_kernarg_size 48
  .amdhsa_user_sgpr_count 2
  .amdhsa_user_sgpr_kernarg_segment_ptr 1
  .amdhsa_system_sgpr_workgroup_id_x 1
  .amdhsa_float_denorm_mode_32 3
.end_amdhsa_kernel
"""
    return out

if __name__ == "__main__":
    from build import build
    name = sys.argv[1]
    kw = {}
    for x in sys.argv[2:]:
        k, v = x.split("=")
        try: v = int(v)
        except ValueError: pass
        kw[k] = v
    open(name, "w").write(gen(**kw))
    print(build(name))
```

```python
import sys, struct
from gen import A, HEADER, NB, NWG, STAMP_OFF

NT = 32
K = 1024
M = 1 << 20
SU = 48 * K
L0 = [0, 1, 2, 5, 6, 7, 11, 12]

def gen(ld="nt", stamps=False, spin=1 << 20, slot=128, plmod=6, vmap="b", theta=120, pre=4, clr=48, clrw=1, nsw=2,
        force=None, dbgdec=0, psleep=1, nst="2111", pw="3,7,11", rot=1, addn=0, nowait=0, ncontr=24, plmod2=0, wk=16, nohold=0, decw=2, cst=0, evn=1, spread=1, sord='seq', win2=0, stprobe=4, theta2=180, clk=0, p2=0, p1=0, diag=None, dfrom='entry', amp=10):
    a = A()
    D = 40
    sX, sO, sWS, sDB, sWD, sWU = 4, 8, 12, 16, 20, 24
    sW, sWp, sWq, sT, sBase, sMask, sSpin, sDec = 28, 29, 30, 31, 32, 33, 34, 35
    sTmp, sOdd, sPo, sTk, sRot, sLead = 38, 39, 40, 42, 43, 44
    sPr, sRole, sNeu, s3k = 46, 47, 48, 49
    sMB, sMS = 50, 54
    sTP = 36
    sA, sB = 58, 59
    sNs = 3
    sSt = 60
    vSl, vL, vOff, vPW, vPR, vPub, vChk, vTk = 0, 1, 2, 3, 4, 5, 6, 7
    vAcc, vT, vWD, vWU, vX0, vX1 = 8, 16, 20, 32, 38, 39
    def srd(s): return f"s[{s}:{s+3}]"
    def p64(s): return f"s[{s}:{s+1}]"
    def v2(r): return f"v[{r}:{r+1}]"
    names = []
    def stamp(n):
        if stamps and clk and n not in ("entry", "loaded", "pub", "bar2", "gates", "done", "issued", "got"): return
        if stamps and clk and n in ("entry", "loaded", "gates", "done"):
            i = len(names)
            a(f"s_memrealtime s[{sSt+2*i}:{sSt+2*i+1}]")
            a(f"s_memtime s[{sSt+2*i+2}:{sSt+2*i+3}]")
            names.extend([n, "c_" + n])
            return
        if stamps:
            i = len(names)
            a(f"s_memrealtime s[{sSt+2*i}:{sSt+2*i+1}]")
            names.append(n)
    ldf = (" " + ld) if ld else ""
    P_, Q_, R_ = {"a": (4, 1, 512), "b": (1, 512, 128), "d": (1, 128, 512)}[vmap]
    assert sorted(pr * P_ + wq * Q_ + m * R_ for pr in range(128) for wq in range(4) for m in range(4)) == list(range(2048))
    def tab(t):
        T = sorted((u + t) & 15 for u in L0)
        return sum(u << (4 * n) for n, u in enumerate(T))
    for t in (0, 4): assert sorted([(u + t) & 15 for u in L0] + [(u + t + 8) & 15 for u in L0]) == list(range(16))
    LS = slot.bit_length() - 1
    nst = [int(c) for c in str(nst)]
    assert nst[0] == 2 and all(1 <= c <= 2 for c in nst) and nst == sorted(nst, reverse=True)
    n2 = nst.count(2)

    def rotate(m):
        if rot:
            a(f"s_mov_b32 s{sA}, s{sMS+m}")
            a(f"s_mov_b32 s{sB}, s{sMS+m}")
            a(f"s_lshr_b64 {p64(sA)}, {p64(sA)}, s{sRot}")
            a(f"s_mov_b32 s{sMS+m}, s{sA}")
    def addr(m):
        a(f"s_add_u32 s{sMB+m}, s{sBase}, {m * R_ * SU}")
        a(f"s_add_u32 s{sA}, s{sMB+m}, {24 * K}")
        a(f"s_lshr_b32 s{sB}, s{sA}, 25")
        a(f"s_add_u32 s{sA}, s{sA}, s{sO}")
        a(f"s_lshr_b32 s{sA}, s{sA}, 21")
        a(f"s_lshl_b32 s{sB}, s{sB}, 3")
        a(f"s_lshr_b32 s{sB}, s{sDec}, s{sB}")
        a(f"s_lshr_b32 s{sTmp}, s{sB}, 1")
        a(f"s_xor_b32 s{sA}, s{sA}, s{sTmp}")
        a(f"s_bitcmp1_b32 s{sA}, 0")
        a(f"s_cselect_b32 s{sA}, s{sTP+1}, s{sTP}")
        a(f"s_mov_b32 s{sTmp}, 0x{tab(0):x}")
        a(f"s_bitcmp{0 if m & 1 else 1}_b32 s{sNeu}, 0")
        a(f"s_cselect_b32 s{sTmp}, 0x{tab(8):x}, s{sTmp}")
        a(f"s_bitcmp1_b32 s{sB}, 0")
        a(f"s_cselect_b32 s{sMS+m}, s{sA}, s{sTmp}")
        rotate(m)
    def tile(k):
        m, n = divmod(k, 8)
        a(f"s_bfe_u32 s{sT}, s{sMS+m}, 0x{(4 << 16) | (4 * n):x}")
        a(f"s_mul_i32 s{sT}, s{sT}, s{s3k}")
        a(f"s_add_u32 s{sT}, s{sT}, s{sMB+m}")

    def slots():
        a.c("hand-off slots in d_ws: one line per workgroup; lane l covers slot (l>>2), bytes (l&3)*16")
        a(f"v_lshrrev_b32 v{vX0}, 2, v{vL}")
        a(f"v_and_b32 v{vX1}, 3, v{vL}")
        a(f"v_lshlrev_b32 v{vX0}, {LS}, v{vX0}")
        a(f"v_lshl_add_u32 v{vSl}, v{vX1}, 4, v{vX0}")
    def ldsinit():
        a.c("LDS ticket and placement word are zero before any wave uses them")
        a(f"ds_write_b32 v{vTk}, v{vTk} offset:4352")
        a(f"ds_write_b32 v{vTk}, v{vTk} offset:4356")
    a.c("workgroups past the 256 that carry data leave at once")
    a(f"s_cmp_ge_u32 s2, {NWG}")
    a("s_cbranch_scc1 L_end")
    for (s, off) in ((sX, 0), (sO, 24), (sDB, 32), (sWS, 40), (sWD, 8), (sWU, 16)):
        a(f"s_load_dwordx2 {p64(s)}, s[0:1], {off}")
    stamp("entry")
    a.c("wave w = 3*wq + wp; lane l reads 16 bytes: row (l>>3) of an 8-row unit, bytes wp*128 + (l&7)*16")
    a(f"v_lshrrev_b32 v{vX0}, 6, v0")
    a(f"v_and_b32 v{vL}, 63, v0")
    a(f"v_readfirstlane_b32 s{sW}, v{vX0}")
    a(f"v_lshrrev_b32 v{vX0}, 3, v{vL}")
    a(f"v_and_b32 v{vX1}, 7, v{vL}")
    a(f"v_mul_u32_u24 v{vOff}, 384, v{vX0}")
    a(f"v_lshl_add_u32 v{vOff}, v{vX1}, 4, v{vOff}")
    a.c("workgroups id and id^4 form a pair that shares 48 KiB spans (16 units of 8 rows; 8 units each)")
    a(f"s_bfe_u32 s{sRole}, s2, 0x10002")
    a(f"s_lshr_b32 s{sRot}, s2, 3")
    a(f"s_and_b32 s{sPr}, s2, 3")
    a(f"s_lshl2_add_u32 s{sPr}, s{sRot}, s{sPr}")
    a(f"s_mul_i32 s{sMB}, s{sPr}, {P_ * SU}")
    a(f"s_mul_i32 s{sWq}, s{sW}, 43")
    a(f"s_lshr_b32 s{sWq}, s{sWq}, 7")
    a(f"s_mul_i32 s{sTmp}, s{sWq}, {Q_ * SU - 384}")
    a(f"s_add_u32 s{sMB}, s{sMB}, s{sTmp}")
    a(f"s_lshl_b32 s{sTmp}, s{sW}, 7")
    a(f"s_add_u32 s{sMB}, s{sMB}, s{sTmp}")
    a(f"s_xor_b32 s{sNeu}, s{sRot}, s{sWq}")
    a(f"s_xor_b32 s{sNeu}, s{sNeu}, s{sRole}")
    a(f"s_mov_b32 s{sA}, 0x{tab(0):x}")
    a(f"s_bitcmp1_b32 s{sNeu}, 0")
    a(f"s_cselect_b32 s{sA}, 0x{tab(8):x}, s{sA}")
    a(f"s_and_b32 s{sRot}, s{sRot}, 7")
    a(f"s_lshl_b32 s{sRot}, s{sRot}, 2")
    if rot:
        a(f"s_mov_b32 s{sB}, s{sA}")
        a(f"s_lshr_b64 {p64(sA)}, {p64(sA)}, s{sRot}")
    a(f"s_mov_b32 s{sMS}, s{sA}")
    a(f"s_movk_i32 s{s3k}, 3072")
    tile(0)
    a(f"s_mov_b32 s{sX+2}, {NB}")
    a(f"s_mov_b32 s{sX+3}, 0x00020000")
    a(f"v_mov_b32 v{vTk}, 0")
    if evn:
        a(f"s_mul_i32 s{sTk}, s2, 0x80000001")
        a(f"s_cmp_ge_u32 s{sTk}, {2 * ncontr}")
    else:
        a(f"s_cmp_ge_u32 s2, {ncontr}")
    a("s_waitcnt lgkmcnt(0)")
    stamp("karg")
    a("s_cbranch_scc1 L_go")
    a.c("placement probe (wave 0 of the 24 even workgroups below 48, ahead of their other loads): two accesses 8 KiB apart;")
    a.c("a late second completion shows that its line lives on the other die.  Output: two stores (their lines are written again")
    a.c("with the result after the grid-wide hand-off); input: two loads whose values are not used.")
    if nohold:
        ldsinit()
        a("s_waitcnt lgkmcnt(0)")
    a(f"s_cmp_lg_u32 s{sW}, 0")
    a("s_cbranch_scc1 L_probe_other")
    a(f"s_lshr_b32 s{sLead}, s{sPr}, {1 if evn else 0}")
    a(f"s_cmp_ge_u32 s{sLead}, 6")
    a(f"s_cselect_b32 s{sTk}, 1, 0")
    a(f"s_cselect_b32 s{sTmp}, 6, 0")
    a(f"s_sub_u32 s{sLead}, s{sLead}, s{sTmp}")
    a(f"s_lshr_b32 s{sA}, s{sLead}, 1")
    a(f"s_lshl_b32 s{sA}, s{sA}, 25")
    a(f"s_lshl_b32 s{sTmp}, s{sTk}, 24")
    a(f"s_add_u32 s{sA}, s{sA}, s{sTmp}")
    if spread:
        a(f"s_add_u32 s{sA}, s{sA}, 0x4000")
        a(f"s_mul_i32 s{sB}, s2, {0x300000 + 0x4000 + 0x280}")
        a(f"s_and_b32 s{sB}, s{sB}, 0xefdf00")
    else:
        a(f"s_add_u32 s{sA}, s{sA}, {8 * M + 0x4000}")
        a(f"s_mul_i32 s{sB}, s2, {0x4000 + 0x500}")
        a(f"s_and_b32 s{sB}, s{sB}, 0xfdf00")
    a(f"s_add_u32 s{sA}, s{sA}, s{sO}")
    a(f"s_andn2_b32 s{sA}, s{sA}, 0x3fff")
    a(f"s_add_u32 s{sA}, s{sA}, s{sB}")
    a(f"s_lshr_b32 s{sB}, s{sA}, 21")
    a(f"s_xor_b32 s{sB}, s{sB}, s{sTk}")
    a(f"s_and_b32 s{sB}, s{sB}, 1")
    a(f"s_lshl_b32 s{sB}, s{sB}, 13")
    a(f"s_or_b32 s{sA}, s{sA}, s{sB}")
    a(f"s_xor_b32 s{sB}, s{sA}, 0x2000")
    a(f"s_sub_u32 s{sA}, s{sA}, s{sO}")
    a(f"s_sub_u32 s{sB}, s{sB}, s{sO}")
    a(f"s_mov_b32 s{sO+2}, {NB}")
    a(f"s_mov_b32 s{sO+3}, 0x00020000")
    a(f"s_sub_u32 s{sTmp}, s{sO}, s{sX}")
    a(f"s_add_u32 s{sTmp}, s{sTmp}, 0x800")
    a(f"s_lshr_b32 s{sTmp}, s{sTmp}, 12")
    a(f"s_or_b32 s{sTmp}, s{sTmp}, s{sLead}")
    a("s_mov_b64 exec, 1")
    a(f"s_bitcmp1_b32 s{sTmp}, 0")
    a("s_cbranch_scc1 L_probe_out")
    a(f"buffer_load_dword v{vX0}, v{vTk}, {srd(sX)}, s{sA} offen nt")
    a(f"buffer_load_dword v{vX1}, v{vTk}, {srd(sX)}, s{sB} offen nt")
    a("s_branch L_probe_wait")
    a.lab("L_probe_out")
    if stprobe:
        a(f"s_mov_b64 exec, {(1 << stprobe) - 1}")
        a(f"v_lshlrev_b32 v{vX0}, 4, v{vL}")
        a(f"buffer_store_dwordx4 v[{vOff-2}:{vOff+1}], v{vX0}, {srd(sO)}, s{sA} offen sc1")
        a(f"buffer_store_dwordx4 v[{vOff-2}:{vOff+1}], v{vX0}, {srd(sO)}, s{sB} offen sc1")
        a("s_mov_b64 exec, 1")
    else:
        a(f"buffer_load_dword v{vX0}, v{vTk}, {srd(sO)}, s{sA} offen nt")
        a(f"buffer_load_dword v{vX1}, v{vTk}, {srd(sO)}, s{sB} offen nt")
    a.lab("L_probe_wait")
    a("s_barrier")
    a.c("word 4*statistic + 2*copy + role of d_debug <- valid | ((die id - workgroup id) & 7) << 16 | (signed delay + 1024)")
    a(f"s_mov_b32 s{sDB+2}, 256")
    a(f"s_mov_b32 s{sDB+3}, 0x00020000")
    a(f"s_getreg_b32 s{sDec}, hwreg(HW_REG_XCC_ID, 0, 3)")
    a(f"s_sub_u32 s{sLead+1}, s{sDec}, s2")
    a(f"s_and_b32 s{sLead+1}, s{sLead+1}, 7")
    a(f"s_lshl_b32 s{sLead+1}, s{sLead+1}, 16")
    a(f"s_or_b32 s{sLead+1}, s{sLead+1}, 0x80000400")
    a(f"s_lshr_b32 s{sDec}, s{sDec}, 2")
    a(f"s_lshl1_add_u32 s{sLead}, s{sLead}, s{sTk}")
    a(f"s_lshl1_add_u32 s{sLead}, s{sLead}, s{sRole}")
    a(f"s_lshl_b32 s{sLead}, s{sLead}, 2")
    a(f"s_xor_b32 s{sTmp}, s{sTk}, s{sDec}")
    a(f"v_mov_b32 v{vT+1}, 0")
    a("s_waitcnt vmcnt(1)")
    a(f"s_memtime {p64(sA)}")
    a("s_waitcnt vmcnt(0)")
    a(f"s_memtime {p64(sPo)}")
    a("s_waitcnt lgkmcnt(0)")
    a(f"s_sub_u32 s{sA}, s{sPo}, s{sA}")
    a(f"s_min_u32 s{sA}, s{sA}, 600")
    a(f"s_sub_u32 s{sB}, 0, s{sA}")
    a(f"s_cmp_lg_u32 s{sTmp}, 0")
    a(f"s_cselect_b32 s{sA}, s{sB}, s{sA}")
    a(f"s_add_u32 s{sA}, s{sA}, s{sLead+1}")
    a(f"v_mov_b32 v{vT}, s{sA}")
    if nohold: a("s_setprio 3")
    a(f"buffer_atomic_cmpswap v[{vT}:{vT+1}], v{vTk}, {srd(sDB)}, s{sLead} offen")
    if nohold: a("s_setprio 0")
    a("s_mov_b64 exec, -1")
    a("s_branch L_go")
    a.lab("L_probe_other")
    a("s_barrier")

    a.lab("L_go")
    order = []
    def load(k, nxt=True):
        a(f"buffer_load_dwordx4 v[{D+4*k}:{D+4*k+3}], v{vOff}, {srd(sX)}, s{sT} offen{ldf}")
        if nxt and (k + 1) % 8: tile(k + 1)
        order.append(k)
    a(f"s_cmp_eq_u32 s2, {clr}")
    a("s_cbranch_scc1 L_clear")
    a.lab("L_first")
    if cst: stamp("go")
    for k in range(pre):
        load(k)
    for (s, n) in ((sO, NB), (sDB, 256), (sWS, (2 << 20) if stamps else 256 * slot), (sWD, 4608), (sWU, 4608)):
        a(f"s_mov_b32 s{s+2}, {n}")
        a(f"s_mov_b32 s{s+3}, 0x00020000")
    a(f"s_mov_b32 s{sBase}, s{sMB}")
    a(f"s_mul_i32 s{sTmp}, s{sWq}, 3")
    a(f"s_sub_u32 s{sWp}, s{sW}, s{sTmp}")
    slots()
    if nohold:
        assert not evn
        a(f"s_cmp_lt_u32 s2, {ncontr}")
        a("s_cbranch_scc1 L_noflagset")
    ldsinit()
    a(f"s_xor_b32 s{sTmp}, s2, {clr}")
    a(f"s_xor_b32 s{sA}, s{sW}, {clrw}")
    a(f"s_or_b32 s{sTmp}, s{sTmp}, s{sA}")
    a("s_waitcnt lgkmcnt(0)")
    a("s_barrier")
    a("s_cbranch_scc1 L_noflagset")
    a.c("the markers have landed: raise the flag in d_debug")
    a(f"v_mov_b32 v{vX1}, 1")
    a("s_waitcnt vmcnt(0)")
    a("s_mov_b64 exec, 1")
    a(f"buffer_store_dword v{vX1}, v{vTk}, {srd(sDB)}, 0 offen offset:192 sc1")
    a("s_mov_b64 exec, -1")
    a.lab("L_noflagset")
    if cst: stamp("bar0")
    def weights():
        a.c("weights: w_down row of channel 64*wp + 8*(l&7) + (l>>3); w_up dwords (row 2m + (l>>5), channels 64*wp + 2*(l&31), +1)")
        a(f"v_lshrrev_b32 v{vX0}, 3, v{vL}")
        a(f"v_and_b32 v{vX1}, 7, v{vL}")
        a(f"v_lshl_add_u32 v{vX0}, v{vX1}, 3, v{vX0}")
        a(f"v_mul_u32_u24 v{vX0}, 24, v{vX0}")
        a(f"s_mul_i32 s{sTmp}, s{sWp}, 1536")
        a(f"buffer_load_dwordx4 v[{vWD+6}:{vWD+9}], v{vX0}, {srd(sWD)}, s{sTmp} offen")
        a(f"buffer_load_dwordx2 v[{vWD+10}:{vWD+11}], v{vX0}, {srd(sWD)}, s{sTmp} offen offset:16")
        a(f"v_lshrrev_b32 v{vX0}, 5, v{vL}")
        a(f"v_and_b32 v{vX1}, 31, v{vL}")
        a(f"v_mul_u32_u24 v{vX0}, 384, v{vX0}")
        a(f"v_lshl_add_u32 v{vX0}, v{vX1}, 2, v{vX0}")
        a(f"s_lshl_b32 s{sTmp}, s{sWp}, 7")
        for m in range(6):
            a(f"buffer_load_dword v{vWU+m}, v{vX0}, {srd(sWU)}, s{sTmp} offen offset:{768*m}")
        order.extend(["w"] * 8)
    for k in range(pre, 8):
        load(k)
    if wk == 8: weights()
    a(f"s_mov_b32 s{sSpin}, {spin}")
    a.c("unit tables of a placed span: units whose output lines (mostly) have address bit 13 clear / set")
    a(f"s_add_u32 s{sTmp}, s{sO}, 0x800")
    a(f"s_sub_u32 s{sOdd}, s{sTmp}, s{sX}")
    a(f"s_mov_b32 s{sTP}, 0x{tab(0):x}")
    a(f"s_mov_b32 s{sTP+1}, 0x{tab(8):x}")
    a(f"s_bitcmp1_b32 s{sTmp}, 12")
    a(f"s_cselect_b32 s{sTP}, 0x{tab(4):x}, s{sTP}")
    a(f"s_cselect_b32 s{sTP+1}, 0x{tab(12):x}, s{sTP+1}")
    a(f"s_mov_b32 s{sDec}, 0")
    stamp("static")
    def lpoll(tag):
        a.lab(f"L_dec{tag}")
        a(f"ds_read_b32 v{vChk}, v{vTk} offset:4356")
        a("s_waitcnt lgkmcnt(0)")
        a(f"v_readfirstlane_b32 s{sDec}, v{vChk}")
        a("s_nop 3")
        a(f"s_cmp_lt_i32 s{sDec}, 0")
        a(f"s_cbranch_scc1 L_dec_ok{tag}")
        a(f"s_sleep {psleep}")
        a(f"s_sub_u32 s{sSpin}, s{sSpin}, 1")
        a(f"s_cbranch_scc0 L_dec{tag}")
    a.c("the placement word decides which units of the remaining spans this workgroup takes")
    a(f"s_cmp_lt_u32 s{sWq}, {n2 if not nowait else 9}")
    a("s_cbranch_scc1 L_dec_okA")
    lpoll("A")
    a.lab("L_dec_okA")
    addr(1)
    tile(8)
    for k in range(8, 16):
        load(k)
    if wk == 16: weights()
    a(f"s_cmp_ge_u32 s{sWq}, {n2 if not nowait else 0}")
    a("s_cbranch_scc1 L_dec_okB")
    a(f"s_cmp_lg_u32 s{sW}, {decw}")
    a("s_cbranch_scc1 L_decB")
    a.c("one wave reads the probe words at several moments (the returns queue behind the data) and decides for the workgroup")
    a.c("thresholds: timed stores on the output are sharp, timed loads on the input (buffers not 4 KiB out of step) are not")
    a(f"s_movk_i32 s{sA}, {theta2}")
    a(f"s_bitcmp1_b32 s{sOdd}, 12")
    a(f"s_cselect_b32 s{sB}, s{sA}, {theta}") if theta <= 64 else (a(f"s_movk_i32 s{sB}, {theta}"), a(f"s_cselect_b32 s{sB}, s{sA}, s{sB}"))
    a(f"v_mov_b32 v{vChk}, s{sB}")
    a("s_mov_b64 exec, 0xf0f0f0")
    a(f"v_mov_b32 v{vChk}, s{sA}")
    a("s_mov_b64 exec, 0xffffff")
    a(f"v_lshlrev_b32 v{vX0}, 2, v{vL}")
    pws = [int(x) for x in str(pw).split(",")] if pw != "" else []
    NP = len(pws) + 1
    def rd(i): a(f"buffer_load_dword v{vT+i}, v{vX0}, {srd(sDB)}, 0 offen sc1")
    rd(0)
    for i, t in enumerate(pws):
        a(f"s_waitcnt vmcnt({len(order) - 1 - order.index(t) + i + 1})")
        rd(i + 1)
    for i in range(NP):
        a(f"s_waitcnt vmcnt({NP - 1 - i})")
        a(f"v_cmp_le_i32 vcc, 0, v{vT+i}")
        if i: a(f"v_mov_b32 v{vT}, v{vT+i}")
        a("s_cbranch_vccz L_have")
    a.lab("L_again")
    rd(0)
    a("s_waitcnt vmcnt(0)")
    a(f"v_cmp_le_i32 vcc, 0, v{vT}")
    a("s_cbranch_vccz L_have")
    a(f"s_sub_u32 s{sSpin}, s{sSpin}, 1")
    a("s_cbranch_scc0 L_again")
    a.lab("L_have")
    a(f"v_and_b32 v{vX1}, 0xfff, v{vT}")
    a(f"v_lshrrev_b32 v{vX0}, 16, v{vT}")
    a("s_nop 0")
    a(f"v_add_u32_dpp v{vX1}, v{vX1}, v{vX1} quad_perm:[1,0,3,2] row_mask:0xf bank_mask:0xf")
    a(f"v_readfirstlane_b32 s{sB}, v{vX0}")
    a("s_nop 0")
    a(f"v_add_u32_dpp v{vX1}, v{vX1}, v{vX1} quad_perm:[2,3,0,1] row_mask:0xf bank_mask:0xf")
    a.c("bit 8r: region placed (both of its sums are clear and agree), bit 8r+1: side")
    a(f"v_subrev_u32 v{vX1}, 4096, v{vX1}")
    a(f"v_cmp_gt_i32 vcc, v{vX1}, v{vChk}")
    a(f"v_sub_u32 v{vChk}, 0, v{vChk}")
    a(f"s_lshr_b32 s{sA}, vcc_lo, 4")
    a(f"s_and_b32 s{sTmp}, s{sA}, vcc_lo")
    a(f"v_cmp_lt_i32 vcc, v{vX1}, v{vChk}")
    a(f"s_lshr_b32 s{sA}, vcc_lo, 4")
    a(f"s_and_b32 s{sA}, s{sA}, vcc_lo")
    a(f"v_cmp_ne_u32 vcc, s{sB}, v{vX0}")
    a(f"s_and_b32 s{sTmp}, s{sTmp}, 0x010101")
    a(f"s_and_b32 s{sA}, s{sA}, 0x030303")
    a(f"s_or_b32 s{sDec}, s{sTmp}, s{sA}")
    a.c("only if every probing workgroup sits where round-robin placement puts it; bit 2 of (id + offset) then tells the die")
    a("s_cmp_eq_u32 vcc_lo, 0")
    a(f"s_cselect_b32 s{sDec}, s{sDec}, 0")
    a(f"s_add_u32 s{sB}, s{sB}, s2")
    a(f"s_lshr_b32 s{sB}, s{sB}, 1")
    a(f"s_add_u32 s{sA}, s{sO}, 0x800")
    a(f"s_lshr_b32 s{sA}, s{sA}, 12")
    a(f"s_xor_b32 s{sB}, s{sB}, s{sA}")
    a(f"s_and_b32 s{sB}, s{sB}, 2")
    a(f"s_mul_i32 s{sB}, s{sB}, 0x010101")
    a(f"s_xor_b32 s{sDec}, s{sDec}, s{sB}")
    if force is not None: a(f"s_mov_b32 s{sDec}, {force}")
    a(f"s_bitset1_b32 s{sDec}, 31")
    a(f"v_mov_b32 v{vX0}, s{sDec}")
    a(f"ds_write_b32 v{vTk}, v{vX0} offset:4356")
    if dbgdec:
        a(f"buffer_store_dword v{vX0}, v{vTk}, {srd(sDB)}, 0 offen offset:128")
    a("s_mov_b64 exec, -1")
    a("s_branch L_dec_okB")
    lpoll("B")
    a.lab("L_dec_okB")
    stamp("dec")
    addr(2)
    tile(16)
    for k in range(16, 24):
        load(k)
    addr(3)
    tile(24)
    for k in range(24, NT):
        load(k)
    a.c("wave 0: read the reset flag (it returns behind the data)")
    a(f"s_cmp_lg_u32 s{sW}, 0")
    a("s_cbranch_scc1 L_noflag")
    a(f"buffer_load_dword v{vChk}, v{vTk}, {srd(sDB)}, 0 offen offset:192 sc1")
    a.lab("L_noflag")
    stamp("issued")
    a.c("LDS: P[12][16] per-wave partials at 0, G[12][8] at 768, gates at 1280, ticket at 4352, placement word at 4356")
    a(f"s_mov_b32 s{sMask}, 0xffff0000")
    a(f"v_lshrrev_b32 v{vX0}, 4, v{vL}")
    a(f"s_lshl_b32 s{sTmp}, s{sW}, 6")
    a(f"v_lshl_add_u32 v{vPW}, v{vX0}, 4, s{sTmp}")
    a(f"v_and_b32 v{vX1}, 15, v{vL}")
    a(f"v_lshlrev_b32 v{vX1}, 2, v{vX1}")
    a(f"v_lshl_add_u32 v{vPR}, v{vX0}, 6, v{vX1}")
    a(f"s_mov_b32 s{sLead}, 0x00010001")
    a(f"s_mov_b32 s{sLead+1}, 0x00010001")
    a.c("publish address: lanes 0..15 -> this workgroup's slot, word l; the other lanes are out of range")
    a(f"s_lshl_b32 s{sTmp}, s2, {LS}")
    a(f"v_lshl_add_u32 v{vPub}, v{vL}, 2, s{sTmp}")
    a(f"v_cmp_gt_u32 vcc, 16, v{vL}")
    a(f"v_mov_b32 v{vX0}, 0x40000000")
    a(f"v_mov_b32 v{vX1}, 1")
    a(f"v_cndmask_b32 v{vPub}, v{vX0}, v{vPub}, vcc")

    if p1 == 1:
        a(f"s_mov_b32 s{sPo}, 0x00003f80")
        a(f"s_mov_b32 s{sPo+1}, 0x3f800000")
    a.c("phase 1: f32 channel sums of this lane's 8 channels; the data stay in v40..v167")
    for k in range(NT):
        if k == 0: a("s_waitcnt vmcnt(16)")
        if k >= 16: a(f"s_waitcnt vmcnt({len(order) - 1 - order.index(k)})")
        if k == 8:
            for i in range(6):
                a(f"v_lshlrev_b32 v{vWD+2*i}, 16, v{vWD+6+i}")
                a(f"v_and_b32 v{vWD+2*i+1}, s{sMask}, v{vWD+6+i}")
        for h in range(2):
            d0, d1 = D + 4 * k + 2 * h, D + 4 * k + 2 * h + 1
            t = vAcc + 4 * h if k == 0 else vT
            if p1 == 1 and k:
                a(f"v_dot2_f32_bf16 v{vAcc+4*h}, v{d0}, s{sPo}, v{vAcc+4*h}")
                a(f"v_dot2_f32_bf16 v{vAcc+4*h+1}, v{d0}, s{sPo+1}, v{vAcc+4*h+1}")
                a(f"v_dot2_f32_bf16 v{vAcc+4*h+2}, v{d1}, s{sPo}, v{vAcc+4*h+2}")
                a(f"v_dot2_f32_bf16 v{vAcc+4*h+3}, v{d1}, s{sPo+1}, v{vAcc+4*h+3}")
                continue
            a(f"v_lshlrev_b32 v{t}, 16, v{d0}")
            a(f"v_and_b32 v{t+1}, s{sMask}, v{d0}")
            a(f"v_lshlrev_b32 v{t+2}, 16, v{d1}")
            a(f"v_and_b32 v{t+3}, s{sMask}, v{d1}")
            if k:
                a(f"v_pk_add_f32 {v2(vAcc+4*h)}, {v2(vAcc+4*h)}, {v2(vT)}")
                a(f"v_pk_add_f32 {v2(vAcc+4*h+2)}, {v2(vAcc+4*h+2)}, {v2(vT+2)}")
    if p1 == 1: a("s_nop 2")
    stamp("loaded")
    a.c("wave 0: the slots must have been reset before this workgroup publishes or trusts a slot")
    a(f"s_cmp_lg_u32 s{sW}, 0")
    a("s_cbranch_scc1 L_chk_ok")
    a.lab("L_chk")
    a(f"v_cmp_eq_u32 vcc, 0, v{vChk}")
    a("s_cbranch_vccz L_chk_ok")
    a("s_sleep 4")
    a(f"buffer_load_dword v{vChk}, v{vTk}, {srd(sDB)}, 0 offen offset:192 sc1")
    a("s_waitcnt vmcnt(0)")
    a(f"s_sub_u32 s{sSpin}, s{sSpin}, 1")
    a("s_cbranch_scc0 L_chk")
    a.lab("L_chk_ok")
    A_ = vAcc
    a.c("8 sums x 8 lane rows -> one channel sum per lane (channel 8*(l&7) + (l>>3))")
    for i in range(4):
        a(f"v_permlane32_swap_b32 v{A_+i}, v{A_+i+4}")
    a(f"v_pk_add_f32 {v2(A_)}, {v2(A_)}, {v2(A_+4)}")
    a(f"v_pk_add_f32 {v2(A_+2)}, {v2(A_+2)}, {v2(A_+6)}")
    a("s_nop 1")
    for i in range(2):
        a(f"v_permlane16_swap_b32 v{A_+i}, v{A_+i+2}")
    a(f"v_pk_add_f32 {v2(A_)}, {v2(A_)}, {v2(A_+2)}")
    a("s_nop 1")
    a(f"v_add_f32_dpp v{A_+2}, v{A_}, v{A_} row_ror:8 row_mask:0xf bank_mask:0x3")
    a("s_nop 1")
    a(f"v_add_f32_dpp v{A_+2}, v{A_+1}, v{A_+1} row_ror:8 row_mask:0xf bank_mask:0xc")
    a.c("times the w_down row, summed over the wave: row r of 16 lanes keeps outputs 3r..3r+2")
    for j in (0, 6, 2, 8, 4, 10):
        a(f"v_pk_mul_f32 {v2(vWD+j)}, {v2(A_+2)}, {v2(vWD+j)} op_sel_hi:[0,1]")
    for i in range(6):
        a(f"v_permlane32_swap_b32 v{vWD+i}, v{vWD+i+6}")
    for i in range(0, 6, 2):
        a(f"v_pk_add_f32 {v2(vWD+i)}, {v2(vWD+i)}, {v2(vWD+i+6)}")
    a("s_nop 1")
    for i in range(3):
        a(f"v_permlane16_swap_b32 v{vWD+i}, v{vWD+i+3}")
    for i in range(3):
        a(f"v_add_f32 v{vWD+i}, v{vWD+i}, v{vWD+i+3}")
    for sh in (8, 4, 2, 1):
        for i in range(3):
            a(f"v_add_f32_dpp v{vWD+i}, v{vWD+i}, v{vWD+i} row_ror:{sh} row_mask:0xf bank_mask:0xf")
    a.c("partials -> LDS, take a ticket, read all partials back (complete for the wave whose ticket is last)")
    a(f"s_mov_b64 exec, {p64(sLead)}")
    a(f"ds_write_b128 v{vPW}, v[{vWD}:{vWD+3}]")
    a("s_mov_b64 exec, 1")
    a(f"ds_add_rtn_u32 v{vX0}, v{vTk}, v{vX1} offset:4352")
    a("s_mov_b64 exec, -1")
    a(f"ds_read_b32 v{vT}, v{vPR}")
    a(f"ds_read_b32 v{vT+1}, v{vPR} offset:256")
    a(f"ds_read_b32 v{vT+2}, v{vPR} offset:512")
    a("s_waitcnt lgkmcnt(0)")
    a(f"v_readfirstlane_b32 s{sTk}, v{vX0}")
    a(f"v_add_f32 v{vT}, v{vT}, v{vT+1}")
    a(f"v_add_f32 v{vT}, v{vT}, v{vT+2}")
    a(f"v_mov_b32 v{vT+1}, v{vT}")
    a(f"s_cmp_lg_u32 s{sTk}, 11")
    a("s_cbranch_scc1 L_nopub")
    a(f"v_permlane32_swap_b32 v{vT}, v{vT+1}")
    a(f"v_add_f32 v{vT}, v{vT}, v{vT+1}")
    a(f"v_mov_b32 v{vT+1}, v{vT}")
    a("s_nop 1")
    a(f"v_permlane16_swap_b32 v{vT}, v{vT+1}")
    a(f"v_add_f32 v{vT}, v{vT}, v{vT+1}")
    a(f"v_min_u32 v{vT}, -2, v{vT}")
    a(f"buffer_store_dword v{vT}, v{vPub}, {srd(sWS)}, 0 offen sc1")
    a.lab("L_nopub")
    stamp("pub")
    vGW, vGR, vEW, vER = vPR, vPub, vTk, vChk
    P = vAcc
    a.c("addresses for the rest, w_up to f32")
    a(f"s_lshl_b32 s{sPo}, s{sW}, {LS+5}")
    a(f"s_add_u32 s{sPo+1}, s{sPo}, {16*slot}")
    a(f"v_lshrrev_b32 v{vX0}, 4, v{vL}")
    a(f"v_and_b32 v{vX1}, 3, v{vL}")
    a(f"v_mad_u32_u24 v{vX0}, v{vX1}, 3, v{vX0}")
    a(f"s_lshl_b32 s{sTmp}, s{sW}, 2")
    a(f"s_add_u32 s{sTmp}, s{sTmp}, 768")
    a(f"v_lshl_add_u32 v{vGW}, v{vX0}, 5, s{sTmp}")
    a(f"v_and_b32 v{vX0}, 15, v{vL}")
    a(f"v_min_u32 v{vX0}, 5, v{vX0}")
    a(f"v_lshrrev_b32 v{vX1}, 5, v{vL}")
    a(f"v_lshl_add_u32 v{vX0}, v{vX0}, 1, v{vX1}")
    a(f"v_lshlrev_b32 v{vGR}, 5, v{vX0}")
    a(f"v_and_b32 v{vX0}, 31, v{vL}")
    a(f"v_lshl_add_u32 v{vX0}, v{vX0}, 1, v{vX1}")
    a(f"s_lshl_b32 s{sTmp}, s{sW}, 8")
    a(f"s_add_u32 s{sTmp}, s{sTmp}, 1280")
    a(f"v_lshl_add_u32 v{vEW}, v{vX0}, 2, s{sTmp}")
    a(f"v_and_b32 v{vX0}, 7, v{vL}")
    a(f"v_lshl_add_u32 v{vER}, v{vX0}, 5, s{sTmp}")
    for m in range(6):
        a(f"v_lshlrev_b32 v{vWD+2*m}, 16, v{vWU+m}")
        a(f"v_and_b32 v{vWD+2*m+1}, s{sMask}, v{vWU+m}")
    a(f"s_mov_b32 s{sLead}, 0x000f000f")
    a(f"s_mov_b32 s{sLead+1}, 0x0000000f")
    SO = {"seq": list(range(NT)),
          "rr": [8 * m + n for n in range(8) for m in (2, 0, 3, 1)],
          "rr2": [8 * m + n + j for n in range(0, 8, 2) for m in (2, 0, 3, 1) for j in range(2)],
          "rev": list(range(16, 32)) + list(range(8, 16)) + list(range(8)),
          "mid": list(range(16, 24)) + list(range(8)) + list(range(24, 32)) + list(range(8, 16))}[sord]
    tile(SO[0])
    a(f"s_cmp_ge_u32 s{sW}, 8")
    a("s_barrier")
    stamp("bar1")
    a("s_cbranch_scc1 L_nopoll")
    a.c("waves 0..7: gather 32 slots each; only the lanes whose words are still 'empty' read again")
    a.lab("L_poll")
    a(f"buffer_load_dwordx3 v[{P}:{P+2}], v{vSl}, {srd(sWS)}, s{sPo} offen sc1")
    a(f"buffer_load_dwordx3 v[{P+4}:{P+6}], v{vSl}, {srd(sWS)}, s{sPo+1} offen sc1")
    a("s_waitcnt vmcnt(0)")
    a(f"v_max3_u32 v{vT}, v{P}, v{P+1}, v{P+2}")
    a(f"v_max3_u32 v{vT+1}, v{P+4}, v{P+5}, v{P+6}")
    a(f"v_max_u32 v{vT}, v{vT}, v{vT+1}")
    a(f"v_cmp_eq_u32 vcc, -1, v{vT}")
    a("s_and_b64 exec, vcc, vcc")
    a("s_cbranch_scc0 L_got")
    a(f"s_sub_u32 s{sSpin}, s{sSpin}, 1")
    a("s_cbranch_scc0 L_poll")
    a.lab("L_got")
    a("s_mov_b64 exec, -1")
    a(f"v_pk_add_f32 {v2(P)}, {v2(P)}, {v2(P+4)}")
    a(f"v_add_f32 v{P+2}, v{P+2}, v{P+6}")
    a("s_nop 1")
    a(f"v_permlane32_swap_b32 v{P}, v{P+2}")
    a(f"v_permlane32_swap_b32 v{P+1}, v{P+3}")
    a(f"v_pk_add_f32 {v2(P)}, {v2(P)}, {v2(P+2)}")
    a("s_nop 1")
    a(f"v_permlane16_swap_b32 v{P}, v{P+1}")
    a(f"v_add_f32 v{P}, v{P}, v{P+1}")
    for sh in (8, 4):
        a("s_nop 1")
        a(f"v_add_f32_dpp v{P}, v{P}, v{P} row_ror:{sh} row_mask:0xf bank_mask:0xf")
    a(f"s_mov_b64 exec, {p64(sLead)}")
    a(f"ds_write_b32 v{vGW}, v{P}")
    a("s_mov_b64 exec, -1")
    a("s_waitcnt lgkmcnt(0)")
    a.lab("L_nopoll")
    if not cst: stamp("got")
    a("s_barrier")
    stamp("bar2")
    a(f"ds_read_b128 v[{P}:{P+3}], v{vGR} offset:768")
    a(f"ds_read_b128 v[{P+4}:{P+7}], v{vGR} offset:784")
    a(f"s_and_b32 s{sTmp}, s{sDec}, 0x010101")
    a(f"s_bcnt1_i32_b32 s{sTmp}, s{sTmp}")
    a(f"s_cmp_ge_u32 s{sTmp}, {nsw}")
    a("s_waitcnt lgkmcnt(0)")
    a(f"v_pk_add_f32 {v2(P)}, {v2(P)}, {v2(P+4)}")
    a(f"v_pk_add_f32 {v2(P+2)}, {v2(P+2)}, {v2(P+6)}")
    a(f"v_pk_add_f32 {v2(P)}, {v2(P)}, {v2(P+2)}")
    a(f"v_add_f32 v{P}, v{P}, v{P+1}")
    a.c("h = sum / 2^18; silu(h) = h / (1 + 2^(-h*log2 e))")
    c1 = struct.unpack("<I", struct.pack("<f", -1.4426950408889634 / 262144.0))[0]
    a(f"v_mul_f32 v{P+1}, 0x{c1:08x}, v{P}")
    a(f"v_exp_f32 v{P+1}, v{P+1}")
    a(f"v_mul_f32 v{P}, 0x36800000, v{P}")
    a(f"v_add_f32 v{P+1}, 1.0, v{P+1}")
    a(f"v_rcp_f32 v{P+1}, v{P+1}")
    a("s_nop 0")
    a(f"v_mul_f32 v{P}, v{P}, v{P+1}")
    a("s_nop 1")
    a.c("z = silu(h) @ w_up for channel 2*(l&31) + (l>>5); gate = bf16(1 / (1 + 2^(-z*log2 e)))")
    Z = vT
    for m in range(6):
        op = "v_mul_f32_dpp" if m < 2 else "v_fmac_f32_dpp"
        z = Z + 2 * (m & 1)
        a(f"{op} v{z}, v{P}, v{vWD+2*m} row_newbcast:{m} row_mask:0xf bank_mask:0xf")
        a(f"{op} v{z+1}, v{P}, v{vWD+2*m+1} row_newbcast:{m} row_mask:0xf bank_mask:0xf")
    a(f"v_pk_add_f32 {v2(Z)}, {v2(Z)}, {v2(Z+2)}")
    a("s_nop 1")
    a(f"v_permlane32_swap_b32 v{Z}, v{Z+1}")
    a(f"v_add_f32 v{Z}, v{Z}, v{Z+1}")
    a(f"v_mul_f32 v{Z}, 0xbfb8aa3b, v{Z}")
    a(f"v_exp_f32 v{Z}, v{Z}")
    a("s_nop 0")
    a(f"v_add_f32 v{Z}, 1.0, v{Z}")
    a(f"v_rcp_f32 v{Z}, v{Z}")
    a("s_nop 0")
    a(f"v_cvt_pk_bf16_f32 v{Z}, v{Z}, v{Z}")
    a(f"v_lshlrev_b32 v{Z}, 16, v{Z}")
    a(f"ds_write_b32 v{vEW}, v{Z}")
    a(f"ds_read_b128 v[{vAcc}:{vAcc+3}], v{vER}")
    a(f"ds_read_b128 v[{vAcc+4}:{vAcc+7}], v{vER} offset:16")
    a.c("phase 2: out = bf16(x * gate)")
    U = vWD
    for i in range(4):
        a(f"v_lshlrev_b32 v{U+2*i}, 16, v{D+4*SO[0]+i}")
        a(f"v_and_b32 v{U+2*i+1}, s{sMask}, v{D+4*SO[0]+i}")
    a("s_waitcnt lgkmcnt(0)")
    stamp("gates")
    def phase2(pm, win=0):
        for j, k in enumerate(SO):
            if j:
                for h in range(2):
                    d0, d1 = D + 4 * k + 2 * h, D + 4 * k + 2 * h + 1
                    t = vT if h == 0 else U
                    if p2 == 1:
                        continue
                    if p2 == 2:
                        a(f"v_dot2_f32_bf16 v{t}, v{d0}, v{vAcc+4*h}, 0")
                        a(f"v_dot2_f32_bf16 v{t+1}, v{d0}, v{vAcc+4*h+1}, 0")
                        a(f"v_dot2_f32_bf16 v{t+2}, v{d1}, v{vAcc+4*h+2}, 0")
                        a(f"v_dot2_f32_bf16 v{t+3}, v{d1}, v{vAcc+4*h+3}, 0")
                        if h == 1:
                            a(f"v_cvt_pk_bf16_f32 v{d0-2}, v{vT}, v{vT+1}")
                            a(f"v_cvt_pk_bf16_f32 v{d1-2}, v{vT+2}, v{vT+3}")
                            a("s_nop 0")
                            a(f"v_cvt_pk_bf16_f32 v{d0}, v{t}, v{t+1}")
                            a(f"v_cvt_pk_bf16_f32 v{d1}, v{t+2}, v{t+3}")
                        continue
                    a(f"v_lshlrev_b32 v{t}, 16, v{d0}")
                    a(f"v_and_b32 v{t+1}, s{sMask}, v{d0}")
                    a(f"v_lshlrev_b32 v{t+2}, 16, v{d1}")
                    a(f"v_and_b32 v{t+3}, s{sMask}, v{d1}")
                    a(f"v_pk_mul_f32 {v2(t)}, {v2(t)}, {v2(vAcc+4*h)}")
                    a(f"v_pk_mul_f32 {v2(t+2)}, {v2(t+2)}, {v2(vAcc+4*h+2)}")
                    a(f"v_cvt_pk_bf16_f32 v{d0}, v{t}, v{t+1}")
                    a(f"v_cvt_pk_bf16_f32 v{d1}, v{t+2}, v{t+3}")
            plain = (k in pm) if isinstance(pm, (set, list)) else (pm and j % pm == 0)
            if win and j >= win: a(f"s_waitcnt vmcnt({win - 1})")
            a(f"buffer_store_dwordx4 v[{D+4*k}:{D+4*k+3}], v{vOff}, {srd(sO)}, s{sT} offen{'' if plain else ' sc1'}")
            if j + 1 < NT: tile(SO[j + 1])
    for i in range(4):
        a(f"v_pk_mul_f32 {v2(U+2*i)}, {v2(U+2*i)}, {v2(vAcc+2*i)}")
    for i in range(4):
        a(f"v_cvt_pk_bf16_f32 v{D+4*SO[0]+i}, v{U+2*i}, v{U+2*i+1}")
    if p2 == 2:
        for i in range(0, 8, 2):
            a(f"v_lshrrev_b32 v{vAcc+i}, 16, v{vAcc+i}")
    a("s_cbranch_scc1 L_through")
    a.c("output spread over both dies: most stores write through, every 6th stays in L2 for the end-of-kernel write-back")
    phase2(plmod)
    a("s_branch L_stored" if (stamps or addn) else "s_endpgm")
    a.lab("L_through")
    a.c("output mostly on this workgroup's own die: all stores write through")
    phase2([int(x) for x in str(plmod2).split(",")] if "," in str(plmod2) else plmod2, win2)
    a.lab("L_stored")
    if not cst: stamp("stissued")
    if addn:
        a("s_waitcnt vmcnt(0)")
        a("s_memrealtime s[60:61]")
        a(f"s_and_b32 s{sTmp}, s{sDec}, 0x010101")
        a(f"s_bcnt1_i32_b32 s{sTmp}, s{sTmp}")
        a(f"s_mul_i32 s{sTmp}, s{sTmp}, 10000")
        a.lab("L_addn")
        a("s_memrealtime s[62:63]")
        a("s_waitcnt lgkmcnt(0)")
        a("s_sub_u32 s62, s62, s60")
        a(f"s_cmp_lt_u32 s62, s{sTmp}")
        a("s_cbranch_scc1 L_addn")
    if stamps:
        a("s_waitcnt vmcnt(0)")
        stamp("done")
        a("s_waitcnt lgkmcnt(0)")
    if diag:
        i = names.index(diag); j = names.index(dfrom)
        a(f"s_sub_u32 s{sTmp}, s{sSt+2*i}, s{sSt+2*j}")
        a(f"s_mul_i32 s{sTmp}, s{sTmp}, {amp}")
        a(f"s_min_u32 s{sTmp}, s{sTmp}, 200000")
        a.lab("L_diag")
        a(f"s_memrealtime s[{sSt+2}:{sSt+3}]")
        a("s_waitcnt lgkmcnt(0)")
        a(f"s_sub_u32 s{sSt+2}, s{sSt+2}, s{sSt}")
        a(f"s_cmp_lt_u32 s{sSt+2}, s{sTmp}")
        a("s_cbranch_scc1 L_diag")
    elif stamps:
        a(f"v_mov_b32 v{vT}, 0")
        a(f"v_mov_b32 v{vT+1}, 0")
        for i in range(len(names)):
            a(f"v_writelane_b32 v{vT}, s{sSt+2*i}, {i}")
            a(f"v_writelane_b32 v{vT+1}, s{sSt+2*i+1}, {i}")
        a(f"s_mul_i32 s{sTmp}, s2, 12")
        a(f"s_add_u32 s{sTmp}, s{sTmp}, s{sW}")
        a(f"s_lshl_b32 s{sTmp}, s{sTmp}, 7")
        a(f"s_add_u32 s{sTmp}, s{sTmp}, {STAMP_OFF}")
        a(f"v_lshlrev_b32 v{vX0}, 3, v{vL}")
        a("s_mov_b64 exec, 0xffff")
        a(f"buffer_store_dwordx2 v[{vT}:{vT+1}], v{vX0}, {srd(sWS)}, s{sTmp} offen")
    a.lab("L_end")
    a("s_endpgm")

    a.lab("L_clear")
    a.c("one wave of the grid: set every slot to the 'empty' marker")
    a(f"s_cmp_lg_u32 s{sW}, {clrw}")
    a("s_cbranch_scc1 L_first")
    a(f"s_mov_b32 s{sWS+2}, {256 * slot}")
    a(f"s_mov_b32 s{sWS+3}, 0x00020000")
    slots()
    for i in range(4):
        a(f"v_mov_b32 v{vT+i}, -1")
    for i in range(16):
        a(f"s_mov_b32 s{sTmp}, {16*slot*i}")
        a(f"buffer_store_dwordx4 v[{vT}:{vT+3}], v{vSl}, {srd(sWS)}, s{sTmp} offen sc1")
    a("s_branch L_first")
    out = HEADER
    out += f"; @launch grid=({NWG},1,1) block=(768,1,1) lds=4368\n"
    if stamps: out += "; stamps: " + " ".join(names) + "\n"
    out += """;
;      flagged through d_debug); every workgroup gathers the 256 lines, silu, w_up, sigmoid -> 192 gates;
"""
    out += """.amdgcn_target "amdgcn-amd-amdhsa--gfx950"
.text
.globl standalone__se_block__vision_kernel
.p2align 8
.type standalone__se_block__vision_kernel,@function
standalone__se_block__vision_kernel:
"""
    out += a.text()
    out += f""".section .rodata,"a"
.p2align 6
.amdhsa_kernel standalone__se_block__vision_kernel
  .amdhsa_next_free_vgpr 168
  .amdhsa_next_free_sgpr {96 if stamps else 64}
  .amdhsa_accum_offset 168
  .amdhsa_group_segment_fixed_size 0
  .amdhsa_kernarg_size 48
  .amdhsa_user_sgpr_count 2
  .amdhsa_user_sgpr_kernarg_segment_ptr 1
  .amdhsa_system_sgpr_workgroup_id_x 1
  .amdhsa_float_denorm_mode_32 3
.end_amdhsa_kernel
"""
    return out

if __name__ == "__main__":
    from build import build
    name = sys.argv[1]
    kw = {}
    for x in sys.argv[2:]:
        k, v = x.split("=")
        try: v = int(v)
        except ValueError: pass
        kw[k] = v
    open(name, "w").write(gen(**kw))
    print(build(name))
```

```python
import sys, struct
from gen import A, HEADER, NB, NWG, STAMP_OFF

NT = 32
K = 1024
M = 1 << 20
SU = 48 * K
L0 = [0, 1, 2, 5, 6, 7, 11, 12]

def gen(ld="nt", stamps=False, spin=1 << 20, slot=128, plmod=6, vmap="b", theta=120, pre=4, clr=48, clrw=1, nsw=2,
        force=None, dbgdec=0, psleep=1, nst="2211", pw="3,7,11", rot=0, addn=0, nowait=0, ncontr=24, plmod2=0, wk=16, nohold=0, decw=2, cst=0, evn=1, spread=1, sord='rr2', win2=0, stprobe=4, theta2=180, clk=0, p2=0, p1=0, diag=None, dfrom='entry', amp=10, cm=33, cw=9, clrpos=1):
    a = A()
    D = 40
    sX, sO, sWS, sDB, sWD, sWU = 4, 8, 12, 16, 20, 24
    sW, sWp, sWq, sT, sBase, sMask, sSpin, sDec = 28, 29, 30, 31, 32, 33, 34, 35
    sTmp, sOdd, sPo, sTk, sRot, sLead = 38, 39, 40, 42, 43, 44
    sPr, sRole, sNeu, s3k = 46, 47, 48, 49
    sMB, sMS = 50, 54
    sTP = 36
    sA, sB = 58, 59
    sPq = 3
    sNs = 3
    sSt = 60
    vSl, vL, vOff, vPW, vPR, vPub, vChk, vTk = 0, 1, 2, 3, 4, 5, 6, 7
    vAcc, vT, vWD, vWU, vX0, vX1 = 8, 16, 20, 32, 38, 39
    def srd(s): return f"s[{s}:{s+3}]"
    def p64(s): return f"s[{s}:{s+1}]"
    def v2(r): return f"v[{r}:{r+1}]"
    names = []
    def stamp(n):
        if stamps and clk and n not in ("entry", "loaded", "pub", "bar2", "gates", "done", "issued", "got"): return
        if stamps and clk and n in ("entry", "loaded", "gates", "done"):
            i = len(names)
            a(f"s_memrealtime s[{sSt+2*i}:{sSt+2*i+1}]")
            a(f"s_memtime s[{sSt+2*i+2}:{sSt+2*i+3}]")
            names.extend([n, "c_" + n])
            return
        if stamps:
            i = len(names)
            a(f"s_memrealtime s[{sSt+2*i}:{sSt+2*i+1}]")
            names.append(n)
    ldf = (" " + ld) if ld else ""
    P_, Q_, R_ = {"a": (4, 1, 512), "b": (1, 512, 128), "d": (1, 128, 512)}[vmap]
    assert sorted(pr * P_ + wq * Q_ + m * R_ for pr in range(128) for wq in range(4) for m in range(4)) == list(range(2048))
    def tab(t):
        T = sorted((u + t) & 15 for u in L0)
        return sum(u << (4 * n) for n, u in enumerate(T))
    for t in (0, 4): assert sorted([(u + t) & 15 for u in L0] + [(u + t + 8) & 15 for u in L0]) == list(range(16))
    LS = slot.bit_length() - 1
    nst = [int(c) for c in str(nst)]
    assert nst[0] == 2 and all(1 <= c <= 2 for c in nst) and nst == sorted(nst, reverse=True)
    n2 = nst.count(2)

    def rotate(m):
        if rot:
            a(f"s_mov_b32 s{sA}, s{sMS+m}")
            a(f"s_mov_b32 s{sB}, s{sMS+m}")
            a(f"s_lshr_b64 {p64(sA)}, {p64(sA)}, s{sRot}")
            a(f"s_mov_b32 s{sMS+m}, s{sA}")
    def addr(m):
        a(f"s_add_u32 s{sA}, s{sPq}, {(m * cm) & 127}")
        a(f"s_and_b32 s{sA}, s{sA}, 127")
        a(f"s_mul_i32 s{sA}, s{sA}, {SU}")
        a(f"s_add_u32 s{sA}, s{sA}, {m * R_ * SU}")
        a(f"s_add_u32 s{sMB+m}, s{sBase}, s{sA}")
        a(f"s_add_u32 s{sA}, s{sMB+m}, {24 * K}")
        a(f"s_lshr_b32 s{sB}, s{sA}, 25")
        a(f"s_add_u32 s{sA}, s{sA}, s{sO}")
        a(f"s_lshr_b32 s{sA}, s{sA}, 21")
        a(f"s_lshl_b32 s{sB}, s{sB}, 3")
        a(f"s_lshr_b32 s{sB}, s{sDec}, s{sB}")
        a(f"s_lshr_b32 s{sTmp}, s{sB}, 1")
        a(f"s_xor_b32 s{sA}, s{sA}, s{sTmp}")
        a(f"s_bitcmp1_b32 s{sA}, 0")
        a(f"s_cselect_b32 s{sA}, s{sTP+1}, s{sTP}")
        a(f"s_mov_b32 s{sTmp}, 0x{tab(0):x}")
        a(f"s_bitcmp{0 if m & 1 else 1}_b32 s{sNeu}, 0")
        a(f"s_cselect_b32 s{sTmp}, 0x{tab(8):x}, s{sTmp}")
        a(f"s_bitcmp1_b32 s{sB}, 0")
        a(f"s_cselect_b32 s{sMS+m}, s{sA}, s{sTmp}")
        rotate(m)
    def tile(k):
        m, n = divmod(k, 8)
        a(f"s_bfe_u32 s{sT}, s{sMS+m}, 0x{(4 << 16) | (4 * n):x}")
        a(f"s_mul_i32 s{sT}, s{sT}, s{s3k}")
        a(f"s_add_u32 s{sT}, s{sT}, s{sMB+m}")

    def slots():
        a.c("hand-off slots in d_ws: one line per workgroup; lane l covers slot (l>>2), bytes (l&3)*16")
        a(f"v_lshrrev_b32 v{vX0}, 2, v{vL}")
        a(f"v_and_b32 v{vX1}, 3, v{vL}")
        a(f"v_lshlrev_b32 v{vX0}, {LS}, v{vX0}")
        a(f"v_lshl_add_u32 v{vSl}, v{vX1}, 4, v{vX0}")
    def ldsinit():
        a.c("LDS ticket and placement word are zero before any wave uses them")
        a(f"ds_write_b32 v{vTk}, v{vTk} offset:4352")
        a(f"ds_write_b32 v{vTk}, v{vTk} offset:4356")
    a.c("workgroups past the 256 that carry data leave at once")
    a(f"s_cmp_ge_u32 s2, {NWG}")
    a("s_cbranch_scc1 L_end")
    for (s, off) in ((sX, 0), (sO, 24), (sDB, 32), (sWS, 40), (sWD, 8), (sWU, 16)):
        a(f"s_load_dwordx2 {p64(s)}, s[0:1], {off}")
    stamp("entry")
    a.c("wave w = 3*wq + wp; lane l reads 16 bytes: row (l>>3) of an 8-row unit, bytes wp*128 + (l&7)*16")
    a(f"v_lshrrev_b32 v{vX0}, 6, v0")
    a(f"v_and_b32 v{vL}, 63, v0")
    a(f"v_readfirstlane_b32 s{sW}, v{vX0}")
    a(f"v_lshrrev_b32 v{vX0}, 3, v{vL}")
    a(f"v_and_b32 v{vX1}, 7, v{vL}")
    a(f"v_mul_u32_u24 v{vOff}, 384, v{vX0}")
    a(f"v_lshl_add_u32 v{vOff}, v{vX1}, 4, v{vOff}")
    a.c("workgroups id and id^4 form a pair that shares 48 KiB spans (16 units of 8 rows; 8 units each)")
    a(f"s_bfe_u32 s{sRole}, s2, 0x10002")
    a(f"s_lshr_b32 s{sRot}, s2, 3")
    a(f"s_and_b32 s{sPr}, s2, 3")
    a(f"s_lshl2_add_u32 s{sPr}, s{sRot}, s{sPr}")
    assert P_ == 1 and vmap == "b"
    a(f"s_mul_i32 s{sWq}, s{sW}, 43")
    a(f"s_lshr_b32 s{sWq}, s{sWq}, 7")
    a.c("span m of wave group wq lies in 6 MiB slab 4*wq + m; its place in the slab rotates from slab to slab")
    a(f"s_mul_i32 s{sPq}, s{sWq}, {cw}")
    a(f"s_add_u32 s{sPq}, s{sPq}, s{sPr}")
    a(f"s_and_b32 s{sPq}, s{sPq}, 127")
    a(f"s_mul_i32 s{sMB}, s{sPq}, {SU}")
    a(f"s_mul_i32 s{sBase}, s{sWq}, {Q_ * SU - 384}")
    a(f"s_lshl_b32 s{sTmp}, s{sW}, 7")
    a(f"s_add_u32 s{sBase}, s{sBase}, s{sTmp}")
    a(f"s_add_u32 s{sMB}, s{sMB}, s{sBase}")
    a(f"s_xor_b32 s{sNeu}, s{sRot}, s{sWq}")
    a(f"s_xor_b32 s{sNeu}, s{sNeu}, s{sRole}")
    a(f"s_mov_b32 s{sA}, 0x{tab(0):x}")
    a(f"s_bitcmp1_b32 s{sNeu}, 0")
    a(f"s_cselect_b32 s{sA}, 0x{tab(8):x}, s{sA}")
    a(f"s_and_b32 s{sRot}, s{sRot}, 7")
    a(f"s_lshl_b32 s{sRot}, s{sRot}, 2")
    if rot:
        a(f"s_mov_b32 s{sB}, s{sA}")
        a(f"s_lshr_b64 {p64(sA)}, {p64(sA)}, s{sRot}")
    a(f"s_mov_b32 s{sMS}, s{sA}")
    a(f"s_movk_i32 s{s3k}, 3072")
    tile(0)
    a(f"s_mov_b32 s{sX+2}, {NB}")
    a(f"s_mov_b32 s{sX+3}, 0x00020000")
    a(f"v_mov_b32 v{vTk}, 0")
    if evn:
        a(f"s_mul_i32 s{sTk}, s2, 0x80000001")
        a(f"s_cmp_ge_u32 s{sTk}, {2 * ncontr}")
    else:
        a(f"s_cmp_ge_u32 s2, {ncontr}")
    a("s_waitcnt lgkmcnt(0)")
    stamp("karg")
    a("s_cbranch_scc1 L_go")
    a.c("placement probe (wave 0 of the 24 even workgroups below 48, ahead of their other loads): two accesses 8 KiB apart;")
    a.c("a late second completion shows that its line lives on the other die.  Output: two stores (their lines are written again")
    a.c("with the result after the grid-wide hand-off); input: two loads whose values are not used.")
    if nohold:
        ldsinit()
        a("s_waitcnt lgkmcnt(0)")
    a(f"s_cmp_lg_u32 s{sW}, 0")
    a("s_cbranch_scc1 L_probe_other")
    a(f"s_lshr_b32 s{sLead}, s{sPr}, {1 if evn else 0}")
    a(f"s_cmp_ge_u32 s{sLead}, 6")
    a(f"s_cselect_b32 s{sTk}, 1, 0")
    a(f"s_cselect_b32 s{sTmp}, 6, 0")
    a(f"s_sub_u32 s{sLead}, s{sLead}, s{sTmp}")
    a(f"s_lshr_b32 s{sA}, s{sLead}, 1")
    a(f"s_lshl_b32 s{sA}, s{sA}, 25")
    a(f"s_lshl_b32 s{sTmp}, s{sTk}, 24")
    a(f"s_add_u32 s{sA}, s{sA}, s{sTmp}")
    if spread:
        a(f"s_add_u32 s{sA}, s{sA}, 0x4000")
        a(f"s_mul_i32 s{sB}, s2, {0x300000 + 0x4000 + 0x280}")
        a(f"s_and_b32 s{sB}, s{sB}, 0xefdf00")
    else:
        a(f"s_add_u32 s{sA}, s{sA}, {8 * M + 0x4000}")
        a(f"s_mul_i32 s{sB}, s2, {0x4000 + 0x500}")
        a(f"s_and_b32 s{sB}, s{sB}, 0xfdf00")
    a(f"s_add_u32 s{sA}, s{sA}, s{sO}")
    a(f"s_andn2_b32 s{sA}, s{sA}, 0x3fff")
    a(f"s_add_u32 s{sA}, s{sA}, s{sB}")
    a(f"s_lshr_b32 s{sB}, s{sA}, 21")
    a(f"s_xor_b32 s{sB}, s{sB}, s{sTk}")
    a(f"s_and_b32 s{sB}, s{sB}, 1")
    a(f"s_lshl_b32 s{sB}, s{sB}, 13")
    a(f"s_or_b32 s{sA}, s{sA}, s{sB}")
    a(f"s_xor_b32 s{sB}, s{sA}, 0x2000")
    a(f"s_sub_u32 s{sA}, s{sA}, s{sO}")
    a(f"s_sub_u32 s{sB}, s{sB}, s{sO}")
    a(f"s_mov_b32 s{sO+2}, {NB}")
    a(f"s_mov_b32 s{sO+3}, 0x00020000")
    a(f"s_sub_u32 s{sTmp}, s{sO}, s{sX}")
    a(f"s_add_u32 s{sTmp}, s{sTmp}, 0x800")
    a(f"s_lshr_b32 s{sTmp}, s{sTmp}, 12")
    a(f"s_or_b32 s{sTmp}, s{sTmp}, s{sLead}")
    a("s_mov_b64 exec, 1")
    a(f"s_bitcmp1_b32 s{sTmp}, 0")
    a("s_cbranch_scc1 L_probe_out")
    a(f"buffer_load_dword v{vX0}, v{vTk}, {srd(sX)}, s{sA} offen nt")
    a(f"buffer_load_dword v{vX1}, v{vTk}, {srd(sX)}, s{sB} offen nt")
    a("s_branch L_probe_wait")
    a.lab("L_probe_out")
    if stprobe:
        a(f"s_mov_b64 exec, {(1 << stprobe) - 1}")
        a(f"v_lshlrev_b32 v{vX0}, 4, v{vL}")
        a(f"buffer_store_dwordx4 v[{vOff-2}:{vOff+1}], v{vX0}, {srd(sO)}, s{sA} offen sc1")
        a(f"buffer_store_dwordx4 v[{vOff-2}:{vOff+1}], v{vX0}, {srd(sO)}, s{sB} offen sc1")
        a("s_mov_b64 exec, 1")
    else:
        a(f"buffer_load_dword v{vX0}, v{vTk}, {srd(sO)}, s{sA} offen nt")
        a(f"buffer_load_dword v{vX1}, v{vTk}, {srd(sO)}, s{sB} offen nt")
    a.lab("L_probe_wait")
    a("s_barrier")
    a.c("word 4*statistic + 2*copy + role of d_debug <- valid | ((die id - workgroup id) & 7) << 16 | (signed delay + 1024)")
    a(f"s_mov_b32 s{sDB+2}, 256")
    a(f"s_mov_b32 s{sDB+3}, 0x00020000")
    a(f"s_getreg_b32 s{sDec}, hwreg(HW_REG_XCC_ID, 0, 3)")
    a(f"s_sub_u32 s{sLead+1}, s{sDec}, s2")
    a(f"s_and_b32 s{sLead+1}, s{sLead+1}, 7")
    a(f"s_lshl_b32 s{sLead+1}, s{sLead+1}, 16")
    a(f"s_or_b32 s{sLead+1}, s{sLead+1}, 0x80000400")
    a(f"s_lshr_b32 s{sDec}, s{sDec}, 2")
    a(f"s_lshl1_add_u32 s{sLead}, s{sLead}, s{sTk}")
    a(f"s_lshl1_add_u32 s{sLead}, s{sLead}, s{sRole}")
    a(f"s_lshl_b32 s{sLead}, s{sLead}, 2")
    a(f"s_xor_b32 s{sTmp}, s{sTk}, s{sDec}")
    a(f"v_mov_b32 v{vT+1}, 0")
    a("s_waitcnt vmcnt(1)")
    a(f"s_memtime {p64(sA)}")
    a("s_waitcnt vmcnt(0)")
    a(f"s_memtime {p64(sPo)}")
    a("s_waitcnt lgkmcnt(0)")
    a(f"s_sub_u32 s{sA}, s{sPo}, s{sA}")
    a(f"s_min_u32 s{sA}, s{sA}, 600")
    a(f"s_sub_u32 s{sB}, 0, s{sA}")
    a(f"s_cmp_lg_u32 s{sTmp}, 0")
    a(f"s_cselect_b32 s{sA}, s{sB}, s{sA}")
    a(f"s_add_u32 s{sA}, s{sA}, s{sLead+1}")
    a(f"v_mov_b32 v{vT}, s{sA}")
    if nohold: a("s_setprio 3")
    a(f"buffer_atomic_cmpswap v[{vT}:{vT+1}], v{vTk}, {srd(sDB)}, s{sLead} offen")
    if nohold: a("s_setprio 0")
    a("s_mov_b64 exec, -1")
    a("s_branch L_go")
    a.lab("L_probe_other")
    a("s_barrier")

    a.lab("L_go")
    order = []
    def load(k, nxt=True):
        a(f"buffer_load_dwordx4 v[{D+4*k}:{D+4*k+3}], v{vOff}, {srd(sX)}, s{sT} offen{ldf}")
        if nxt and (k + 1) % 8: tile(k + 1)
        order.append(k)
    if not clrpos:
        a(f"s_cmp_eq_u32 s2, {clr}")
        a("s_cbranch_scc1 L_clear")
    a.lab("L_first")
    if cst: stamp("go")
    for k in range(pre):
        load(k)
    for (s, n) in ((sO, NB), (sDB, 256), (sWS, (2 << 20) if stamps else 256 * slot), (sWD, 4608), (sWU, 4608)):
        a(f"s_mov_b32 s{s+2}, {n}")
        a(f"s_mov_b32 s{s+3}, 0x00020000")
    a(f"s_mul_i32 s{sTmp}, s{sWq}, 3")
    a(f"s_sub_u32 s{sWp}, s{sW}, s{sTmp}")
    slots()
    if nohold:
        assert not evn
        a(f"s_cmp_lt_u32 s2, {ncontr}")
        a("s_cbranch_scc1 L_noflagset")
    ldsinit()
    a(f"s_xor_b32 s{sTmp}, s2, {clr}")
    a(f"s_xor_b32 s{sA}, s{sW}, {clrw}")
    a(f"s_or_b32 s{sTmp}, s{sTmp}, s{sA}")
    a("s_waitcnt lgkmcnt(0)")
    a("s_barrier")
    if clrpos:
        if clrpos == 2:
            a(f"s_cselect_b32 s{sTk}, 1, 0")
            for k in range(pre, 8): load(k)
            a(f"s_cmp_lg_u32 s{sTk}, 0")
        a("s_cbranch_scc0 L_clear")
        a("s_branch L_noflagset")
        a.lab("L_cleared")
    else:
        a("s_cbranch_scc1 L_noflagset")
    a.c("the markers have landed: raise the flag in d_debug")
    a(f"v_mov_b32 v{vX1}, 1")
    a("s_waitcnt vmcnt(0)")
    a("s_mov_b64 exec, 1")
    a(f"buffer_store_dword v{vX1}, v{vTk}, {srd(sDB)}, 0 offen offset:192 sc1")
    a("s_mov_b64 exec, -1")
    a.lab("L_noflagset")
    if cst: stamp("bar0")
    def weights():
        a.c("weights: w_down row of channel 64*wp + 8*(l&7) + (l>>3); w_up dwords (row 2m + (l>>5), channels 64*wp + 2*(l&31), +1)")
        a(f"v_lshrrev_b32 v{vX0}, 3, v{vL}")
        a(f"v_and_b32 v{vX1}, 7, v{vL}")
        a(f"v_lshl_add_u32 v{vX0}, v{vX1}, 3, v{vX0}")
        a(f"v_mul_u32_u24 v{vX0}, 24, v{vX0}")
        a(f"s_mul_i32 s{sTmp}, s{sWp}, 1536")
        a(f"buffer_load_dwordx4 v[{vWD+6}:{vWD+9}], v{vX0}, {srd(sWD)}, s{sTmp} offen")
        a(f"buffer_load_dwordx2 v[{vWD+10}:{vWD+11}], v{vX0}, {srd(sWD)}, s{sTmp} offen offset:16")
        a(f"v_lshrrev_b32 v{vX0}, 5, v{vL}")
        a(f"v_and_b32 v{vX1}, 31, v{vL}")
        a(f"v_mul_u32_u24 v{vX0}, 384, v{vX0}")
        a(f"v_lshl_add_u32 v{vX0}, v{vX1}, 2, v{vX0}")
        a(f"s_lshl_b32 s{sTmp}, s{sWp}, 7")
        for m in range(6):
            a(f"buffer_load_dword v{vWU+m}, v{vX0}, {srd(sWU)}, s{sTmp} offen offset:{768*m}")
        order.extend(["w"] * 8)
    if clrpos != 2:
        for k in range(pre, 8):
            load(k)
    if wk == 8: weights()
    a(f"s_mov_b32 s{sSpin}, {spin}")
    a.c("unit tables of a placed span: units whose output lines (mostly) have address bit 13 clear / set")
    a(f"s_add_u32 s{sTmp}, s{sO}, 0x800")
    a(f"s_sub_u32 s{sOdd}, s{sTmp}, s{sX}")
    a(f"s_mov_b32 s{sTP}, 0x{tab(0):x}")
    a(f"s_mov_b32 s{sTP+1}, 0x{tab(8):x}")
    a(f"s_bitcmp1_b32 s{sTmp}, 12")
    a(f"s_cselect_b32 s{sTP}, 0x{tab(4):x}, s{sTP}")
    a(f"s_cselect_b32 s{sTP+1}, 0x{tab(12):x}, s{sTP+1}")
    a(f"s_mov_b32 s{sDec}, 0")
    stamp("static")
    def lpoll(tag):
        a.lab(f"L_dec{tag}")
        a(f"ds_read_b32 v{vChk}, v{vTk} offset:4356")
        a("s_waitcnt lgkmcnt(0)")
        a(f"v_readfirstlane_b32 s{sDec}, v{vChk}")
        a("s_nop 3")
        a(f"s_cmp_lt_i32 s{sDec}, 0")
        a(f"s_cbranch_scc1 L_dec_ok{tag}")
        a(f"s_sleep {psleep}")
        a(f"s_sub_u32 s{sSpin}, s{sSpin}, 1")
        a(f"s_cbranch_scc0 L_dec{tag}")
    a.c("the placement word decides which units of the remaining spans this workgroup takes")
    a(f"s_cmp_lt_u32 s{sWq}, {n2 if not nowait else 9}")
    a("s_cbranch_scc1 L_dec_okA")
    lpoll("A")
    a.lab("L_dec_okA")
    addr(1)
    tile(8)
    for k in range(8, 16):
        load(k)
    if wk == 16: weights()
    a(f"s_cmp_ge_u32 s{sWq}, {n2 if not nowait else 0}")
    a("s_cbranch_scc1 L_dec_okB")
    a(f"s_cmp_lg_u32 s{sW}, {decw}")
    a("s_cbranch_scc1 L_decB")
    a.c("one wave reads the probe words at several moments (the returns queue behind the data) and decides for the workgroup")
    a.c("thresholds: timed stores on the output are sharp, timed loads on the input (buffers not 4 KiB out of step) are not")
    a(f"s_movk_i32 s{sA}, {theta2}")
    a(f"s_bitcmp1_b32 s{sOdd}, 12")
    a(f"s_cselect_b32 s{sB}, s{sA}, {theta}") if theta <= 64 else (a(f"s_movk_i32 s{sB}, {theta}"), a(f"s_cselect_b32 s{sB}, s{sA}, s{sB}"))
    a(f"v_mov_b32 v{vChk}, s{sB}")
    a("s_mov_b64 exec, 0xf0f0f0")
    a(f"v_mov_b32 v{vChk}, s{sA}")
    a("s_mov_b64 exec, 0xffffff")
    a(f"v_lshlrev_b32 v{vX0}, 2, v{vL}")
    pws = [int(x) for x in str(pw).split(",")] if pw != "" else []
    NP = len(pws) + 1
    def rd(i): a(f"buffer_load_dword v{vT+i}, v{vX0}, {srd(sDB)}, 0 offen sc1")
    rd(0)
    for i, t in enumerate(pws):
        a(f"s_waitcnt vmcnt({len(order) - 1 - order.index(t) + i + 1})")
        rd(i + 1)
    for i in range(NP):
        a(f"s_waitcnt vmcnt({NP - 1 - i})")
        a(f"v_cmp_le_i32 vcc, 0, v{vT+i}")
        if i: a(f"v_mov_b32 v{vT}, v{vT+i}")
        a("s_cbranch_vccz L_have")
    a.lab("L_again")
    rd(0)
    a("s_waitcnt vmcnt(0)")
    a(f"v_cmp_le_i32 vcc, 0, v{vT}")
    a("s_cbranch_vccz L_have")
    a(f"s_sub_u32 s{sSpin}, s{sSpin}, 1")
    a("s_cbranch_scc0 L_again")
    a.lab("L_have")
    a(f"v_and_b32 v{vX1}, 0xfff, v{vT}")
    a(f"v_lshrrev_b32 v{vX0}, 16, v{vT}")
    a("s_nop 0")
    a(f"v_add_u32_dpp v{vX1}, v{vX1}, v{vX1} quad_perm:[1,0,3,2] row_mask:0xf bank_mask:0xf")
    a(f"v_readfirstlane_b32 s{sB}, v{vX0}")
    a("s_nop 0")
    a(f"v_add_u32_dpp v{vX1}, v{vX1}, v{vX1} quad_perm:[2,3,0,1] row_mask:0xf bank_mask:0xf")
    a.c("bit 8r: region placed (both of its sums are clear and agree), bit 8r+1: side")
    a(f"v_subrev_u32 v{vX1}, 4096, v{vX1}")
    a(f"v_cmp_gt_i32 vcc, v{vX1}, v{vChk}")
    a(f"v_sub_u32 v{vChk}, 0, v{vChk}")
    a(f"s_lshr_b32 s{sA}, vcc_lo, 4")
    a(f"s_and_b32 s{sTmp}, s{sA}, vcc_lo")
    a(f"v_cmp_lt_i32 vcc, v{vX1}, v{vChk}")
    a(f"s_lshr_b32 s{sA}, vcc_lo, 4")
    a(f"s_and_b32 s{sA}, s{sA}, vcc_lo")
    a(f"v_cmp_ne_u32 vcc, s{sB}, v{vX0}")
    a(f"s_and_b32 s{sTmp}, s{sTmp}, 0x010101")
    a(f"s_and_b32 s{sA}, s{sA}, 0x030303")
    a(f"s_or_b32 s{sDec}, s{sTmp}, s{sA}")
    a.c("only if every probing workgroup sits where round-robin placement puts it; bit 2 of (id + offset) then tells the die")
    a("s_cmp_eq_u32 vcc_lo, 0")
    a(f"s_cselect_b32 s{sDec}, s{sDec}, 0")
    a(f"s_add_u32 s{sB}, s{sB}, s2")
    a(f"s_lshr_b32 s{sB}, s{sB}, 1")
    a(f"s_add_u32 s{sA}, s{sO}, 0x800")
    a(f"s_lshr_b32 s{sA}, s{sA}, 12")
    a(f"s_xor_b32 s{sB}, s{sB}, s{sA}")
    a(f"s_and_b32 s{sB}, s{sB}, 2")
    a(f"s_mul_i32 s{sB}, s{sB}, 0x010101")
    a(f"s_xor_b32 s{sDec}, s{sDec}, s{sB}")
    if force is not None: a(f"s_mov_b32 s{sDec}, {force}")
    a(f"s_bitset1_b32 s{sDec}, 31")
    a(f"v_mov_b32 v{vX0}, s{sDec}")
    a(f"ds_write_b32 v{vTk}, v{vX0} offset:4356")
    if dbgdec:
        a(f"buffer_store_dword v{vX0}, v{vTk}, {srd(sDB)}, 0 offen offset:128")
    a("s_mov_b64 exec, -1")
    a("s_branch L_dec_okB")
    lpoll("B")
    a.lab("L_dec_okB")
    stamp("dec")
    addr(2)
    tile(16)
    for k in range(16, 24):
        load(k)
    addr(3)
    tile(24)
    for k in range(24, NT):
        load(k)
    a.c("wave 0: read the reset flag (it returns behind the data)")
    a(f"s_cmp_lg_u32 s{sW}, 0")
    a("s_cbranch_scc1 L_noflag")
    a(f"buffer_load_dword v{vChk}, v{vTk}, {srd(sDB)}, 0 offen offset:192 sc1")
    a.lab("L_noflag")
    stamp("issued")
    a.c("LDS: P[12][16] per-wave partials at 0, G[12][8] at 768, gates at 1280, ticket at 4352, placement word at 4356")
    a(f"s_mov_b32 s{sMask}, 0xffff0000")
    a(f"v_lshrrev_b32 v{vX0}, 4, v{vL}")
    a(f"s_lshl_b32 s{sTmp}, s{sW}, 6")
    a(f"v_lshl_add_u32 v{vPW}, v{vX0}, 4, s{sTmp}")
    a(f"v_and_b32 v{vX1}, 15, v{vL}")
    a(f"v_lshlrev_b32 v{vX1}, 2, v{vX1}")
    a(f"v_lshl_add_u32 v{vPR}, v{vX0}, 6, v{vX1}")
    a(f"s_mov_b32 s{sLead}, 0x00010001")
    a(f"s_mov_b32 s{sLead+1}, 0x00010001")
    a.c("publish address: lanes 0..15 -> this workgroup's slot, word l; the other lanes are out of range")
    a(f"s_lshl_b32 s{sTmp}, s2, {LS}")
    a(f"v_lshl_add_u32 v{vPub}, v{vL}, 2, s{sTmp}")
    a(f"v_cmp_gt_u32 vcc, 16, v{vL}")
    a(f"v_mov_b32 v{vX0}, 0x40000000")
    a(f"v_mov_b32 v{vX1}, 1")
    a(f"v_cndmask_b32 v{vPub}, v{vX0}, v{vPub}, vcc")

    if p1 == 1:
        a(f"s_mov_b32 s{sPo}, 0x00003f80")
        a(f"s_mov_b32 s{sPo+1}, 0x3f800000")
    a.c("phase 1: f32 channel sums of this lane's 8 channels; the data stay in v40..v167")
    for k in range(NT):
        if k == 0: a("s_waitcnt vmcnt(16)")
        if k >= 16: a(f"s_waitcnt vmcnt({len(order) - 1 - order.index(k)})")
        if k == 8:
            for i in range(6):
                a(f"v_lshlrev_b32 v{vWD+2*i}, 16, v{vWD+6+i}")
                a(f"v_and_b32 v{vWD+2*i+1}, s{sMask}, v{vWD+6+i}")
        for h in range(2):
            d0, d1 = D + 4 * k + 2 * h, D + 4 * k + 2 * h + 1
            t = vAcc + 4 * h if k == 0 else vT
            if p1 == 1 and k:
                a(f"v_dot2_f32_bf16 v{vAcc+4*h}, v{d0}, s{sPo}, v{vAcc+4*h}")
                a(f"v_dot2_f32_bf16 v{vAcc+4*h+1}, v{d0}, s{sPo+1}, v{vAcc+4*h+1}")
                a(f"v_dot2_f32_bf16 v{vAcc+4*h+2}, v{d1}, s{sPo}, v{vAcc+4*h+2}")
                a(f"v_dot2_f32_bf16 v{vAcc+4*h+3}, v{d1}, s{sPo+1}, v{vAcc+4*h+3}")
                continue
            a(f"v_lshlrev_b32 v{t}, 16, v{d0}")
            a(f"v_and_b32 v{t+1}, s{sMask}, v{d0}")
            a(f"v_lshlrev_b32 v{t+2}, 16, v{d1}")
            a(f"v_and_b32 v{t+3}, s{sMask}, v{d1}")
            if k:
                a(f"v_pk_add_f32 {v2(vAcc+4*h)}, {v2(vAcc+4*h)}, {v2(vT)}")
                a(f"v_pk_add_f32 {v2(vAcc+4*h+2)}, {v2(vAcc+4*h+2)}, {v2(vT+2)}")
    if p1 == 1: a("s_nop 2")
    stamp("loaded")
    a.c("wave 0: the slots must have been reset before this workgroup publishes or trusts a slot")
    a(f"s_cmp_lg_u32 s{sW}, 0")
    a("s_cbranch_scc1 L_chk_ok")
    a.lab("L_chk")
    a(f"v_cmp_eq_u32 vcc, 0, v{vChk}")
    a("s_cbranch_vccz L_chk_ok")
    a("s_sleep 4")
    a(f"buffer_load_dword v{vChk}, v{vTk}, {srd(sDB)}, 0 offen offset:192 sc1")
    a("s_waitcnt vmcnt(0)")
    a(f"s_sub_u32 s{sSpin}, s{sSpin}, 1")
    a("s_cbranch_scc0 L_chk")
    a.lab("L_chk_ok")
    A_ = vAcc
    a.c("8 sums x 8 lane rows -> one channel sum per lane (channel 8*(l&7) + (l>>3))")
    for i in range(4):
        a(f"v_permlane32_swap_b32 v{A_+i}, v{A_+i+4}")
    a(f"v_pk_add_f32 {v2(A_)}, {v2(A_)}, {v2(A_+4)}")
    a(f"v_pk_add_f32 {v2(A_+2)}, {v2(A_+2)}, {v2(A_+6)}")
    a("s_nop 1")
    for i in range(2):
        a(f"v_permlane16_swap_b32 v{A_+i}, v{A_+i+2}")
    a(f"v_pk_add_f32 {v2(A_)}, {v2(A_)}, {v2(A_+2)}")
    a("s_nop 1")
    a(f"v_add_f32_dpp v{A_+2}, v{A_}, v{A_} row_ror:8 row_mask:0xf bank_mask:0x3")
    a("s_nop 1")
    a(f"v_add_f32_dpp v{A_+2}, v{A_+1}, v{A_+1} row_ror:8 row_mask:0xf bank_mask:0xc")
    a.c("times the w_down row, summed over the wave: row r of 16 lanes keeps outputs 3r..3r+2")
    for j in (0, 6, 2, 8, 4, 10):
        a(f"v_pk_mul_f32 {v2(vWD+j)}, {v2(A_+2)}, {v2(vWD+j)} op_sel_hi:[0,1]")
    for i in range(6):
        a(f"v_permlane32_swap_b32 v{vWD+i}, v{vWD+i+6}")
    for i in range(0, 6, 2):
        a(f"v_pk_add_f32 {v2(vWD+i)}, {v2(vWD+i)}, {v2(vWD+i+6)}")
    a("s_nop 1")
    for i in range(3):
        a(f"v_permlane16_swap_b32 v{vWD+i}, v{vWD+i+3}")
    for i in range(3):
        a(f"v_add_f32 v{vWD+i}, v{vWD+i}, v{vWD+i+3}")
    for sh in (8, 4, 2, 1):
        for i in range(3):
            a(f"v_add_f32_dpp v{vWD+i}, v{vWD+i}, v{vWD+i} row_ror:{sh} row_mask:0xf bank_mask:0xf")
    a.c("partials -> LDS, take a ticket, read all partials back (complete for the wave whose ticket is last)")
    a(f"s_mov_b64 exec, {p64(sLead)}")
    a(f"ds_write_b128 v{vPW}, v[{vWD}:{vWD+3}]")
    a("s_mov_b64 exec, 1")
    a(f"ds_add_rtn_u32 v{vX0}, v{vTk}, v{vX1} offset:4352")
    a("s_mov_b64 exec, -1")
    a(f"ds_read_b32 v{vT}, v{vPR}")
    a(f"ds_read_b32 v{vT+1}, v{vPR} offset:256")
    a(f"ds_read_b32 v{vT+2}, v{vPR} offset:512")
    a("s_waitcnt lgkmcnt(0)")
    a(f"v_readfirstlane_b32 s{sTk}, v{vX0}")
    a(f"v_add_f32 v{vT}, v{vT}, v{vT+1}")
    a(f"v_add_f32 v{vT}, v{vT}, v{vT+2}")
    a(f"v_mov_b32 v{vT+1}, v{vT}")
    a(f"s_cmp_lg_u32 s{sTk}, 11")
    a("s_cbranch_scc1 L_nopub")
    a(f"v_permlane32_swap_b32 v{vT}, v{vT+1}")
    a(f"v_add_f32 v{vT}, v{vT}, v{vT+1}")
    a(f"v_mov_b32 v{vT+1}, v{vT}")
    a("s_nop 1")
    a(f"v_permlane16_swap_b32 v{vT}, v{vT+1}")
    a(f"v_add_f32 v{vT}, v{vT}, v{vT+1}")
    a(f"v_min_u32 v{vT}, -2, v{vT}")
    a(f"buffer_store_dword v{vT}, v{vPub}, {srd(sWS)}, 0 offen sc1")
    a.lab("L_nopub")
    stamp("pub")
    vGW, vGR, vEW, vER = vPR, vPub, vTk, vChk
    P = vAcc
    a.c("addresses for the rest, w_up to f32")
    a(f"s_lshl_b32 s{sPo}, s{sW}, {LS+5}")
    a(f"s_add_u32 s{sPo+1}, s{sPo}, {16*slot}")
    a(f"v_lshrrev_b32 v{vX0}, 4, v{vL}")
    a(f"v_and_b32 v{vX1}, 3, v{vL}")
    a(f"v_mad_u32_u24 v{vX0}, v{vX1}, 3, v{vX0}")
    a(f"s_lshl_b32 s{sTmp}, s{sW}, 2")
    a(f"s_add_u32 s{sTmp}, s{sTmp}, 768")
    a(f"v_lshl_add_u32 v{vGW}, v{vX0}, 5, s{sTmp}")
    a(f"v_and_b32 v{vX0}, 15, v{vL}")
    a(f"v_min_u32 v{vX0}, 5, v{vX0}")
    a(f"v_lshrrev_b32 v{vX1}, 5, v{vL}")
    a(f"v_lshl_add_u32 v{vX0}, v{vX0}, 1, v{vX1}")
    a(f"v_lshlrev_b32 v{vGR}, 5, v{vX0}")
    a(f"v_and_b32 v{vX0}, 31, v{vL}")
    a(f"v_lshl_add_u32 v{vX0}, v{vX0}, 1, v{vX1}")
    a(f"s_lshl_b32 s{sTmp}, s{sW}, 8")
    a(f"s_add_u32 s{sTmp}, s{sTmp}, 1280")
    a(f"v_lshl_add_u32 v{vEW}, v{vX0}, 2, s{sTmp}")
    a(f"v_and_b32 v{vX0}, 7, v{vL}")
    a(f"v_lshl_add_u32 v{vER}, v{vX0}, 5, s{sTmp}")
    for m in range(6):
        a(f"v_lshlrev_b32 v{vWD+2*m}, 16, v{vWU+m}")
        a(f"v_and_b32 v{vWD+2*m+1}, s{sMask}, v{vWU+m}")
    a(f"s_mov_b32 s{sLead}, 0x000f000f")
    a(f"s_mov_b32 s{sLead+1}, 0x0000000f")
    SO = {"seq": list(range(NT)),
          "rr": [8 * m + n for n in range(8) for m in (2, 0, 3, 1)],
          "rr2": [8 * m + n + j for n in range(0, 8, 2) for m in (2, 0, 3, 1) for j in range(2)],
          "rev": list(range(16, 32)) + list(range(8, 16)) + list(range(8)),
          "mid": list(range(16, 24)) + list(range(8)) + list(range(24, 32)) + list(range(8, 16))}[sord]
    tile(SO[0])
    a(f"s_cmp_ge_u32 s{sW}, 8")
    a("s_barrier")
    stamp("bar1")
    a("s_cbranch_scc1 L_nopoll")
    a.c("waves 0..7: gather 32 slots each; only the lanes whose words are still 'empty' read again")
    a.lab("L_poll")
    a(f"buffer_load_dwordx3 v[{P}:{P+2}], v{vSl}, {srd(sWS)}, s{sPo} offen sc1")
    a(f"buffer_load_dwordx3 v[{P+4}:{P+6}], v{vSl}, {srd(sWS)}, s{sPo+1} offen sc1")
    a("s_waitcnt vmcnt(0)")
    a(f"v_max3_u32 v{vT}, v{P}, v{P+1}, v{P+2}")
    a(f"v_max3_u32 v{vT+1}, v{P+4}, v{P+5}, v{P+6}")
    a(f"v_max_u32 v{vT}, v{vT}, v{vT+1}")
    a(f"v_cmp_eq_u32 vcc, -1, v{vT}")
    a("s_and_b64 exec, vcc, vcc")
    a("s_cbranch_scc0 L_got")
    a(f"s_sub_u32 s{sSpin}, s{sSpin}, 1")
    a("s_cbranch_scc0 L_poll")
    a.lab("L_got")
    a("s_mov_b64 exec, -1")
    a(f"v_pk_add_f32 {v2(P)}, {v2(P)}, {v2(P+4)}")
    a(f"v_add_f32 v{P+2}, v{P+2}, v{P+6}")
    a("s_nop 1")
    a(f"v_permlane32_swap_b32 v{P}, v{P+2}")
    a(f"v_permlane32_swap_b32 v{P+1}, v{P+3}")
    a(f"v_pk_add_f32 {v2(P)}, {v2(P)}, {v2(P+2)}")
    a("s_nop 1")
    a(f"v_permlane16_swap_b32 v{P}, v{P+1}")
    a(f"v_add_f32 v{P}, v{P}, v{P+1}")
    for sh in (8, 4):
        a("s_nop 1")
        a(f"v_add_f32_dpp v{P}, v{P}, v{P} row_ror:{sh} row_mask:0xf bank_mask:0xf")
    a(f"s_mov_b64 exec, {p64(sLead)}")
    a(f"ds_write_b32 v{vGW}, v{P}")
    a("s_mov_b64 exec, -1")
    a("s_waitcnt lgkmcnt(0)")
    a.lab("L_nopoll")
    if not cst: stamp("got")
    a("s_barrier")
    stamp("bar2")
    a(f"ds_read_b128 v[{P}:{P+3}], v{vGR} offset:768")
    a(f"ds_read_b128 v[{P+4}:{P+7}], v{vGR} offset:784")
    a(f"s_and_b32 s{sTmp}, s{sDec}, 0x010101")
    a(f"s_bcnt1_i32_b32 s{sTmp}, s{sTmp}")
    a(f"s_cmp_ge_u32 s{sTmp}, {nsw}")
    a("s_waitcnt lgkmcnt(0)")
    a(f"v_pk_add_f32 {v2(P)}, {v2(P)}, {v2(P+4)}")
    a(f"v_pk_add_f32 {v2(P+2)}, {v2(P+2)}, {v2(P+6)}")
    a(f"v_pk_add_f32 {v2(P)}, {v2(P)}, {v2(P+2)}")
    a(f"v_add_f32 v{P}, v{P}, v{P+1}")
    a.c("h = sum / 2^18; silu(h) = h / (1 + 2^(-h*log2 e))")
    c1 = struct.unpack("<I", struct.pack("<f", -1.4426950408889634 / 262144.0))[0]
    a(f"v_mul_f32 v{P+1}, 0x{c1:08x}, v{P}")
    a(f"v_exp_f32 v{P+1}, v{P+1}")
    a(f"v_mul_f32 v{P}, 0x36800000, v{P}")
    a(f"v_add_f32 v{P+1}, 1.0, v{P+1}")
    a(f"v_rcp_f32 v{P+1}, v{P+1}")
    a("s_nop 0")
    a(f"v_mul_f32 v{P}, v{P}, v{P+1}")
    a("s_nop 1")
    a.c("z = silu(h) @ w_up for channel 2*(l&31) + (l>>5); gate = bf16(1 / (1 + 2^(-z*log2 e)))")
    Z = vT
    for m in range(6):
        op = "v_mul_f32_dpp" if m < 2 else "v_fmac_f32_dpp"
        z = Z + 2 * (m & 1)
        a(f"{op} v{z}, v{P}, v{vWD+2*m} row_newbcast:{m} row_mask:0xf bank_mask:0xf")
        a(f"{op} v{z+1}, v{P}, v{vWD+2*m+1} row_newbcast:{m} row_mask:0xf bank_mask:0xf")
    a(f"v_pk_add_f32 {v2(Z)}, {v2(Z)}, {v2(Z+2)}")
    a("s_nop 1")
    a(f"v_permlane32_swap_b32 v{Z}, v{Z+1}")
    a(f"v_add_f32 v{Z}, v{Z}, v{Z+1}")
    a(f"v_mul_f32 v{Z}, 0xbfb8aa3b, v{Z}")
    a(f"v_exp_f32 v{Z}, v{Z}")
    a("s_nop 0")
    a(f"v_add_f32 v{Z}, 1.0, v{Z}")
    a(f"v_rcp_f32 v{Z}, v{Z}")
    a("s_nop 0")
    a(f"v_cvt_pk_bf16_f32 v{Z}, v{Z}, v{Z}")
    a(f"v_lshlrev_b32 v{Z}, 16, v{Z}")
    a(f"ds_write_b32 v{vEW}, v{Z}")
    a(f"ds_read_b128 v[{vAcc}:{vAcc+3}], v{vER}")
    a(f"ds_read_b128 v[{vAcc+4}:{vAcc+7}], v{vER} offset:16")
    a.c("phase 2: out = bf16(x * gate)")
    U = vWD
    for i in range(4):
        a(f"v_lshlrev_b32 v{U+2*i}, 16, v{D+4*SO[0]+i}")
        a(f"v_and_b32 v{U+2*i+1}, s{sMask}, v{D+4*SO[0]+i}")
    a("s_waitcnt lgkmcnt(0)")
    stamp("gates")
    def phase2(pm, win=0):
        for j, k in enumerate(SO):
            if j:
                for h in range(2):
                    d0, d1 = D + 4 * k + 2 * h, D + 4 * k + 2 * h + 1
                    t = vT if h == 0 else U
                    if p2 == 1:
                        continue
                    if p2 == 2:
                        a(f"v_dot2_f32_bf16 v{t}, v{d0}, v{vAcc+4*h}, 0")
                        a(f"v_dot2_f32_bf16 v{t+1}, v{d0}, v{vAcc+4*h+1}, 0")
                        a(f"v_dot2_f32_bf16 v{t+2}, v{d1}, v{vAcc+4*h+2}, 0")
                        a(f"v_dot2_f32_bf16 v{t+3}, v{d1}, v{vAcc+4*h+3}, 0")
                        if h == 1:
                            a(f"v_cvt_pk_bf16_f32 v{d0-2}, v{vT}, v{vT+1}")
                            a(f"v_cvt_pk_bf16_f32 v{d1-2}, v{vT+2}, v{vT+3}")
                            a("s_nop 0")
                            a(f"v_cvt_pk_bf16_f32 v{d0}, v{t}, v{t+1}")
                            a(f"v_cvt_pk_bf16_f32 v{d1}, v{t+2}, v{t+3}")
                        continue
                    a(f"v_lshlrev_b32 v{t}, 16, v{d0}")
                    a(f"v_and_b32 v{t+1}, s{sMask}, v{d0}")
                    a(f"v_lshlrev_b32 v{t+2}, 16, v{d1}")
                    a(f"v_and_b32 v{t+3}, s{sMask}, v{d1}")
                    a(f"v_pk_mul_f32 {v2(t)}, {v2(t)}, {v2(vAcc+4*h)}")
                    a(f"v_pk_mul_f32 {v2(t+2)}, {v2(t+2)}, {v2(vAcc+4*h+2)}")
                    a(f"v_cvt_pk_bf16_f32 v{d0}, v{t}, v{t+1}")
                    a(f"v_cvt_pk_bf16_f32 v{d1}, v{t+2}, v{t+3}")
            plain = (k in pm) if isinstance(pm, (set, list)) else (pm and j % pm == 0)
            if win and j >= win: a(f"s_waitcnt vmcnt({win - 1})")
            a(f"buffer_store_dwordx4 v[{D+4*k}:{D+4*k+3}], v{vOff}, {srd(sO)}, s{sT} offen{'' if plain else ' sc1'}")
            if j + 1 < NT: tile(SO[j + 1])
    for i in range(4):
        a(f"v_pk_mul_f32 {v2(U+2*i)}, {v2(U+2*i)}, {v2(vAcc+2*i)}")
    for i in range(4):
        a(f"v_cvt_pk_bf16_f32 v{D+4*SO[0]+i}, v{U+2*i}, v{U+2*i+1}")
    if p2 == 2:
        for i in range(0, 8, 2):
            a(f"v_lshrrev_b32 v{vAcc+i}, 16, v{vAcc+i}")
    a("s_cbranch_scc1 L_through")
    a.c("output spread over both dies: most stores write through, every 6th stays in L2 for the end-of-kernel write-back")
    phase2(plmod)
    a("s_branch L_stored" if (stamps or addn) else "s_endpgm")
    a.lab("L_through")
    a.c("output mostly on this workgroup's own die: all stores write through")
    phase2([int(x) for x in str(plmod2).split(",")] if "," in str(plmod2) else plmod2, win2)
    a.lab("L_stored")
    if not cst: stamp("stissued")
    if addn:
        a("s_waitcnt vmcnt(0)")
        a("s_memrealtime s[60:61]")
        a(f"s_and_b32 s{sTmp}, s{sDec}, 0x010101")
        a(f"s_bcnt1_i32_b32 s{sTmp}, s{sTmp}")
        a(f"s_mul_i32 s{sTmp}, s{sTmp}, 10000")
        a.lab("L_addn")
        a("s_memrealtime s[62:63]")
        a("s_waitcnt lgkmcnt(0)")
        a("s_sub_u32 s62, s62, s60")
        a(f"s_cmp_lt_u32 s62, s{sTmp}")
        a("s_cbranch_scc1 L_addn")
    if stamps:
        a("s_waitcnt vmcnt(0)")
        stamp("done")
        a("s_waitcnt lgkmcnt(0)")
    if diag:
        i = names.index(diag); j = names.index(dfrom)
        a(f"s_sub_u32 s{sTmp}, s{sSt+2*i}, s{sSt+2*j}")
        a(f"s_mul_i32 s{sTmp}, s{sTmp}, {amp}")
        a(f"s_min_u32 s{sTmp}, s{sTmp}, 200000")
        a.lab("L_diag")
        a(f"s_memrealtime s[{sSt+2}:{sSt+3}]")
        a("s_waitcnt lgkmcnt(0)")
        a(f"s_sub_u32 s{sSt+2}, s{sSt+2}, s{sSt}")
        a(f"s_cmp_lt_u32 s{sSt+2}, s{sTmp}")
        a("s_cbranch_scc1 L_diag")
    elif stamps:
        a(f"v_mov_b32 v{vT}, 0")
        a(f"v_mov_b32 v{vT+1}, 0")
        for i in range(len(names)):
            a(f"v_writelane_b32 v{vT}, s{sSt+2*i}, {i}")
            a(f"v_writelane_b32 v{vT+1}, s{sSt+2*i+1}, {i}")
        a(f"s_mul_i32 s{sTmp}, s2, 12")
        a(f"s_add_u32 s{sTmp}, s{sTmp}, s{sW}")
        a(f"s_lshl_b32 s{sTmp}, s{sTmp}, 7")
        a(f"s_add_u32 s{sTmp}, s{sTmp}, {STAMP_OFF}")
        a(f"v_lshlrev_b32 v{vX0}, 3, v{vL}")
        a("s_mov_b64 exec, 0xffff")
        a(f"buffer_store_dwordx2 v[{vT}:{vT+1}], v{vX0}, {srd(sWS)}, s{sTmp} offen")
    a.lab("L_end")
    a("s_endpgm")

    a.lab("L_clear")
    a.c("one wave of the grid: set every slot to the 'empty' marker")
    if not clrpos:
        a(f"s_cmp_lg_u32 s{sW}, {clrw}")
        a("s_cbranch_scc1 L_first")
        a(f"s_mov_b32 s{sWS+2}, {256 * slot}")
        a(f"s_mov_b32 s{sWS+3}, 0x00020000")
        slots()
    for i in range(4):
        a(f"v_mov_b32 v{vT+i}, -1")
    for i in range(16):
        a(f"s_mov_b32 s{sTmp}, {16*slot*i}")
        a(f"buffer_store_dwordx4 v[{vT}:{vT+3}], v{vSl}, {srd(sWS)}, s{sTmp} offen sc1")
    a("s_branch L_cleared" if clrpos else "s_branch L_first")
    out = HEADER
    out += f"; @launch grid=({NWG},1,1) block=(768,1,1) lds=4368\n"
    if stamps: out += "; stamps: " + " ".join(names) + "\n"
    out += """;
;      flagged through d_debug); every workgroup gathers the 256 lines, silu, w_up, sigmoid -> 192 gates;
"""
    out += """.amdgcn_target "amdgcn-amd-amdhsa--gfx950"
.text
.globl standalone__se_block__vision_kernel
.p2align 8
.type standalone__se_block__vision_kernel,@function
standalone__se_block__vision_kernel:
"""
    out += a.text()
    out += f""".section .rodata,"a"
.p2align 6
.amdhsa_kernel standalone__se_block__vision_kernel
  .amdhsa_next_free_vgpr 168
  .amdhsa_next_free_sgpr {96 if stamps else 64}
  .amdhsa_accum_offset 168
  .amdhsa_group_segment_fixed_size 0
  .amdhsa_kernarg_size 48
  .amdhsa_user_sgpr_count 2
  .amdhsa_user_sgpr_kernarg_segment_ptr 1
  .amdhsa_system_sgpr_workgroup_id_x 1
  .amdhsa_float_denorm_mode_32 3
.end_amdhsa_kernel
"""
    return out

if __name__ == "__main__":
    from build import build
    name = sys.argv[1]
    kw = {}
    for x in sys.argv[2:]:
        k, v = x.split("=")
        try: v = int(v)
        except ValueError: pass
        kw[k] = v
    open(name, "w").write(gen(**kw))
    print(build(name))
```
